```python
import torch

def _softmax(x, axis=-1):
    return torch.softmax(x, dim=axis)
def _gelu(x):
    return torch.nn.functional.gelu(x, approximate="tanh")
def _silu(x):
    return torch.nn.functional.silu(x)
def _sigmoid(x):
    return torch.sigmoid(x)
def _layernorm(x, axis=-1, eps=1e-5):
    m = x.mean(dim=axis, keepdim=True)
    v = x.var(dim=axis, keepdim=True, unbiased=False)
    return (x - m) / torch.sqrt(v + eps)
def _scatter_add(tgt, idx, src, axis=0):
    return tgt.clone().index_add_(axis, idx, src)
def _segment_sum(src, seg, n):
    out = torch.zeros((n,) + src.shape[1:], dtype=src.dtype)
    return out.index_add_(0, seg, src)
def _pad(x, pw):
    flat = tuple(v for pair in reversed(pw) for v in pair)
    return torch.nn.functional.pad(x, flat)

kernel_name = 'concat_heads__mha_block_cached__mha_block_cached__near_ridge'

def setup_inputs():

    _w = (lambda a: (lambda t: t.to(torch.bfloat16) if t.is_floating_point() else t)(torch.as_tensor(a)))
    def _A_setup():
        B, Sq, D = 16, 64, 1024
        H, Sk, Dh = 32, 512, 128
        return {
            "x": _w((lambda *s: torch.randn(*s, dtype=torch.bfloat16) * 0.8)(B, Sq, D)),
            "k_cache": _w((lambda *s: torch.randn(*s, dtype=torch.bfloat16) * 0.8)(B, H, Sk, Dh)),
            "v_cache": _w((lambda *s: torch.randn(*s, dtype=torch.bfloat16) * 0.05)(B, H, Sk, Dh)),
            "wq": _w((lambda *s: torch.randn(*s, dtype=torch.bfloat16) * 0.8)(D, H * Dh) * (D ** -0.5)),
            "wo": _w((lambda *s: torch.randn(*s, dtype=torch.bfloat16) * 0.05)(H * Dh, D) * ((H * Dh) ** -0.5)),
        }
    _A_in = _A_setup()

    def _B_setup():
        B, Sq, D = 16, 64, 1024
        H, Sk, Dh = 32, 512, 128
        return {
            "x": _w((lambda *s: torch.randn(*s, dtype=torch.bfloat16) * 0.8)(B, Sq, D)),
            "k_cache": _w((lambda *s: torch.randn(*s, dtype=torch.bfloat16) * 0.8)(B, H, Sk, Dh)),
            "v_cache": _w((lambda *s: torch.randn(*s, dtype=torch.bfloat16) * 0.05)(B, H, Sk, Dh)),
            "wq": _w((lambda *s: torch.randn(*s, dtype=torch.bfloat16) * 0.8)(D, H * Dh) * (D ** -0.5)),
            "wo": _w((lambda *s: torch.randn(*s, dtype=torch.bfloat16) * 0.05)(H * Dh, D) * ((H * Dh) ** -0.5)),
        }
    _B_in = _B_setup()

    return {
        "A_x": _A_in["x"],
        "A_k_cache": _A_in["k_cache"],
        "A_v_cache": _A_in["v_cache"],
        "A_wq": _A_in["wq"],
        "A_wo": _A_in["wo"],
        "B_x": _B_in["x"],
        "B_k_cache": _B_in["k_cache"],
        "B_v_cache": _B_in["v_cache"],
        "B_wq": _B_in["wq"],
        "B_wo": _B_in["wo"],
    }

def reference(A_x, A_k_cache, A_v_cache, A_wq, A_wo, B_x, B_k_cache, B_v_cache, B_wq, B_wo):
    def _A_ref(x, k_cache, v_cache, wq, wo):
        B, Sq, D = x.shape
        H, Dh = 32, 128
        q = (lambda x, *d: x.permute(*d))((x @ wq).reshape(B, Sq, H, Dh), 0, 2, 1, 3)
        scores = torch.einsum("bhqd,bhkd->bhqk", q, k_cache) * (Dh ** -0.5)
        p = _softmax(scores, axis=-1)
        o = torch.einsum("bhqk,bhkd->bhqd", p, v_cache)
        return (lambda x, *d: x.permute(*d))(o, 0, 2, 1, 3).reshape(B, Sq, H * Dh) @ wo

    def _B_ref(x, k_cache, v_cache, wq, wo):
        B, Sq, D = x.shape
        H, Dh = 32, 128
        q = (lambda x, *d: x.permute(*d))((x @ wq).reshape(B, Sq, H, Dh), 0, 2, 1, 3)
        scores = torch.einsum("bhqd,bhkd->bhqk", q, k_cache) * (Dh ** -0.5)
        p = _softmax(scores, axis=-1)
        o = torch.einsum("bhqk,bhkd->bhqd", p, v_cache)
        return (lambda x, *d: x.permute(*d))(o, 0, 2, 1, 3).reshape(B, Sq, H * Dh) @ wo

    a = _A_ref(A_x, A_k_cache, A_v_cache, A_wq, A_wo)
    b = _B_ref(B_x, B_k_cache, B_v_cache, B_wq, B_wo)
    return torch.concatenate([a, b], axis=-1)
```

```python
class G:
    def __init__(self):
        self.L=[]; self.vm=[]; self.lg=[]; self.nl=0
    def e(self,s):
        for l in s.strip("\n").split("\n"):
            l=l.strip()
            if l: self.L.append(l if l.endswith(":") else " "+l)
    def label(self,n): self.L.append(n+":")
    def vmop(self,s,tag):
        self.e(s); self.vm.append(tag)
    def lgop(self,s,tag):
        self.e(s); self.lg.append(tag)
    def _need(self,q,tags):
        if not isinstance(tags,list): tags=[tags]
        idx=-1
        for i,t in enumerate(q):
            if t in tags: idx=i
        return idx
    def vmwait(self,tags):
        idx=self._need(self.vm,tags)
        if idx<0: return
        n=len(self.vm)-1-idx
        self.e(f"s_waitcnt vmcnt({min(n,63)})")
        keep=min(n,63)
        self.vm=self.vm[len(self.vm)-keep:] if keep>0 else []
    def lgwait(self,tags):
        idx=self._need(self.lg,tags)
        if idx<0: return
        n=len(self.lg)-1-idx
        keep=min(n,15)
        self.e(f"s_waitcnt lgkmcnt({keep})")
        self.lg=self.lg[len(self.lg)-keep:] if keep>0 else []
    def lgwait_all(self):
        self.e("s_waitcnt lgkmcnt(0)"); self.lg=[]
    def text(self): return "\n".join(self.L)+"\n"

def interleave(g, mfmas, fillers, start=0):
    n=len(mfmas); m=len(fillers)
    slots=n-start
    fi=0
    for i,mf in enumerate(mfmas):
        if callable(mf): mf()
        else: g.e(mf)
        if i>=start:
            want=((i-start+1)*m + slots-1)//slots if slots>0 else m
            while fi<min(want,m):
                fillers[fi](); fi+=1
    while fi<m:
        fillers[fi](); fi+=1

def vr(b,n=4): return f"v[{b}:{b+n-1}]"
def ar(b,n=4): return f"a[{b}:{b+n-1}]"
def sr(b,n=4): return f"s[{b}:{b+n-1}]"
```

```python
import sys
from gl import *
NAME="concat_heads__mha_block_cached__mha_block_cached__near_ridge"
NT=" nt"
C_SCALE=0x3e0293ee
import struct, math
C_SCALE=struct.unpack("<I",struct.pack("<f",math.log2(math.e)/math.sqrt(128.0)))[0]

def srd(g,s,lo,hi,size):
    g.e(f"s_mov_b32 s{s}, s{lo}\ns_and_b32 s{s+1}, s{hi}, 0xffff\ns_mov_b32 s{s+2}, {size}\ns_mov_b32 s{s+3}, 0x20000")

def stamp(g,opt,idx,sbase_pair,wg="s2"):
    if not opt.get("stamps"): return
    lab=f"ST_{opt['kid']}_{idx}"
    g.e(f"""
    s_memrealtime s[96:97]
    s_waitcnt lgkmcnt(0)
    v_mov_b32 v60, s96
    v_mov_b32 v61, s97
    v_mov_b32 v62, s98
    global_store_dwordx2 v62, v[60:61], s[{sbase_pair}:{sbase_pair+1}] offset:{idx*8}
    """)
    g.vm.append(('stamp',idx))

def gen_k1(opt):
    g=G(); opt['kid']='k1'
    S_X=8;S_WQ=12;S_K=16;S_V=20;S_KN=24;S_O=28
    sW=32;sH=33;sBG=34;sBR=35;sPHI=36;sXB=37;sWQB=41;sT0=42;sT1=43;sKX=44;sKW=45
    sCUR=46;sNXT=47;sITEM=48;sOB=49;sC=50;sMASK=52;sWOFF=54;sXL=55;sWL=56
    XBASE=96*1024; WQBASE=48*1024
    vKD=8; vVD=12; vKR=14; vVR=22; vOS=38
    vXD=40; vXR=42; vWD=44; vWR=48
    QF=64; ACC=128
    g.e(f"""
    s_cmp_ge_u32 s2, 256
    s_cbranch_scc1 K1_END
    s_load_dwordx2 s[68:69], s[0:1], 96
    s_and_b32 s3, s2, 7
    s_lshr_b32 s4, s2, 3
    s_lshr_b32 s{sBR}, s3, 2
    s_and_b32 s5, s3, 3
    s_lshl_b32 s5, s5, 3
    s_and_b32 s6, s4, 7
    s_add_u32 s{sH}, s5, s6
    s_lshr_b32 s{sBG}, s4, 3
    s_lshl_b32 s7, s{sBG}, 1
    s_add_u32 s7, s7, s6
    s_and_b32 s{sPHI}, s7, 7
    s_mul_i32 s5, s{sBR}, 40
    s_add_u32 s70, s0, s5
    s_addc_u32 s71, s1, 0
    s_load_dwordx4 s[60:63], s[70:71], 0
    s_load_dwordx4 s[64:67], s[70:71], 16
    v_lshrrev_b32 v1, 6, v0
    v_and_b32 v0, 63, v0
    s_nop 0
    v_readfirstlane_b32 s{sW}, v1
    """)
    if not opt.get("rot",1): g.e(f"s_mov_b32 s{sPHI}, 0")
    g.e(f"""
    v_lshrrev_b32 v1, 3, v0              ; r8
    v_and_b32 v2, 7, v0                  ; p8
    v_lshrrev_b32 v3, 4, v0              ; rr / g
    v_and_b32 v4, 15, v0                 ; p16 / q / key
    v_xor_b32 v5, v2, v3
    v_lshlrev_b32 v5, 4, v5
    v_lshl_add_u32 v{vXD}, v1, 11, v5
    v_xor_b32 v5, 64, v5
    v_lshl_add_u32 v5, v1, 11, v5
    v_add_u32 v{vXD+1}, {8*2048-1024}, v5
    """)
    g.e(f"""
    v_lshrrev_b32 v5, 1, v4
    v_xor_b32 v5, v5, v3
    v_lshlrev_b32 v5, 4, v5
    v_lshl_add_u32 v5, v4, 7, v5
    s_lshl_b32 s{sXL}, s{sW}, 14
    s_add_u32 s{sXL}, s{sXL}, {XBASE}
    v_add_u32 v{vXR}, s{sXL}, v5
    v_xor_b32 v{vXR+1}, 64, v{vXR}
    """)
    g.e(f"""
    v_and_b32 v5, 1, v3
    v_and_b32 v6, 2, v3
    v_lshl_or_b32 v5, v6, 1, v5          ; f0
    v_xor_b32 v5, v5, v4                 ; p ^ f0
    """)
    for j in range(4):
        g.e(f"""
        v_xor_b32 v6, {8*(j>>1)}, v5
        v_lshlrev_b32 v6, 4, v6
        v_lshl_add_u32 v6, v3, 13, v6
        v_add_u32 v{vWD+j}, {4*j*8192-1024*j}, v6
        """)
    g.e(f"""
    v_lshrrev_b32 v5, 2, v4              ; rp
    v_and_b32 v6, 3, v0                  ; c
    v_and_b32 v7, 1, v5
    v_and_b32 v1, 2, v5
    v_lshl_or_b32 v7, v1, 1, v7
    v_and_b32 v1, 1, v3
    v_lshl_or_b32 v7, v1, 3, v7          ; f
    v_xor_b32 v7, v7, v6                 ; c ^ f
    v_lshlrev_b32 v7, 4, v7
    v_and_b32 v1, 1, v6
    v_lshl_or_b32 v7, v1, 3, v7          ; + 8*(c&1)
    v_lshl_add_u32 v1, v3, 3, v5         ; 8kg+rp
    v_lshl_add_u32 v7, v1, 8, v7
    v_add_u32 v7, {WQBASE}, v7
    """)
    for dt in range(8):
        t,u=dt>>1,dt&1
        g.e(f"v_xor_b32 v{vWR+dt}, {(t<<6)^(u<<3)}, v7")
    for j in range(4):
        g.e(f"""
        v_add_u32 v5, {4*j}, v3
        v_xor_b32 v5, v5, v4
        v_lshlrev_b32 v5, 4, v5
        v_lshl_add_u32 v{vKD+j}, v3, 8, v5
        """)
    g.e(f"""
    v_xor_b32 v5, v3, v4
    v_lshlrev_b32 v5, 4, v5
    v_lshl_add_u32 v5, v4, 8, v5
    """)
    for t in range(4):
        g.e(f"v_xor_b32 v{vKR+t}, {t<<6}, v5\nv_add_u32 v{vKR+4+t}, 0x10000, v{vKR+t}")
    for jp in range(2):
        g.e(f"""
        v_add_u32 v5, {4*jp}, v3
        v_lshlrev_b32 v5, 1, v5
        v_xor_b32 v5, v5, v4
        v_lshlrev_b32 v5, 4, v5
        v_lshl_add_u32 v{vVD+jp}, v3, 8, v5
        """)
    g.e(f"""
    v_lshrrev_b32 v5, 2, v4              ; rp
    v_and_b32 v6, 3, v0                  ; c
    v_and_b32 v7, 1, v3
    v_lshl_add_u32 v7, v7, 2, v5         ; 4(g&1)+rp
    v_lshlrev_b32 v7, 1, v7
    v_lshrrev_b32 v1, 1, v6
    v_xor_b32 v7, v7, v1
    v_lshlrev_b32 v7, 4, v7
    v_and_b32 v1, 1, v6
    v_lshl_or_b32 v7, v1, 3, v7
    v_lshl_add_u32 v1, v3, 2, v5         ; 4g+rp
    v_lshl_add_u32 v7, v1, 8, v7
    """)
    for dt in range(8):
        g.e(f"v_xor_b32 v{vVR+dt}, {dt<<5}, v7\nv_add_u32 v{vVR+8+dt}, 0x10000, v{vVR+dt}")
    g.e(f"v_lshlrev_b32 v{vOS}, 4, v0")
    g.e(f"v_mov_b32 v1, 0x3f803f80")
    for r in range(4): g.e(f"v_accvgpr_write_b32 a{144+r}, v1")
    g.e("s_waitcnt lgkmcnt(0)")
    srd(g,S_X,60,61,2*1024*1024)
    srd(g,S_K,62,63,64*1024*1024)
    srd(g,S_V,64,65,64*1024*1024)
    srd(g,S_WQ,66,67,8*1024*1024)
    srd(g,S_KN,62,63,64*1024*1024)
    srd(g,S_O,68,69,16*1024*1024)
    if opt.get("stamps"):
        g.e(f"s_add_u32 s98, s68, {32*1024*1024}\ns_addc_u32 s99, s69, 0\ns_mov_b32 s72, s98\ns_mov_b32 s73, s99\ns_lshl_b32 s98, s2, 7")
    g.e(f"""
    s_lshl_b32 s{sWOFF}, s{sW}, 12
    s_add_u32 s{sWL}, s{sWOFF}, {WQBASE}
    s_mov_b32 s{sC}, {C_SCALE}
    s_mov_b32 s{sMASK}, 0xffff0000
    s_mov_b32 s{sMASK+1}, 0xffff0000
    s_lshl_b32 s{sT0}, s{sBG}, 19
    s_lshl_b32 s{sT1}, s{sW}, 15
    s_add_u32 s{sXB}, s{sT0}, s{sT1}
    s_add_u32 s{sXB+1}, s{sXB}, 0x20000
    s_add_u32 s{sXB+2}, s{sXB}, 0x40000
    s_add_u32 s{sXB+3}, s{sXB}, 0x60000
    s_lshl_b32 s{sT0}, s{sW}, 17
    s_lshl_b32 s{sT1}, s{sH}, 8
    s_add_u32 s{sWQB}, s{sT0}, s{sT1}
    s_lshl_b32 s{sT0}, s{sBG}, 24
    s_lshl_b32 s{sT1}, s{sH}, 17
    s_add_u32 s{sCUR}, s{sT0}, s{sT1}
    s_add_u32 s{sCUR}, s{sCUR}, s{sWOFF}
    s_add_u32 s{sNXT}, s{sCUR}, 0x400000
    ; o base
    s_lshl_b32 s{sT0}, s{sBR}, 23
    s_lshl_b32 s{sT1}, s{sBG}, 21
    s_add_u32 s{sOB}, s{sT0}, s{sT1}
    s_lshl_b32 s{sT0}, s{sW}, 17
    s_add_u32 s{sOB}, s{sOB}, s{sT0}
    s_lshl_b32 s{sT0}, s{sH}, 12
    s_add_u32 s{sOB}, s{sOB}, s{sT0}
    s_mov_b32 s{sITEM}, 0
    """)
    stamp(g,opt,0,72)
    NTX=opt.get("nt_x",""); NTW=opt.get("nt_wq","")
    def kidx(s,dst,shift):
        g.e(f"""s_add_u32 s{sT0}, s{sPHI}, {s}
        s_and_b32 s{sT0}, s{sT0}, 7
        s_or_b32 s{sT0}, s{sT0}, {s&8}
        s_lshl_b32 s{dst}, s{sT0}, {shift}""")
    def x_dma(s,i):
        slot=(s&1)*4+i
        g.e(f"s_add_u32 m0, s{sXL}, {slot*2048}\ns_add_u32 s{sT1}, s{sXB+i}, s{sKX}")
        g.vmop(f"buffer_load_dwordx4 v{vXD}, {sr(S_X)}, s{sT1} offen{NTX} lds",('x',s,i))
        g.vmop(f"buffer_load_dwordx4 v{vXD+1}, {sr(S_X)}, s{sT1} offen offset:1024{NTX} lds",('x',s,i))
    def wq_dma(s):
        g.e(f"s_add_u32 m0, s{sWL}, {(s%3)*16384}\ns_add_u32 s{sT1}, s{sWQB}, s{sKW}")
        for j in range(4):
            g.vmop(f"buffer_load_dwordx4 v{vWD+j}, {sr(S_WQ)}, s{sT1} offen offset:{1024*j}{NTW} lds",('wq',s))
    def kv_dma(cc,track=True):
        slot=cc&7
        if cc<8: srdn,base,vo,ch=S_K,sCUR,[vKD+j for j in range(4)],cc
        elif cc<16: srdn,base,vo,ch=S_V,sCUR,[vVD+(j&1) for j in range(4)],cc-8
        else: srdn,base,vo,ch=S_KN,sNXT,[vKD+j for j in range(4)],cc-16
        g.e(f"s_add_u32 m0, s{sWOFF}, {slot*16384}\ns_add_u32 s{sT1}, s{base}, {ch*16384}")
        for j in range(4):
            ins=f"buffer_load_dwordx4 v{vo[j]}, {sr(srdn)}, s{sT1} offen offset:{1024*j}{NT} lds"
            if track: g.vmop(ins,('kv',cc))
            else: g.e(ins)
    def a_read(s,ks,dt,hf):
        p=s&1
        r=64*p+(ks*8+dt)*4+2*hf
        off=(s%3)*16384+ks*8192+hf*1024
        g.lgop(f"ds_read_b64_tr_b16 a[{r}:{r+1}], v{vWR+dt} offset:{off}",('A',s))
    def b_read(s,i,ks):
        n=s*4+i
        r=128+(n&1)*8+ks*4
        slot=(s&1)*4+i
        g.lgop(f"ds_read_b128 a[{r}:{r+3}], v{vXR+ks} offset:{slot*2048}",('B',s,i))
    kidx(0,sKW,19); wq_dma(0)
    kidx(0,sKX,7)
    for i in range(4): x_dma(0,i)
    kidx(1,sKW,19); wq_dma(1)
    kidx(1,sKX,7)
    for i in range(4): x_dma(1,i)
    kidx(2,sKW,19); wq_dma(2)
    g.vmwait(('wq',0))
    g.e("s_barrier")
    for ks in range(2):
        for dt in range(8):
            for hf in range(2): a_read(0,ks,dt,hf)
    g.vmwait(('x',0,0))
    b_read(0,0,0); b_read(0,0,1)
    kpre=opt.get("kpre",{5:0,8:1,11:2})
    for s in range(16):
        if s+1<16: g.vmwait(('wq',s+1))
        g.lgwait(('A',s))
        g.e("s_barrier")
        areads=[(ks,dt,hf) for ks in range(2) for dt in range(8) for hf in range(2)] if s+1<16 else []
        split=[areads[0:11],areads[11:22],areads[22:32],[]]
        for i in range(4):
            g.lgwait(('B',s,i))
            F=[]
            nxt=(s,i+1) if i<3 else ((s+1,0) if s+1<16 else None)
            if nxt:
                F.append(lambda nxt=nxt: (g.vmwait(('x',)+nxt), b_read(nxt[0],nxt[1],0)))
                F.append(lambda nxt=nxt: b_read(nxt[0],nxt[1],1))
            if i==0:
                if s+3<16: F.append(lambda s=s: (kidx(s+3,sKW,19), wq_dma(s+3)))
                if s+2<16: F.append(lambda s=s: kidx(s+2,sKX,7))
            if s+2<16: F.append(lambda s=s,i=i: x_dma(s+2,i))
            if i==1 and s in kpre: F.append(lambda c=kpre[s]: kv_dma(c))
            for (ks,dt,hf) in split[i]:
                F.append(lambda ks=ks,dt=dt,hf=hf,s=s: a_read(s+1,ks,dt,hf))
            n=s*4+i
            M=[]
            for ks in range(2):
                for dt in range(8):
                    d=ACC+(i*8+dt)*4
                    A=64*(s&1)+(ks*8+dt)*4
                    B=128+(n&1)*8+ks*4
                    c="0" if (s==0 and ks==0) else vr(d)
                    M.append(f"v_mfma_f32_16x16x32_bf16 {vr(d)}, {ar(A)}, {ar(B)}, {c}")
            interleave(g,M,F)
    stamp(g,opt,1,72)
    g.e("s_barrier")
    done=set(kpre.values())
    for cc in range(7):
        if cc not in done: kv_dma(cc)
    for i in range(4):
        for t in range(4):
            bx=ACC+(i*8+2*t)*4; by=bx+4; F=QF+16*i+4*t
            g.e(f"""
            v_cvt_pk_bf16_f32 v56, v{bx}, v{bx+1}
            v_cvt_pk_bf16_f32 v57, v{bx+2}, v{bx+3}
            v_cvt_pk_bf16_f32 v58, v{by}, v{by+1}
            v_cvt_pk_bf16_f32 v59, v{by+2}, v{by+3}
            v_cndmask_b32 v{F}, v56, v58, s[{sMASK}:{sMASK+1}]
            v_cndmask_b32 v{F+1}, v57, v59, s[{sMASK}:{sMASK+1}]
            v_cndmask_b32 v{F+2}, v58, v56, s[{sMASK}:{sMASK+1}]
            v_cndmask_b32 v{F+3}, v59, v57, s[{sMASK}:{sMASK+1}]
            """)
    if opt.get("dump_q"):
        g.e(f"s_lshl_b32 s{sT0}, s2, 16\ns_lshl_b32 s{sT1}, s{sW}, 14\ns_add_u32 s{sT0}, s{sT0}, s{sT1}\ns_add_u32 s{sT0}, s{sT0}, {16*1024*1024}\ns_mov_b32 s{S_O+2}, {64*1024*1024}")
        for f in range(16):
            g.e(f"buffer_store_dwordx4 {vr(QF+4*f)}, v{vOS}, {sr(S_O)}, s{sT0} offen offset:{(f&3)*1024}")
            if (f&3)==3: g.e(f"s_add_u32 s{sT0}, s{sT0}, 4096")
        g.e("s_waitcnt vmcnt(0)")
    g.label("K1_ITEM")
    g.e(f"s_cmp_lt_u32 s{sITEM}, 3\ns_cselect_b32 s{S_KN+2}, 0x4000000, 0")
    g.lg=[]
    for c in range(16):
        slot=c&7
        hi=4 if slot>=4 else 0
        so=(slot&3)*16384
        g.e("s_waitcnt vmcnt(24)\ns_barrier")
        kv_dma(c+7,track=False)
        if c<8:
            for kt in range(4):
                for t in range(4):
                    r=(kt*4+t)*4
                    g.lgop(f"ds_read_b128 {ar(r)}, v{vKR+hi+t} offset:{so+kt*4096}",('K',c,kt))
            for kt in range(4):
                g.lgwait(('K',c,kt))
                T=4*c+kt; d=ACC+4*T
                for t in range(4):
                    cc="0" if t==0 else vr(d)
                    g.e(f"v_mfma_f32_16x16x32_bf16 {vr(d)}, {ar((kt*4+t)*4)}, {vr(QF+4*t)}, {cc}")
            if c==7:
                g.e("s_nop 7")
                for k in range(4):
                    b=ACC+32*k; m=48+k
                    g.e(f"v_max3_f32 v{m}, v{b}, v{b+1}, v{b+2}")
                    for r in range(3,31,2): g.e(f"v_max3_f32 v{m}, v{m}, v{b+r}, v{b+r+1}")
                    g.e(f"v_max_f32 v{m}, v{m}, v{b+31}")
                g.e("""
                v_max3_f32 v48, v48, v49, v50
                v_max_f32 v48, v48, v51
                v_mov_b32 v49, v48
                s_nop 1
                v_permlane16_swap_b32 v48, v49
                v_max_f32 v48, v48, v49
                v_mov_b32 v49, v48
                s_nop 1
                v_permlane32_swap_b32 v48, v49
                v_max_f32 v48, v48, v49
                """)
                g.e(f"v_mul_f32 v48, s{sC}, v48")
                for J in range(16):
                    b=ACC+8*J
                    for r in range(8): g.e(f"v_fma_f32 v{40+r}, v{b+r}, s{sC}, -v48")
                    for r in range(8): g.e(f"v_exp_f32 v{40+r}, v{40+r}")
                    for r in range(4): g.e(f"v_cvt_pk_bf16_f32 v{ACC+4*J+r}, v{40+2*r}, v{41+2*r}")
        else:
            cv=c-8
            vhi=8 if slot>=4 else 0
            def vread(js,dt):
                for hf in range(2):
                    r=(js*8+dt)*4+2*hf
                    g.lgop(f"ds_read_b64_tr_b16 a[{r}:{r+1}], v{vVR+vhi+dt} offset:{so+js*8192+hf*4096}",('V',c,js,dt))
            for dt in range(8): vread(0,dt)
            for js in range(2):
                J=2*cv+js; P=ACC+4*J
                for dt in range(8):
                    g.lgwait(('V',c,js,dt))
                    d=192+4*dt
                    cc="0" if J==0 else vr(d)
                    g.e(f"v_mfma_f32_16x16x32_bf16 {vr(d)}, {ar((js*8+dt)*4)}, {vr(P)}, {cc}")
                    if js==0: vread(1,dt)
                cc="0" if J==0 else vr(224)
                g.e(f"v_mfma_f32_16x16x32_bf16 {vr(224)}, {ar(144)}, {vr(P)}, {cc}")
    g.e("s_nop 7\nv_rcp_f32 v48, v224\ns_nop 0")
    for t in range(4):
        b=192+8*t
        for r in range(8): g.e(f"v_mul_f32 v{b+r}, v{b+r}, v48")
        for r in range(4): g.e(f"v_cvt_pk_bf16_f32 v{b+r}, v{b+2*r}, v{b+2*r+1}")
        g.e(f"buffer_store_dwordx4 {vr(b)}, v{vOS}, {sr(S_O)}, s{sOB} offen offset:{t*1024}")
    for r in range(48): g.e(f"v_mov_b32 v{QF+r}, v{QF+16+r}")
    g.e(f"""
    s_add_u32 s{sCUR}, s{sCUR}, 0x400000
    s_add_u32 s{sNXT}, s{sNXT}, 0x400000
    s_add_u32 s{sOB}, s{sOB}, 0x80000
    s_add_u32 s{sITEM}, s{sITEM}, 1
    """)
    if opt.get("stamps"):
        for it in range(4):
            g.e(f"s_cmp_lg_u32 s{sITEM}, {it+1}\ns_cbranch_scc1 K1_NS{it}")
            stamp(g,opt,2+it,72)
            g.label(f"K1_NS{it}")
    g.e(f"s_cmp_lt_u32 s{sITEM}, 4\ns_cbranch_scc1 K1_ITEM")
    g.label("K1_END")
    g.e("s_endpgm")
    return g.text()

def gen_k2(opt):
    g=G(); opt['kid']='k2'
    KS=opt.get("ksplit",1)
    NWG=128*KS; NCH=64//KS
    S_WO=8;S_O=12;S_OUT=16;S_WON=20;S_ON=24
    sW=32;sBR=33;sRB=34;sCB=35;sKH=36;sPHI=37;sT0=38;sT1=39;sWB=40;sOB0=41;sOB1=42;sJ=43;sWOFF=44;sKW=45;sKO=46;sOUTB=47
    vWD=8; vVR=12; vOS=20; vST=21
    ACC=64; OF=128
    g.e(f"""
    s_cmp_ge_u32 s2, {NWG}
    s_cbranch_scc1 K2_END
    s_load_dwordx2 s[68:69], s[0:1], 96
    s_load_dwordx2 s[64:65], s[0:1], 80
    s_and_b32 s3, s2, 7
    s_lshr_b32 s4, s2, 3
    s_lshr_b32 s{sBR}, s3, 2
    s_lshr_b32 s5, s3, 1
    s_and_b32 s5, s5, 1
    s_lshl_b32 s5, s5, 2
    s_and_b32 s6, s4, 3
    s_add_u32 s{sRB}, s5, s6
    s_and_b32 s5, s3, 1
    s_lshl_b32 s5, s5, 2
    s_lshr_b32 s7, s4, 2
    s_and_b32 s7, s7, 3
    s_add_u32 s{sCB}, s5, s7
    s_lshr_b32 s{sKH}, s4, 4
    s_add_u32 s{sPHI}, s6, s7
    s_and_b32 s{sPHI}, s{sPHI}, 3
    s_lshl_b32 s{sPHI}, s{sPHI}, 1
    s_mul_i32 s5, s{sBR}, 40
    s_add_u32 s70, s0, s5
    s_addc_u32 s71, s1, 0
    s_load_dwordx2 s[60:61], s[70:71], 32
    v_lshrrev_b32 v1, 6, v0
    v_and_b32 v0, 63, v0
    s_nop 0
    v_readfirstlane_b32 s{sW}, v1
    v_lshrrev_b32 v3, 4, v0
    v_and_b32 v4, 15, v0
    """)
    if not opt.get("rot",1): g.e(f"s_mov_b32 s{sPHI}, 0")
    for j in range(4):
        g.e(f"""
        v_add_u32 v5, {4*(j&1)}, v3
        v_lshlrev_b32 v5, 1, v5
        v_xor_b32 v5, v5, v4
        v_lshlrev_b32 v5, 4, v5
        v_lshl_add_u32 v5, v3, 11, v5
        v_add_u32 v{vWD+j}, {4*j*2048-1024*j}, v5
        """)
    g.e(f"""
    v_lshrrev_b32 v5, 2, v4              ; rp
    v_and_b32 v6, 3, v0                  ; c
    v_and_b32 v7, 1, v3
    v_lshl_add_u32 v7, v7, 2, v5         ; 4(g&1)+rp
    v_lshlrev_b32 v7, 1, v7
    v_lshrrev_b32 v1, 1, v6
    v_xor_b32 v7, v7, v1
    v_lshlrev_b32 v7, 4, v7
    v_and_b32 v1, 1, v6
    v_lshl_or_b32 v7, v1, 3, v7
    v_lshl_add_u32 v1, v3, 2, v5         ; 4g+rp
    v_lshl_add_u32 v7, v1, 8, v7
    """)
    for dt in range(8):
        g.e(f"v_xor_b32 v{vVR+dt}, {dt<<5}, v7")
    g.e(f"""
    v_lshlrev_b32 v{vOS}, 4, v0
    v_lshlrev_b32 v5, 3, v3
    v_lshl_add_u32 v{vST}, v4, 12, v5
    s_waitcnt lgkmcnt(0)
    """)
    srd(g,S_WO,60,61,8*1024*1024)
    srd(g,S_WON,60,61,8*1024*1024)
    srd(g,S_O,68,69,16*1024*1024)
    srd(g,S_ON,68,69,16*1024*1024)
    srd(g,S_OUT,64,65,4*1024*1024)
    if opt.get("stamps"):
        g.e(f"s_add_u32 s98, s68, {33*1024*1024}\ns_addc_u32 s99, s69, 0\ns_mov_b32 s72, s98\ns_mov_b32 s73, s99\ns_lshl_b32 s98, s2, 7")
    g.e(f"""
    s_lshl_b32 s{sWOFF}, s{sW}, 12
    s_mul_i32 s{sT0}, s{sKH}, {NCH*64*2048}
    s_lshl_b32 s{sT1}, s{sW}, 15
    s_add_u32 s{sWB}, s{sT0}, s{sT1}
    s_lshl_b32 s{sT0}, s{sCB}, 8
    s_add_u32 s{sWB}, s{sWB}, s{sT0}
    s_lshl_b32 s{sT0}, s{sRB}, 3
    s_lshl_b32 s{sT1}, s{sW}, 1
    s_add_u32 s{sT0}, s{sT0}, s{sT1}
    s_lshl_b32 s{sOB0}, s{sT0}, 17
    s_lshl_b32 s{sT1}, s{sBR}, 23
    s_add_u32 s{sOB0}, s{sOB0}, s{sT1}
    s_mul_i32 s{sT1}, s{sKH}, {NCH*2048}
    s_add_u32 s{sOB0}, s{sOB0}, s{sT1}
    s_add_u32 s{sOB1}, s{sOB0}, 0x20000
    s_lshl_b32 s{sOUTB}, s{sT0}, 16
    s_lshl_b32 s{sT1}, s{sBR}, 11
    s_add_u32 s{sOUTB}, s{sOUTB}, s{sT1}
    s_lshl_b32 s{sT1}, s{sCB}, 8
    s_add_u32 s{sOUTB}, s{sOUTB}, s{sT1}
    """)
    stamp(g,opt,0,72)
    NTO=opt.get("nt_wo","")
    def cidx(jexpr_reg,add,dst,shift):
        g.e(f"""s_add_u32 s{sT0}, s{jexpr_reg}, {add}
        s_add_u32 s{sT1}, s{sT0}, s{sPHI}
        s_and_b32 s{sT1}, s{sT1}, 7
        s_andn2_b32 s{sT0}, s{sT0}, 7
        s_or_b32 s{sT0}, s{sT0}, s{sT1}
        s_lshl_b32 s{dst}, s{sT0}, {shift}""")
    def wo_dma(add,slot,srdn):
        cidx(sJ,add,sKW,17)
        g.e(f"s_add_u32 m0, s{sWOFF}, {slot*16384}\ns_add_u32 s{sKW}, s{sKW}, s{sWB}")
        for j in range(4):
            g.e(f"buffer_load_dwordx4 v{vWD+j}, {sr(srdn)}, s{sKW} offen offset:{1024*j}{NTO} lds")
    def o_load(add,st,srdn):
        cidx(sJ,add,sKO,11)
        g.e(f"s_add_u32 s{sT0}, s{sKO}, s{sOB0}\ns_add_u32 s{sT1}, s{sKO}, s{sOB1}")
        for rt in range(2):
            for js in range(2):
                r=OF+st*16+(rt*2+js)*4
                g.e(f"buffer_load_dwordx4 {vr(r)}, v{vOS}, {sr(srdn)}, s{sT0 if rt==0 else sT1} offen offset:{js*1024}")
    def a_read(st,slot,js,nt,hf):
        r=64*st+(js*8+nt)*4+2*hf
        g.lgop(f"ds_read_b64_tr_b16 a[{r}:{r+1}], v{vVR+nt} offset:{slot*16384+js*8192+hf*4096}",('A',st))
    g.e(f"s_mov_b32 s{sJ}, 0")
    wo_dma(0,0,S_WO)
    wo_dma(1,1,S_WO); o_load(0,0,S_O)
    wo_dma(2,2,S_WO); o_load(1,1,S_O)
    wo_dma(3,3,S_WO); o_load(2,2,S_O)
    g.e("s_waitcnt vmcnt(24)\ns_barrier")
    for js in range(2):
        for nt in range(8):
            for hf in range(2): a_read(0,0,js,nt,hf)
    for r in range(64): g.e(f"v_mov_b32 v{ACC+r}, 0")
    g.label("K2_LOOP")
    for u in range(4):
        g.e("s_waitcnt vmcnt(16)")
        g.lgwait_all()
        g.e("s_barrier")
        F=[]
        def issue(u=u):
            g.e(f"s_add_u32 s{sT0}, s{sJ}, {u+4}\ns_cmp_lt_u32 s{sT0}, {NCH}\ns_cselect_b32 s{S_WON+2}, 0x800000, 0")
            wo_dma(u+4,u,S_WON)
        def issue2(u=u):
            g.e(f"s_add_u32 s{sT0}, s{sJ}, {u+3}\ns_cmp_lt_u32 s{sT0}, {NCH}\ns_cselect_b32 s{S_ON+2}, 0x1000000, 0")
            o_load(u+3,(u+3)&3,S_ON)
        F.append(issue); F.append(issue2)
        for js in range(2):
            for nt in range(8):
                for hf in range(2):
                    F.append(lambda js=js,nt=nt,hf=hf,u=u: a_read((u+1)&1,(u+1)&3,js,nt,hf))
        M=[]
        for js in range(2):
            for nt in range(8):
                for rt in range(2):
                    d=ACC+(rt*8+nt)*4
                    M.append(f"v_mfma_f32_16x16x32_bf16 {vr(d)}, {ar(64*(u&1)+(js*8+nt)*4)}, {vr(OF+u*16+(rt*2+js)*4)}, {vr(d)}")
        interleave(g,M,F)
    g.e(f"s_add_u32 s{sJ}, s{sJ}, 4\ns_cmp_lt_u32 s{sJ}, {NCH}\ns_cbranch_scc1 K2_LOOP")
    g.lgwait_all()
    stamp(g,opt,1,72)
    g.e("s_nop 7")
    assert KS==1
    for rt in range(2):
        if rt==1: g.e(f"s_add_u32 s{sOUTB}, s{sOUTB}, 0x10000")
        for nt in range(8):
            d=ACC+(rt*8+nt)*4
            g.e(f"""v_cvt_pk_bf16_f32 v{d}, v{d}, v{d+1}
            v_cvt_pk_bf16_f32 v{d+1}, v{d+2}, v{d+3}
            buffer_store_dwordx2 v[{d}:{d+1}], v{vST}, {sr(S_OUT)}, s{sOUTB} offen offset:{nt*32}""")
    stamp(g,opt,2,72)
    g.label("K2_END")
    g.e("s_endpgm")
    return g.text()

def desc(name,vgpr,accum):
    return f""".section .rodata,"a"
.p2align 6
.amdhsa_kernel {name}
  .amdhsa_next_free_vgpr {vgpr}
  .amdhsa_next_free_sgpr 102
  .amdhsa_accum_offset {accum}
  .amdhsa_group_segment_fixed_size 0
  .amdhsa_kernarg_size 104
  .amdhsa_user_sgpr_count 2
  .amdhsa_user_sgpr_kernarg_segment_ptr 1
  .amdhsa_system_sgpr_workgroup_id_x 1
.end_amdhsa_kernel
"""
def head(name):
    return f".text\n.globl {name}\n.p2align 8\n.type {name},@function\n{name}:\n"

def build(opt):
    ks=opt.get("ksplit",1)
    s=f"; @launch kernel=qattn_kernel grid=(256,1,1) block=(256,1,1) lds=163840\n"
    s+=f"; @launch kernel=oproj_kernel grid=({128*ks},1,1) block=(256,1,1) lds=65536\n"
    s+='.amdgcn_target "amdgcn-amd-amdhsa--gfx950"\n'
    s+=head("qattn_kernel")+gen_k1(opt)
    s+=head("oproj_kernel")+gen_k2(opt)
    s+=desc("qattn_kernel",512,256)+desc("oproj_kernel",320,192)
    return s

if __name__=="__main__":
    import json
    opt=json.loads(sys.argv[2]) if len(sys.argv)>2 else {}
    open(sys.argv[1],"w").write(build(opt))
```

```python
class G:
    def __init__(self):
        self.L=[]; self.vm=[]; self.lg=[]; self.nl=0
    def e(self,s):
        for l in s.strip("\n").split("\n"):
            l=l.strip()
            if l: self.L.append(l if l.endswith(":") else " "+l)
    def label(self,n): self.L.append(n+":")
    def vmop(self,s,tag):
        self.e(s); self.vm.append(tag)
    def lgop(self,s,tag):
        self.e(s); self.lg.append(tag)
    def _need(self,q,tags):
        if not isinstance(tags,list): tags=[tags]
        idx=-1
        for i,t in enumerate(q):
            if t in tags: idx=i
        return idx
    def vmwait(self,tags):
        idx=self._need(self.vm,tags)
        if idx<0: return
        n=len(self.vm)-1-idx
        self.e(f"s_waitcnt vmcnt({min(n,63)})")
        keep=min(n,63)
        self.vm=self.vm[len(self.vm)-keep:] if keep>0 else []
    def lgwait(self,tags):
        idx=self._need(self.lg,tags)
        if idx<0: return
        n=len(self.lg)-1-idx
        keep=min(n,15)
        self.e(f"s_waitcnt lgkmcnt({keep})")
        self.lg=self.lg[len(self.lg)-keep:] if keep>0 else []
    def lgwait_all(self):
        self.e("s_waitcnt lgkmcnt(0)"); self.lg=[]
    def text(self): return "\n".join(self.L)+"\n"

def interleave(g, mfmas, fillers, start=0):
    n=len(mfmas); m=len(fillers)
    slots=n-start
    fi=0
    for i,mf in enumerate(mfmas):
        if callable(mf): mf()
        else: g.e(mf)
        if i>=start:
            want=((i-start+1)*m + slots-1)//slots if slots>0 else m
            while fi<min(want,m):
                fillers[fi](); fi+=1
    while fi<m:
        fillers[fi](); fi+=1

def vr(b,n=4): return f"v[{b}:{b+n-1}]"
def ar(b,n=4): return f"a[{b}:{b+n-1}]"
def sr(b,n=4): return f"s[{b}:{b+n-1}]"

def sched(g, mfmas, items):
    items=sorted(enumerate(items), key=lambda t:(t[1][0],t[0]))
    k=0
    while k<len(items) and items[k][1][0]<0:
        items[k][1][1](); k+=1
    for i,mf in enumerate(mfmas):
        if callable(mf): mf()
        else: g.e(mf)
        while k<len(items) and items[k][1][0]<i+1:
            items[k][1][1](); k+=1
    while k<len(items):
        items[k][1][1](); k+=1
def spread(fns, lo, hi):
    n=len(fns)
    return [(lo+(hi-lo)*(i+0.5)/n, f) for i,f in enumerate(fns)]

class Gaps:
    def __init__(self,n):
        self.n=n; self.mem=[None]*n; self.pre=[[] for _ in range(n)]; self.post=[[] for _ in range(n)]
    def free_mem(self,pos,lo=0,hi=None):
        hi=self.n if hi is None else hi
        p=max(int(pos),lo)
        q=p
        while q<hi and self.mem[q] is not None: q+=1
        if q<hi: return q
        q=p
        while q>=lo and self.mem[min(q,self.n-1)] is not None: q-=1
        if q>=lo: return q
        return None
    def put_mem(self,pos,fn,lo=0,hi=None):
        q=self.free_mem(pos,lo,hi)
        if q is None:
            q=min(int(pos),self.n-1)
            self.post[q].append(fn); return q
        self.mem[q]=fn; return q
    def put_pre(self,gap,fn):
        self.pre[gap].append(fn)
    def put_post(self,gap,fn):
        self.post[gap].append(fn)
    def emit(self,g,mfmas):
        assert len(mfmas)==self.n
        for i,m in enumerate(mfmas):
            g.e(m) if not callable(m) else m()
            for f in self.pre[i]: f()
            if self.mem[i]: self.mem[i]()
            for f in self.post[i]: f()
```

```python
import sys, struct, math, json
from gl import *
KN="concat_heads__mha_block_cached__mha_block_cached__near_ridge_kernel"
C_SCALE=struct.unpack("<I",struct.pack("<f",math.log2(math.e)/math.sqrt(128.0)))[0]
NT=" nt"
K1=1024; MB=K1*K1
EXCH_OFF=16*MB; FLAG_OFF=24*MB+512*K1; STAMP_OFF=32*MB
SLOT=16384; LA=7; NPRE=5
WQ_AREA=[128*K1,80*K1,96*K1]; WQ_RB=80*K1
X_AREA=[144*K1,112*K1]; X_RB=112*K1
WO_AREA=[128*K1,144*K1,96*K1,112*K1]; WO_RB=96*K1

def gen(opt):
    global NT
    NT=opt.get('nt_kv',' nt')
    g=G()
    S=lambda txt: (lambda: g.e(txt))
    sPS=4;sPB=5;sPRE=6;sPA=7;sSIG=3
    S_X=8;S_WQ=12;S_K=16;S_V=20;S_KN=24;S_O=28;S_WO=32;S_OUT=36;S_KP=40
    sW=44;sBR=45;sG=46;sBP=47;sHP=48;sCB=49;sPHI=50
    sXB=51
    sWQB=53;sKX=54;sKW=55;sXT=56;sWT=57;sT0=58;sT1=59
    sCUR=60;sNXT=61;sITEM=62;sOB=63;sC=64;sWOFF=65;sXL=66
    sMASK=68
    sSEQ=72;sOPC=73;sNEXT=74;sQP=75;sOP=76;sNONCE=77;sCNT=78
    sWOB=79;sOOB=80;sKWO=81;sKO=82;sWLO=83;sOLO=84;sOUTB=85;sEXW=86;sEXR=87;sSEGN=89
    sWS=90; sDBG=92; sSTB=94
    vKD=8; vVD=12; vKR=14; vVR=22; vOS=38; vOS1=39; vWOD=40; vXD=44; vWD=46; vPA=50; vPV=51
    vXR=52; vWR=54; vWOR=54; TA=52
    QF=64; ACC=128
    OA=128; LAcc=160; ONES=168; QCUR=172; OACC=192
    NTX=opt.get("nt_x",""); NTW=opt.get("nt_wq",""); NTO=opt.get("nt_wo",""); NTOO=opt.get("nt_o"," sc1"); STO=opt.get("st_o"," sc1")
    def stamp():
        if not opt.get("stamps"): return
        g.e(f"""
        s_memrealtime s[96:97]
        s_memtime s[98:99]
        s_waitcnt lgkmcnt(0)
        v_mov_b32 v2, s96
        v_mov_b32 v3, s98
        s_lshl_b32 s96, s2, 7
        s_lshl_b32 s97, s{sSEGN}, 3
        s_add_u32 s96, s96, s97
        v_mov_b32 v1, s96
        global_store_dwordx2 v1, v[2:3], s[{sSTB}:{sSTB+1}]
        s_add_u32 s{sSEGN}, s{sSEGN}, 1
        """)
        g.lg=[]
    def tick(k):
        if opt.get("steps"):
            g.e(f"s_memtime s[96:97]\ns_waitcnt lgkmcnt(0)\nv_writelane_b32 v62, s96, {k}"); g.lg=[]
    def tick_store():
        if opt.get("steps"):
            g.e(f"s_lshl_b32 s96, s2, 12\ns_lshl_b32 s97, s{sSEGN}, 8\ns_add_u32 s96, s96, s97\ns_add_u32 s96, s96, {MB}\nv_lshlrev_b32 v1, 2, v0\nv_add_u32 v1, s96, v1\nglobal_store_dword v1, v62, s[{sSTB}:{sSTB+1}]")
    def q_addr():
        g.e(f"""
        v_lshrrev_b32 v3, 4, v0
        v_and_b32 v4, 15, v0
        v_lshrrev_b32 v5, 1, v4
        v_xor_b32 v5, v5, v3
        v_lshlrev_b32 v5, 4, v5
        v_lshl_add_u32 v5, v4, 7, v5
        v_add_u32 v{vXR}, s{sXL}, v5
        v_xor_b32 v{vXR+1}, 64, v{vXR}
        v_lshrrev_b32 v5, 2, v4              ; rp
        v_and_b32 v6, 3, v0                  ; c
        v_and_b32 v7, 1, v5
        v_and_b32 v1, 2, v5
        v_lshl_or_b32 v7, v1, 1, v7
        v_and_b32 v1, 1, v3
        v_lshl_or_b32 v7, v1, 3, v7          ; f
        v_xor_b32 v7, v7, v6                 ; c ^ f
        v_lshlrev_b32 v7, 4, v7
        v_and_b32 v1, 1, v6
        v_lshl_or_b32 v7, v1, 3, v7          ; + 8*(c&1)
        v_lshl_add_u32 v1, v3, 3, v5         ; 8kg+rp
        v_lshl_add_u32 v7, v1, 8, v7
        v_add_u32 v7, {WQ_RB}, v7
        """)
        for dt in range(8):
            t,u=dt>>1,dt&1
            g.e(f"v_xor_b32 v{vWR+dt}, {(t<<6)^(u<<3)}, v7")
    def o_addr():
        g.e(f"s_lshl_b32 s{sT0}, s{sG}, 7")
        for dt in range(8): g.e(f"v_xor_b32 v{vWOR+dt}, s{sT0}, v{vVR+dt}\nv_add_u32 v{vWOR+dt}, {WO_RB}, v{vWOR+dt}")
    g.e(f"""
    s_cmp_ge_u32 s2, 256
    s_cbranch_scc1 L_END
    s_load_dwordx4 s[96:99], s[0:1], 80
    s_load_dwordx2 s[{sWS}:{sWS+1}], s[0:1], 96
    s_and_b32 s3, s2, 7                          ; xcd
    s_lshr_b32 s4, s2, 3                         ; idx
    s_lshr_b32 s{sBR}, s3, 2
    s_and_b32 s3, s3, 3                          ; xq
    s_lshr_b32 s{sG}, s4, 4
    s_and_b32 s5, s3, 1
    s_lshl_b32 s5, s5, 2
    s_and_b32 s6, s4, 3
    s_add_u32 s{sBP}, s5, s6
    s_lshr_b32 s7, s4, 2
    s_and_b32 s7, s7, 3                          ; hq
    s_lshr_b32 s5, s3, 1
    s_lshl_b32 s5, s5, 2
    s_add_u32 s{sCB}, s5, s7
    s_lshl_b32 s5, s{sG}, 3
    s_add_u32 s{sHP}, s{sCB}, s5
    s_add_u32 s{sPHI}, s6, s7
    s_and_b32 s{sPHI}, s{sPHI}, 3
    s_lshl_b32 s{sPHI}, s{sPHI}, 2
    s_mul_i32 s5, s{sBR}, 40
    s_add_u32 s4, s0, s5
    s_addc_u32 s5, s1, 0
    s_load_dwordx4 s[8:11], s[4:5], 0            ; x, k
    s_load_dwordx4 s[12:15], s[4:5], 16          ; v, wq
    s_load_dwordx2 s[16:17], s[4:5], 32          ; wo
    v_lshrrev_b32 v1, 6, v0
    v_and_b32 v0, 63, v0
    s_nop 0
    v_readfirstlane_b32 s{sW}, v1
    """)
    if not opt.get("rot",1): g.e(f"s_mov_b32 s{sPHI}, 0")
    g.e(f"""
    v_lshrrev_b32 v1, 3, v0              ; r8
    v_and_b32 v2, 7, v0                  ; p8
    v_lshrrev_b32 v3, 4, v0              ; rr / g
    v_and_b32 v4, 15, v0                 ; p16 / q / key
    v_xor_b32 v5, v2, v3
    v_lshlrev_b32 v5, 4, v5
    v_lshl_add_u32 v{vXD}, v1, 11, v5
    v_xor_b32 v5, 64, v5
    v_lshl_add_u32 v5, v1, 11, v5
    v_add_u32 v{vXD+1}, {8*2048-1024}, v5
    v_and_b32 v5, 1, v3
    v_and_b32 v6, 2, v3
    v_lshl_or_b32 v5, v6, 1, v5          ; f0
    v_xor_b32 v5, v5, v4                 ; p ^ f0
    """)
    for j in range(4):
        g.e(f"""
        v_xor_b32 v6, {8*(j>>1)}, v5
        v_lshlrev_b32 v6, 4, v6
        v_lshl_add_u32 v6, v3, 13, v6
        v_add_u32 v{vWD+j}, {4*j*8192-1024*j}, v6
        """)
    for j in range(4):
        g.e(f"""
        v_add_u32 v5, {4*(j&1)}, v3
        v_lshlrev_b32 v5, 1, v5
        v_xor_b32 v5, v5, v4
        v_lshlrev_b32 v5, 4, v5
        v_lshl_add_u32 v5, v3, 11, v5
        v_add_u32 v{vWOD+j}, {4*j*2048-1024*j}, v5
        """)
    g.e(f"s_lshl_b32 s{sXL}, s{sW}, 12\ns_add_u32 s{sXL}, s{sXL}, {X_RB}")
    g.e(f"""
    v_and_b32 v56, 7, v0
    v_lshrrev_b32 v57, 2, v56
    v_lshlrev_b32 v57, 1, v57
    v_and_b32 v58, 3, v56
    v_lshlrev_b32 v58, 2, v58
    s_and_b32 s{sT0}, s{sBP}, 3
    s_lshl_b32 s{sT1}, s{sG}, 4
    s_add_u32 s{sT0}, s{sT0}, s{sT1}
    v_add_u32 v58, s{sT0}, v58
    s_lshr_b32 s{sT0}, s{sBP}, 2
    s_lshl_b32 s{sT1}, s{sBR}, 2
    s_add_u32 s{sT0}, s{sT0}, s{sT1}
    v_add_u32 v57, s{sT0}, v57
    v_lshl_add_u32 v57, v58, 3, v57
    v_lshlrev_b32 v57, 7, v57
    v_add_u32 v{vPA}, {FLAG_OFF}, v57
    """)
    for j in range(4):
        g.e(f"""
        v_add_u32 v5, {4*j}, v3
        v_xor_b32 v5, v5, v4
        v_lshlrev_b32 v5, 4, v5
        v_lshl_add_u32 v{vKD+j}, v3, 8, v5
        """)
    g.e(f"""
    v_xor_b32 v5, v3, v4
    v_lshlrev_b32 v5, 4, v5
    v_lshl_add_u32 v5, v4, 8, v5
    """)
    for t in range(4): g.e(f"v_xor_b32 v{vKR+t}, {t<<6}, v5\nv_add_u32 v{vKR+4+t}, 0x10000, v{vKR+t}")
    for jp in range(2):
        g.e(f"""
        v_add_u32 v5, {4*jp}, v3
        v_lshlrev_b32 v5, 1, v5
        v_xor_b32 v5, v5, v4
        v_lshlrev_b32 v5, 4, v5
        v_lshl_add_u32 v{vVD+jp}, v3, 8, v5
        """)
    g.e(f"""
    v_lshrrev_b32 v5, 2, v4              ; rp
    v_and_b32 v6, 3, v0                  ; c
    v_and_b32 v7, 1, v3
    v_lshl_add_u32 v7, v7, 2, v5         ; 4(g&1)+rp
    v_lshlrev_b32 v7, 1, v7
    v_lshrrev_b32 v1, 1, v6
    v_xor_b32 v7, v7, v1
    v_lshlrev_b32 v7, 4, v7
    v_and_b32 v1, 1, v6
    v_lshl_or_b32 v7, v1, 3, v7
    v_lshl_add_u32 v1, v3, 2, v5         ; 4g+rp
    v_lshl_add_u32 v7, v1, 8, v7
    """)
    for dt in range(8): g.e(f"v_xor_b32 v{vVR+dt}, {dt<<5}, v7\nv_add_u32 v{vVR+8+dt}, 0x10000, v{vVR+dt}")
    g.e(f"v_lshlrev_b32 v{vOS}, 4, v0\nv_add_u32 v{vOS1}, 0x20000, v{vOS}\nv_mov_b32 v1, 0x3f803f80")
    for r in range(4): g.e(f"v_accvgpr_write_b32 a{ONES+r}, v1")
    g.e("v_mov_b32 v1, 0")
    for r in range(64): g.e(f"v_accvgpr_write_b32 a{OACC+r}, v1")
    g.e("s_waitcnt lgkmcnt(0)")
    def mk(s,lo,hi,size): g.e(f"s_mov_b32 s{s}, s{lo}\ns_and_b32 s{s+1}, s{hi}, 0xffff\ns_mov_b32 s{s+2}, {size}\ns_mov_b32 s{s+3}, 0x20000")
    g.e(f"s_mov_b32 s{sDBG}, s98\ns_mov_b32 s{sDBG+1}, s99")
    mk(S_OUT,96,97,4*MB); mk(S_WO,16,17,8*MB); mk(S_V,12,13,64*MB)
    mk(S_K,10,11,64*MB); mk(S_KN,10,11,64*MB); mk(S_KP,10,11,64*MB)
    g.e(f"s_mov_b32 s4, s14\ns_mov_b32 s5, s15\ns_and_b32 s{S_X+1}, s9, 0xffff\ns_mov_b32 s{S_X+2}, {2*MB}\ns_mov_b32 s{S_X+3}, 0x20000")
    mk(S_WQ,4,5,8*MB); mk(S_O,sWS,sWS+1,32*MB)
    g.e(f"""
    s_add_u32 s{sSTB}, s{sWS}, {STAMP_OFF}
    s_addc_u32 s{sSTB+1}, s{sWS+1}, 0
    s_mov_b32 s{sSEGN}, 0
    s_lshl_b32 s{sWOFF}, s{sW}, 12
    s_mov_b32 s{sC}, {C_SCALE}
    s_mov_b32 s{sMASK}, 0xffff0000
    s_mov_b32 s{sMASK+1}, 0xffff0000
    s_lshl_b32 s{sT0}, s{sBP}, 18
    s_lshl_b32 s{sT1}, s{sW}, 15
    s_add_u32 s{sXB}, s{sT0}, s{sT1}
    s_add_u32 s{sXB+1}, s{sXB}, 0x20000
    s_lshl_b32 s{sT0}, s{sW}, 17
    s_lshl_b32 s{sT1}, s{sHP}, 8
    s_add_u32 s{sWQB}, s{sT0}, s{sT1}
    s_lshl_b32 s{sT0}, s{sBP}, 23
    s_lshl_b32 s{sT1}, s{sHP}, 17
    s_add_u32 s{sCUR}, s{sT0}, s{sT1}
    s_add_u32 s{sCUR}, s{sCUR}, s{sWOFF}
    s_add_u32 s{sNXT}, s{sCUR}, 0x400000
    s_lshl_b32 s{sT0}, s{sBR}, 23
    s_lshl_b32 s{sT1}, s{sBP}, 20
    s_add_u32 s{sOB}, s{sT0}, s{sT1}
    s_lshl_b32 s{sT0}, s{sW}, 17
    s_add_u32 s{sOB}, s{sOB}, s{sT0}
    s_lshl_b32 s{sT0}, s{sHP}, 12
    s_add_u32 s{sOB}, s{sOB}, s{sT0}
    s_lshl_b32 s{sT0}, s{sG}, 21
    s_lshl_b32 s{sT1}, s{sW}, 15
    s_add_u32 s{sWOB}, s{sT0}, s{sT1}
    s_lshl_b32 s{sT0}, s{sCB}, 8
    s_add_u32 s{sWOB}, s{sWOB}, s{sT0}
    s_lshl_b32 s{sT0}, s{sBP}, 3
    s_lshl_b32 s{sT1}, s{sW}, 1
    s_add_u32 s{sT0}, s{sT0}, s{sT1}            ; 8rb+2w
    s_lshl_b32 s{sOUTB}, s{sT0}, 16
    s_lshl_b32 s{sOOB}, s{sT0}, 17
    s_lshl_b32 s{sT1}, s{sBR}, 23
    s_add_u32 s{sOOB}, s{sOOB}, s{sT1}
    s_lshl_b32 s{sT1}, s{sG}, 15
    s_add_u32 s{sOOB}, s{sOOB}, s{sT1}
    s_lshl_b32 s{sT1}, s{sBR}, 11
    s_add_u32 s{sOUTB}, s{sOUTB}, s{sT1}
    s_lshl_b32 s{sT1}, s{sCB}, 8
    s_add_u32 s{sOUTB}, s{sOUTB}, s{sT1}
    s_lshl_b32 s{sT1}, s{sG}, 7
    s_add_u32 s{sOUTB}, s{sOUTB}, s{sT1}
    s_lshl_b32 s{sT1}, s{sW}, 13
    s_lshl_b32 s{sEXW}, s2, 15
    s_add_u32 s{sEXW}, s{sEXW}, s{sT1}
    s_add_u32 s{sEXW}, s{sEXW}, {EXCH_OFF}
    s_xor_b32 s{sEXR}, s2, 128
    s_lshl_b32 s{sEXR}, s{sEXR}, 15
    s_add_u32 s{sEXR}, s{sEXR}, s{sT1}
    s_add_u32 s{sEXR}, s{sEXR}, {EXCH_OFF}
    s_mov_b32 s{sITEM}, 0
    s_mov_b32 s{sQP}, 0
    s_mov_b32 s{sOP}, 0
    s_mov_b32 s{sNONCE}, 0
    s_mov_b32 s{sPRE}, 0
    s_mov_b32 s{sPA}, 0
    s_mov_b32 s{sSIG}, 0
    s_mov_b32 s4, {opt['seq1']}
    s_cmp_eq_u32 s{sG}, 0
    s_cselect_b32 s{sSEQ}, {opt['seq0']}, s4
    s_cmp_lg_u32 s{sW}, 0
    s_cbranch_scc1 L_NONCE_DONE
    s_memrealtime s[96:97]
    s_waitcnt lgkmcnt(0)
    s_or_b32 s96, s96, 1
    v_mov_b32 v4, s96
    v_mov_b32 v5, 0
    v_accvgpr_write_b32 a164, v4
    v_accvgpr_write_b32 a165, v5
    s_mov_b64 exec, 1
    global_atomic_cmpswap a166, v5, a[164:165], s[{sDBG}:{sDBG+1}] sc0
    s_mov_b64 exec, -1
    L_NONCE_DONE:
    """)
    stamp()
    g.label("L_DISP")
    g.e(f"""
    s_and_b32 s{sOPC}, s{sSEQ}, 15
    s_lshr_b32 s{sSEQ}, s{sSEQ}, 4
    s_and_b32 s{sNEXT}, s{sSEQ}, 15
    s_cmp_eq_u32 s{sNEXT}, 2
    s_cselect_b32 s{S_KP+2}, {64*MB}, 0
    s_cselect_b32 s{S_KN+2}, {64*MB}, 0
    s_cmp_eq_u32 s{sOPC}, 1
    s_cbranch_scc1 L_SEG_Q
    s_cmp_eq_u32 s{sOPC}, 2
    s_cbranch_scc1 L_SEG_A
    s_cmp_eq_u32 s{sOPC}, 3
    s_cbranch_scc1 L_SEG_O
    s_branch L_SEG_X
    """)
    def get_nonce(tag):
        g.e(f"""
        s_cmp_lg_u32 s{sNONCE}, 0
        s_cbranch_scc1 L_HN{tag}
        v_accvgpr_read_b32 v1, a166
        v_accvgpr_read_b32 v3, a164
        s_nop 0
        v_readfirstlane_b32 s{sT0}, v1
        v_readfirstlane_b32 s{sT1}, v3
        s_nop 3
        s_cmp_eq_u32 s{sT0}, 0
        s_cselect_b32 s{sNONCE}, s{sT1}, s{sT0}
        L_HN{tag}:
        """)
    def flag_store(off):
        g.e(f"""
        s_lshl_b32 s{sT0}, s2, 7
        s_add_u32 s{sT0}, s{sT0}, {FLAG_OFF}
        s_add_u32 s{sT0}, s{sT0}, {off}
        v_mov_b32 v1, s{sT0}
        v_mov_b32 v3, s{sNONCE}
        s_mov_b64 exec, 1
        global_store_dword v1, v3, s[{sWS}:{sWS+1}] sc1
        s_mov_b64 exec, -1
        """)
    nsig=[0]
    def pending_signal():
        nsig[0]+=1; n=nsig[0]
        g.e(f"""
        s_cmp_eq_u32 s{sSIG}, 0
        s_cbranch_scc1 L_SG{n}
        s_cmp_lg_u32 s{sW}, 0
        s_cbranch_scc1 L_SGX{n}
        s_sub_u32 s{sCNT}, s{sSIG}, 1
        s_lshl_b32 s{sCNT}, s{sCNT}, 2
        """)
        flag_store(f"s{sCNT}")
        g.e(f"L_SGX{n}:\ns_mov_b32 s{sSIG}, 0\nL_SG{n}:")
    def prefill_items(G_,chunks,gaps):
        per=gaps//len(chunks)
        for h_,c in enumerate(chunks):
            base=h_*per
            G_.put_post(base,S(f"s_add_u32 s{sPB}, s{sCUR}, {c*16384}"))
            G_.put_post(base+1,S(f"s_add_u32 m0, s{sWOFF}, {c*SLOT}"))
            step=max(1,(per-2)//4)
            for j in range(4):
                p=base+2+j*step
                assert G_.mem[p] is None
                G_.mem[p]=(lambda c=c,j=j: g.vmop(f"buffer_load_dwordx4 v{vKD+j}, {sr(S_KP)}, s{sPB} offen offset:{1024*j}{NT} lds",('kp',c)))
    def wq_group(s,track):
        g.e(f"s_add_u32 s{sT1}, s{sPHI}, {s}\ns_and_b32 s{sT1}, s{sT1}, 15\ns_lshl_b32 s{sT1}, s{sT1}, 19\ns_add_u32 m0, s{sWOFF}, {WQ_AREA[s%3]}\ns_add_u32 s{sT1}, s{sT1}, s{sWQB}")
        for j in range(4):
            t=f"buffer_load_dwordx4 v{vWD+j}, {sr(S_WQ)}, s{sT1} offen offset:{1024*j}{NTW} lds"
            g.vmop(t,('wq',s)) if track else g.e(t)
    def x_group(s,track):
        g.e(f"s_add_u32 s{sKX}, s{sPHI}, {s}\ns_and_b32 s{sKX}, s{sKX}, 15\ns_lshl_b32 s{sKX}, s{sKX}, 7")
        for i in range(2):
            g.e(f"s_add_u32 m0, s{sWOFF}, {X_AREA[s&1]+i*2048}\ns_add_u32 s{sT1}, s{sXB+i}, s{sKX}")
            for j in range(2):
                t=f"buffer_load_dwordx4 v{vXD+j}, {sr(S_X)}, s{sT1} offen offset:{1024*j}{NTX} lds"
                g.vmop(t,('x',s,i)) if track else g.e(t)
    def wo_group(c,track):
        g.e(f"s_add_u32 s{sT1}, s{sPHI}, {c}\ns_and_b32 s{sT1}, s{sT1}, 15\ns_lshl_b32 s{sT1}, s{sT1}, 17\ns_add_u32 m0, s{sWOFF}, {WO_AREA[c&3]}\ns_add_u32 s{sT1}, s{sT1}, s{sWOB}")
        for j in range(4):
            t=f"buffer_load_dwordx4 v{vWOD+j}, {sr(S_WO)}, s{sT1} offen offset:{1024*j}{NTO} lds"
            g.vmop(t,('wo',c)) if track else g.e(t)
    g.label("L_SEG_Q")
    g.vm=[]; g.lg=[]
    q_addr()
    tick(40)
    def a_read(s,ks,dt,hf):
        r=64*(s&1)+(ks*8+dt)*4+2*hf
        g.lgop(f"ds_read_b64_tr_b16 a[{r}:{r+1}], v{vWR+dt} offset:{WQ_AREA[s%3]-WQ_RB+ks*8192+hf*1024}",('A',s,ks,dt))
    def b_read(s,i,ks):
        n=s*2+i
        r=128+(n&1)*8+ks*4
        g.lgop(f"ds_read_b128 a[{r}:{r+3}], v{vXR+ks} offset:{X_AREA[s&1]-X_RB+i*2048}",('B',s,i))
    g.e(f"s_barrier\ns_cmp_eq_u32 s{sPRE}, 1\ns_cbranch_scc1 L_Q_PRE")
    wq_group(0,True); x_group(0,True); wq_group(1,True); wq_group(2,True)
    g.label("L_Q_PRE")
    g.e(f"s_mov_b32 s{sPRE}, 0\ns_mov_b32 s{sPA}, 0")
    x_group(1,True)
    g.vmwait(('wq',0))
    g.e("s_barrier")
    AR=[(ks,dt,hf) for ks in range(2) for dt in range(8) for hf in range(2)]
    for (ks,dt,hf) in AR: a_read(0,ks,dt,hf)
    g.vmwait(('x',0,0))
    b_read(0,0,0); b_read(0,0,1)
    g.e(f"""s_add_u32 s{sT0}, s{sPHI}, 2
    s_and_b32 s{sT0}, s{sT0}, 15
    s_lshl_b32 s{sKX}, s{sT0}, 7
    s_add_u32 s{sT0}, s{sPHI}, 3
    s_and_b32 s{sT0}, s{sT0}, 15
    s_lshl_b32 s{sKW}, s{sT0}, 19""")
    for s in range(16):
        if s+1<16: g.vmwait(('wq',s+1))
        g.lgwait([('A',s,ks,dt) for ks in range(2) for dt in range(8)])
        g.e("s_barrier")
        if s==1: pending_signal()
        tick(s)
        G_=Gaps(32)
        dpos=opt.get("q_dpos",[3,7,11,15,19,22,26,29])
        if s+3<16:
            G_.put_post(dpos[0]-2,S(f"s_add_u32 s{sWT}, s{sWQB}, s{sKW}"))
            G_.put_post(dpos[0]-1,S(f"s_add_u32 m0, s{sWOFF}, {WQ_AREA[(s+3)%3]}"))
            for j in range(4):
                G_.mem[dpos[j]]=(lambda j=j,s=s: g.vmop(f"buffer_load_dwordx4 v{vWD+j}, {sr(S_WQ)}, s{sWT} offen offset:{1024*j}{NTW} lds",('wq',s+3)))
            G_.put_post(dpos[3],S(f"s_add_u32 s{sKW}, s{sKW}, {1<<19}"))
            G_.put_post(dpos[3]+1,S(f"s_and_b32 s{sKW}, s{sKW}, {15<<19}"))
        if s+2<16:
            for i in range(2):
                p=dpos[4+2*i]
                G_.put_post(p-2,S(f"s_add_u32 s{sXT}, s{sXB+i}, s{sKX}"))
                G_.put_post(p-1,S(f"s_add_u32 m0, s{sWOFF}, {X_AREA[s&1]+i*2048}"))
                for j in range(2):
                    G_.mem[dpos[4+2*i+j]]=(lambda j=j,s=s,i=i: g.vmop(f"buffer_load_dwordx4 v{vXD+j}, {sr(S_X)}, s{sXT} offen offset:{1024*j}{NTX} lds",('x',s+2,i)))
            G_.put_post(dpos[7],S(f"s_add_u32 s{sKX}, s{sKX}, 128"))
            G_.put_post(dpos[7]+1,S(f"s_and_b32 s{sKX}, s{sKX}, {15<<7}"))
        if s==14: prefill_items(G_,[0,1,2],30)
        if s==15: prefill_items(G_,[3,4],32)
        for i in range(2):
            nxt=(s,1) if i==0 else ((s+1,0) if s+1<16 else None)
            if nxt:
                q=G_.put_mem(16*i+opt.get("q_bpos",4),lambda nxt=nxt: b_read(nxt[0],nxt[1],0),lo=16*i,hi=16*i+16)
                G_.put_pre(q,lambda nxt=nxt: g.vmwait(('x',)+nxt))
                G_.put_mem(q+1,lambda nxt=nxt: b_read(nxt[0],nxt[1],1),lo=q+1,hi=16*i+16)
        if s+1<16:
            aend=opt.get("q_aend",26)
            for n_,(ks,dt,hf) in enumerate(AR):
                G_.put_mem(n_*aend/32.0,lambda ks=ks,dt=dt,hf=hf,s=s: a_read(s+1,ks,dt,hf),hi=30)
        M=[]
        for i in range(2):
            n=s*2+i
            for ks in range(2):
                for dt in range(8):
                    d=ACC+(i*8+dt)*4
                    txt=f"v_mfma_f32_16x16x32_bf16 {vr(d)}, {ar(64*(s&1)+(ks*8+dt)*4)}, {ar(128+(n&1)*8+ks*4)}, {'0' if (s==0 and ks==0) else vr(d)}"
                    if ks==0 and dt==0: M.append(lambda txt=txt,s=s,i=i: (g.lgwait(('B',s,i)), g.e(txt)))
                    else: M.append(txt)
        G_.emit(g,M)
    tick(16)
    g.e(f"s_nop 7\ns_cmp_eq_u32 s{sQP}, 0\ns_cbranch_scc0 L_QPACK1")
    for p in range(2):
        if p==1: g.label("L_QPACK1")
        for i in range(2):
            for t in range(4):
                bx=ACC+(i*8+2*t)*4; by=bx+4; F=QF+32*p+16*i+4*t
                g.e(f"""
                v_cvt_pk_bf16_f32 v56, v{bx}, v{bx+1}
                v_cvt_pk_bf16_f32 v57, v{bx+2}, v{bx+3}
                v_cvt_pk_bf16_f32 v58, v{by}, v{by+1}
                v_cvt_pk_bf16_f32 v59, v{by+2}, v{by+3}
                v_cndmask_b32 v{F}, v56, v58, s[{sMASK}:{sMASK+1}]
                v_cndmask_b32 v{F+1}, v57, v59, s[{sMASK}:{sMASK+1}]
                v_cndmask_b32 v{F+2}, v58, v56, s[{sMASK}:{sMASK+1}]
                v_cndmask_b32 v{F+3}, v59, v57, s[{sMASK}:{sMASK+1}]
                """)
        if p==0: g.e("s_branch L_QPACKD")
    g.label("L_QPACKD")
    g.e(f"s_cmp_lg_u32 s{sW}, 0\ns_cbranch_scc1 L_Q_NN")
    get_nonce("Q")
    g.label("L_Q_NN")
    g.e(f"s_add_u32 s{sQP}, s{sQP}, 1\ns_add_u32 s{sWQB}, s{sWQB}, {16*256}")
    tick(17); tick_store(); stamp()
    g.e("s_branch L_DISP")
    g.label("L_SEG_A")
    g.vm=[]; g.lg=[]
    tick(40)
    def kv_group(cc):
        if cc<8: srdn,base,vo,ch=S_K,sCUR,[vKD+j for j in range(4)],cc
        elif cc<16: srdn,base,vo,ch=S_V,sCUR,[vVD+(j&1) for j in range(4)],cc-8
        else: srdn,base,vo,ch=S_KN,sNXT,[vKD+j for j in range(4)],cc-16
        return (f"s_add_u32 m0, s{sWOFF}, {(cc&7)*SLOT}\ns_add_u32 s{sT1}, s{base}, {ch*16384}",
                [f"buffer_load_dwordx4 v{vo[j]}, {sr(srdn)}, s{sT1} offen offset:{1024*j}{NT} lds" for j in range(4)])
    g.e(f"s_cmp_eq_u32 s{sPA}, 1\ns_cbranch_scc1 L_A_PA\ns_barrier")
    for cc in range(NPRE,LA):
        h,dm=kv_group(cc); g.e(h)
        for l in dm: g.e(l)
    g.label("L_A_PA")
    for n in range(4):
        g.e(f"s_cmp_eq_u32 s{sITEM}, {n}\ns_cbranch_scc0 L_QC{n}")
        for r in range(16): g.e(f"v_accvgpr_write_b32 a{QCUR+r}, v{QF+16*n+r}")
        g.label(f"L_QC{n}")
    MX=4
    def pcalc(J):
        b=ACC+8*J
        L=[f"v_fma_f32 v{TA+r}, v{b+r}, s{sC}, -v4" for r in range(8)]
        L+=[f"v_exp_f32 v{TA+r}, v{TA+r}" for r in range(8)]
        L+=[f"v_cvt_pk_bf16_f32 v{ACC+4*J+r}, v{TA+2*r}, v{TA+2*r+1}" for r in range(4)]
        return L
    def reads(c):
        st=c&1; sl=c&7; hi=sl>=4; so=(sl&3)*SLOT; R=[]
        if c<8:
            for kt in range(4):
                for t in range(4):
                    R.append(lambda kt=kt,t=t: g.lgop(f"ds_read_b128 {ar(64*st+(kt*4+t)*4)}, v{vKR+(4 if hi else 0)+t} offset:{so+kt*4096}",('F',c,kt)))
        else:
            for js in range(2):
                for dt in range(8):
                    for hf in range(2):
                        r=64*st+(js*8+dt)*4+2*hf
                        R.append(lambda r=r,js=js,dt=dt,hf=hf: g.lgop(f"ds_read_b64_tr_b16 a[{r}:{r+1}], v{vVR+(8 if hi else 0)+dt} offset:{so+js*8192+hf*4096}",('F',c,js*8+dt)))
        return R
    g.e(f"s_waitcnt vmcnt({4*(LA-1)})\ns_barrier")
    for f in reads(0): f()
    for c in range(16):
        cc=c+LA
        if c<15: g.e(f"s_waitcnt vmcnt({4*(LA-2)})")
        g.e("s_barrier")
        if c==5: pending_signal()
        tick(c)
        dm=[]
        if cc<19:
            h,dl=kv_group(cc); g.e(h); dm=[(lambda l=l: g.e(l)) for l in dl]
        else:
            k=cc-19
            g.e(f"s_cmp_eq_u32 s{sNEXT}, 1\ns_cbranch_scc1 L_HQ{k}")
            if k!=2: g.e(f"s_cmp_eq_u32 s{sNEXT}, 3\ns_cbranch_scc1 L_HO{k}")
            h,dl=kv_group(cc); g.e(h)
            for l in dl: g.e(l)
            if k==2:
                g.e(f"""s_cmp_eq_u32 s{sNEXT}, 3
                s_cbranch_scc0 L_HJ{k}
                s_cmp_lg_u32 s{sW}, 0
                s_cbranch_scc1 L_HJ{k}
                s_lshl_b32 s{sT1}, s{sOP}, 2
                v_add_u32 v1, s{sT1}, v{vPA}
                s_mov_b64 exec, 0xff
                global_load_dword v{vPV}, v1, s[{sWS}:{sWS+1}] sc1
                s_mov_b64 exec, -1""")
            g.e(f"s_branch L_HJ{k}")
            g.label(f"L_HQ{k}")
            if k==0: wq_group(0,False)
            elif k==1: x_group(0,False)
            elif k==2: wq_group(1,False)
            else: wq_group(2,False)
            if k!=2:
                g.e(f"s_branch L_HJ{k}")
                g.label(f"L_HO{k}")
                wo_group({0:0,1:1,3:2}[k],False)
            g.label(f"L_HJ{k}")
        R=reads(c+1) if c<15 else []
        st=c&1; M=[]; VL=[]
        if c<8:
            for kt in range(4):
                T=4*c+kt; d=ACC+4*T
                for t in range(4):
                    txt=f"v_mfma_f32_16x16x32_bf16 {vr(d)}, {ar(64*st+(kt*4+t)*4)}, {ar(QCUR+4*t)}, {'0' if t==0 else vr(d)}"
                    M.append((lambda txt=txt,kt=kt,c=c: (g.lgwait(('F',c,kt)), g.e(txt))) if t==0 else txt)
            if c>0:
                for kt in range(4):
                    b=ACC+16*(c-1)+4*kt
                    if c==1: VL+=[f"v_max3_f32 v{MX+kt}, v{b}, v{b+1}, v{b+2}",f"v_max_f32 v{MX+kt}, v{MX+kt}, v{b+3}"]
                    else: VL+=[f"v_max3_f32 v{MX+kt}, v{MX+kt}, v{b}, v{b+1}",f"v_max3_f32 v{MX+kt}, v{MX+kt}, v{b+2}, v{b+3}"]
        else:
            cv=c-8
            for js in range(2):
                J=2*cv+js; P=ACC+4*J
                for dt in range(8):
                    d=OA+4*dt
                    txt=f"v_mfma_f32_16x16x32_bf16 {ar(d)}, {ar(64*st+(js*8+dt)*4)}, {vr(P)}, {'0' if J==0 else ar(d)}"
                    M.append(lambda txt=txt,c=c,k=js*8+dt: (g.lgwait(('F',c,k)), g.e(txt)))
                M.append(f"v_mfma_f32_16x16x32_bf16 {ar(LAcc)}, {ar(ONES)}, {vr(P)}, {'0' if J==0 else ar(LAcc)}")
            if cv<7:
                for J in (2*cv+2,2*cv+3): VL+=pcalc(J)
        n=len(M); items=[]
        for j,f in enumerate(dm): items.append(((j+0.5)*n/4,f))
        for q,f in enumerate(R): items.append(((q+0.25)*(n-1)/max(len(R),1),f))
        for q,l in enumerate(VL): items.append(((q+0.5)*n/max(len(VL),1),(lambda l=l: g.e(l))))
        sched(g,M,items)
        if c==7:
            g.e("s_nop 7")
            for kt in range(4):
                b=ACC+16*7+4*kt
                g.e(f"v_max3_f32 v{MX+kt}, v{MX+kt}, v{b}, v{b+1}\nv_max3_f32 v{MX+kt}, v{MX+kt}, v{b+2}, v{b+3}")
            g.e(f"""
            v_max3_f32 v4, v4, v5, v6
            v_max_f32 v4, v4, v7
            v_mov_b32 v5, v4
            s_nop 1
            v_permlane16_swap_b32 v4, v5
            v_max_f32 v4, v4, v5
            v_mov_b32 v5, v4
            s_nop 1
            v_permlane32_swap_b32 v4, v5
            v_max_f32 v4, v4, v5
            v_mul_f32 v4, s{sC}, v4
            """)
            for J in (0,1):
                for l in pcalc(J): g.e(l)
    tick(16)
    g.e(f"""s_cmp_eq_u32 s{sNEXT}, 2
    s_cselect_b32 s{sPA}, 1, 0
    s_cmp_eq_u32 s{sNEXT}, 1
    s_cselect_b32 s{sPRE}, 1, 0
    s_cmp_eq_u32 s{sNEXT}, 3
    s_cselect_b32 s{sPRE}, 1, s{sPRE}""")
    g.e(f"s_nop 4\nv_accvgpr_read_b32 v4, a{LAcc}\ns_nop 0\nv_rcp_f32 v4, v4")
    for t in range(4):
        tb=128+16*t
        for r in range(8): g.e(f"v_accvgpr_read_b32 v{tb+r}, a{OA+8*t+r}")
        for r in range(8): g.e(f"v_mul_f32 v{tb+r}, v{tb+r}, v4")
        for r in range(4): g.e(f"v_cvt_pk_bf16_f32 v{tb+8+r}, v{tb+2*r}, v{tb+2*r+1}")
        if not opt.get("no_ostore"): g.e(f"buffer_store_dwordx4 {vr(tb+8)}, v{vOS}, {sr(S_O)}, s{sOB} offen offset:{t*1024}{STO}")
    g.e(f"""
    s_mov_b32 s{sCUR}, s{sNXT}
    s_and_b32 s{sT0}, s{sITEM}, 1
    s_cmp_eq_u32 s{sT0}, 0
    s_cbranch_scc1 L_A_EVEN
    s_sub_u32 s{sOB}, s{sOB}, {0x80000-0x10000}
    s_add_u32 s{sNXT}, s{sNXT}, 0x400000
    s_lshr_b32 s{sSIG}, s{sITEM}, 1
    s_add_u32 s{sSIG}, s{sSIG}, 1
    s_cmp_eq_u32 s{sNEXT}, 3
    s_cbranch_scc0 L_A_DONE
    s_waitcnt vmcnt(0)
    s_barrier
    """)
    pending_signal()
    g.e(f"""
    s_branch L_A_DONE
    L_A_EVEN:
    s_add_u32 s{sOB}, s{sOB}, 0x80000
    s_sub_u32 s{sNXT}, s{sNXT}, {0x400000-0x200000}
    L_A_DONE:
    s_add_u32 s{sITEM}, s{sITEM}, 1
    """)
    tick(17); tick_store(); stamp()
    g.e("s_branch L_DISP")
    g.label("L_SEG_O")
    g.vm=[]; g.lg=[]
    tick(40)
    o_addr()
    OL=2; WL=3; OF=128
    def o_1(c,k):
        rt,js=k>>1,k&1
        r=OF+(c&3)*16+(rt*2+js)*4
        g.vmop(f"buffer_load_dwordx4 {vr(r)}, v{vOS if rt==0 else vOS1}, {sr(S_O)}, s{sKO} offen offset:{js*1024}{NTOO}",('o',c))
    def o_full(c):
        g.e(f"s_add_u32 s{sT0}, s{sPHI}, {c}\ns_and_b32 s{sT0}, s{sT0}, 15\ns_lshl_b32 s{sT0}, s{sT0}, 11\ns_add_u32 s{sKO}, s{sT0}, s{sOOB}")
        for k in range(4): o_1(c,k)
    g.e(f"s_cmp_eq_u32 s{sPRE}, 1\ns_cbranch_scc1 L_O_PRE\ns_barrier")
    for c in range(WL): wo_group(c,True)
    g.e(f"v_mov_b32 v{vPV}, 0")
    g.label("L_O_PRE")
    g.e(f"""
    s_mov_b32 s{sPRE}, 0
    s_mov_b32 s{sPA}, 0
    s_cmp_lg_u32 s{sW}, 0
    s_cbranch_scc1 L_O_WAITB
    s_waitcnt vmcnt(0)
    s_lshl_b32 s{sT0}, s{sOP}, 2
    v_add_u32 v1, s{sT0}, v{vPA}
    s_mov_b32 s{sCNT}, 0
    s_mov_b64 exec, 0xff
    v_cmp_eq_u32 vcc, s{sNONCE}, v{vPV}
    s_nop 4
    s_cmp_eq_u32 vcc_lo, 0xff
    s_cbranch_scc1 L_O_POLLX
    L_O_POLL:
    global_load_dword v3, v1, s[{sWS}:{sWS+1}] sc1
    s_add_u32 s{sCNT}, s{sCNT}, 1
    s_waitcnt vmcnt(0)
    v_cmp_eq_u32 vcc, s{sNONCE}, v3
    s_cmp_gt_u32 s{sCNT}, 0x40000
    s_cbranch_scc1 L_O_POLLX
    s_nop 1
    s_cmp_lg_u32 vcc_lo, 0xff
    s_cbranch_scc1 L_O_POLL
    L_O_POLLX:
    s_mov_b64 exec, -1
    L_O_WAITB:
    s_barrier
    """)
    tick(41)
    for c in range(OL): o_full(c)
    g.vmwait(('wo',0))
    g.e("s_barrier")
    RD=[(js,nt,hf) for js in range(2) for nt in range(8) for hf in range(2)]
    def a_read2(c,js,nt,hf):
        r=64*(c&1)+(js*8+nt)*4+2*hf
        g.lgop(f"ds_read_b64_tr_b16 a[{r}:{r+1}], v{vWOR+nt} offset:{WO_AREA[c&3]-WO_RB+js*8192+hf*4096}",('A',c,js,nt))
    for (js,nt,hf) in RD: a_read2(0,js,nt,hf)
    g.e(f"""s_add_u32 s{sT0}, s{sPHI}, {WL}
    s_and_b32 s{sT0}, s{sT0}, 15
    s_lshl_b32 s{sWLO}, s{sT0}, 17
    s_add_u32 s{sT0}, s{sPHI}, {OL}
    s_and_b32 s{sT0}, s{sT0}, 15
    s_lshl_b32 s{sOLO}, s{sT0}, 11""")
    for c in range(16):
        w_=[('o',c)]
        if c+1<16: w_.append(('wo',c+1))
        g.vmwait(w_)
        g.e("s_barrier")
        tick(c)
        G_=Gaps(32)
        vp=opt.get("o_vpos",[3,7,11,15,19,23,27,31])
        if c+WL<16:
            G_.put_post(1,S(f"s_add_u32 s{sKWO}, s{sWLO}, s{sWOB}"))
            G_.put_post(2,S(f"s_add_u32 m0, s{sWOFF}, {WO_AREA[(c+WL)&3]}"))
            G_.put_post(8,S(f"s_add_u32 s{sWLO}, s{sWLO}, {1<<17}"))
            G_.put_post(9,S(f"s_and_b32 s{sWLO}, s{sWLO}, {15<<17}"))
            for j in range(4):
                G_.mem[vp[2*j]]=(lambda j=j,c=c: g.vmop(f"buffer_load_dwordx4 v{vWOD+j}, {sr(S_WO)}, s{sKWO} offen offset:{1024*j}{NTO} lds",('wo',c+WL)))
        if c+OL<16:
            G_.put_post(5,S(f"s_add_u32 s{sKO}, s{sOLO}, s{sOOB}"))
            G_.put_post(12,S(f"s_add_u32 s{sOLO}, s{sOLO}, {1<<11}"))
            G_.put_post(13,S(f"s_and_b32 s{sOLO}, s{sOLO}, {15<<11}"))
            for j in range(4):
                G_.mem[vp[2*j+1]]=(lambda j=j,c=c: o_1(c+OL,j))
        if c==14: prefill_items(G_,[0,1,2],30)
        if c==15: prefill_items(G_,[3,4],32)
        if c+1<16:
            rend=opt.get("o_rend",30)
            for n_,(js,nt,hf) in enumerate(RD):
                G_.put_mem(n_*rend/32.0,lambda js=js,nt=nt,hf=hf,c=c: a_read2(c+1,js,nt,hf))
        M=[]
        for js in range(2):
            for nt in range(8):
                for rt in range(2):
                    d=OACC+(rt*8+nt)*4
                    txt=f"v_mfma_f32_16x16x32_bf16 {ar(d)}, {ar(64*(c&1)+(js*8+nt)*4)}, {vr(OF+(c&3)*16+(rt*2+js)*4)}, {ar(d)}"
                    if rt==0: M.append(lambda txt=txt,c=c,js=js,nt=nt: (g.lgwait(('A',c,js,nt)), g.e(txt)))
                    else: M.append(txt)
        G_.emit(g,M)
    tick(16); tick(17); tick_store()
    g.e(f"""s_add_u32 s{sOP}, s{sOP}, 1
    s_add_u32 s{sWOB}, s{sWOB}, {1<<22}
    s_add_u32 s{sOOB}, s{sOOB}, {1<<16}""")
    stamp()
    g.e("s_branch L_DISP")
    g.label("L_SEG_X")
    g.e("s_nop 7")
    for rt in range(2):
        if rt==1: g.e(f"s_add_u32 s{sEXW}, s{sEXW}, 4096")
        for m in range(4):
            d=OACC+(rt*8+4+m)*4
            g.e(f"buffer_store_dwordx4 {ar(d)}, v{vOS}, {sr(S_O)}, s{sEXW} offen offset:{m*1024} sc1")
    for rt in range(2):
        for m in range(4):
            for q in range(4): g.e(f"v_accvgpr_read_b32 v{128+(rt*4+m)*4+q}, a{OACC+(rt*8+m)*4+q}")
    g.e(f"""
    v_lshrrev_b32 v3, 4, v0
    v_and_b32 v4, 15, v0
    v_lshlrev_b32 v5, 3, v3
    v_lshl_add_u32 v52, v4, 12, v5
    s_waitcnt vmcnt(0)
    s_barrier
    s_cmp_lg_u32 s{sW}, 0
    s_cbranch_scc1 L_X_WAITB
    """)
    flag_store(8)
    g.e(f"""
    s_xor_b32 s{sT0}, s2, 128
    s_lshl_b32 s{sT0}, s{sT0}, 7
    s_add_u32 s{sT0}, s{sT0}, {FLAG_OFF+8}
    v_mov_b32 v1, s{sT0}
    s_mov_b32 s{sCNT}, 0
    s_mov_b64 exec, 1
    L_X_POLL:
    global_load_dword v3, v1, s[{sWS}:{sWS+1}] sc1
    s_add_u32 s{sCNT}, s{sCNT}, 1
    s_waitcnt vmcnt(0)
    v_readfirstlane_b32 s{sT0}, v3
    s_cmp_gt_u32 s{sCNT}, 0x40000
    s_cbranch_scc1 L_X_POLLX
    s_cmp_lg_u32 s{sT0}, s{sNONCE}
    s_cbranch_scc1 L_X_POLL
    L_X_POLLX:
    s_mov_b64 exec, -1
    L_X_WAITB:
    s_barrier
    """)
    for rt in range(2):
        if rt==1: g.e(f"s_add_u32 s{sEXR}, s{sEXR}, 4096")
        for m in range(4):
            r=192+(rt*4+m)*4
            g.e(f"buffer_load_dwordx4 {vr(r)}, v{vOS}, {sr(S_O)}, s{sEXR} offen offset:{m*1024} sc1")
    for rt in range(2):
        if rt==1: g.e(f"s_add_u32 s{sOUTB}, s{sOUTB}, 0x10000")
        for m in range(4):
            d=128+(rt*4+m)*4; r=192+(rt*4+m)*4
            g.e("s_waitcnt vmcnt(7)")
            for q in range(4): g.e(f"v_add_f32 v{d+q}, v{d+q}, v{r+q}")
            g.e(f"""v_cvt_pk_bf16_f32 v{d}, v{d}, v{d+1}
            v_cvt_pk_bf16_f32 v{d+1}, v{d+2}, v{d+3}
            buffer_store_dwordx2 v[{d}:{d+1}], v52, {sr(S_OUT)}, s{sOUTB} offen offset:{m*32}""")
    stamp()
    g.label("L_END")
    g.e("s_endpgm")
    return g.text()

def enc(seq):
    code={'Q':1,'A':2,'O':3}
    v=0
    for i,ch in enumerate(seq): v|=code[ch]<<(4*i)
    return v
def build(opt):
    opt=dict(opt)
    opt['seq0']=hex(enc(opt.get("s0","QAQAAOAO"))); opt['seq1']=hex(enc(opt.get("s1","QQAAOAAO")))
    s="; @launch grid=(256,1,1) block=(256,1,1) lds=163840\n"
    s+='.amdgcn_target "amdgcn-amd-amdhsa--gfx950"\n'
    s+=f".text\n.globl {KN}\n.p2align 8\n.type {KN},@function\n{KN}:\n"
    s+=gen(opt)
    s+=f""".section .rodata,"a"
.p2align 6
.amdhsa_kernel {KN}
  .amdhsa_next_free_vgpr 512
  .amdhsa_next_free_sgpr 102
  .amdhsa_accum_offset 256
  .amdhsa_group_segment_fixed_size 0
  .amdhsa_kernarg_size 104
  .amdhsa_user_sgpr_count 2
  .amdhsa_user_sgpr_kernarg_segment_ptr 1
  .amdhsa_system_sgpr_workgroup_id_x 1
.end_amdhsa_kernel
"""
    return s
if __name__=="__main__":
    opt=json.loads(sys.argv[2]) if len(sys.argv)>2 else {}
    open(sys.argv[1],"w").write(build(opt))
```

```python
import sys, struct, math, json
from gl import *
KN="concat_heads__mha_block_cached__mha_block_cached__near_ridge_kernel"
C_SCALE=struct.unpack("<I",struct.pack("<f",math.log2(math.e)/math.sqrt(128.0)))[0]
K1=1024; MB=K1*K1
EXCH_OFF=16*MB; FLAG_OFF=24*MB+512*K1; STAMP_OFF=32*MB
SLOT=16384; LA=7; NPRE=3
WQBASE=48*K1; XBASE=96*K1
WO_AREA=[128*K1,144*K1,96*K1,112*K1]; WO_RB=96*K1

def gen(opt):
    g=G()
    S=lambda txt: (lambda: g.e(txt))
    NT=opt.get('nt_kv',' nt')
    NTX=opt.get("nt_x",""); NTW=opt.get("nt_wq"," nt"); NTO=opt.get("nt_wo",""); NTOO=opt.get("nt_o"," sc1"); STO=opt.get("st_o"," sc1")
    FULL=opt.get("fullrot",0); KM=15 if FULL else 7
    NWOP=opt.get("nwop",4)
    KREG={int(k):v for k,v in opt.get("kreg",{}).items()}
    KRI={c:n for n,c in enumerate(sorted(KREG.values()))}
    KPRE={int(k):v for k,v in opt.get("kpre",{5:0,8:1,11:2}).items()}
    sPA=7;sKRG=7;sSIG=3;sJ=4;sLAST=5;sCNT=6
    S_X=8;S_WQ=12;S_K=16;S_V=20;S_KN=24;S_O=28;S_WO=32;S_OUT=36;S_WON=40
    sW=44;sBR=45;sH=46;sBG=47;sRB=48;sCB=49;sKH=50;sPHI=51;sPHO=52
    sWQB=53;sKX=54;sKW=55;sXT=56;sWT=57;sT0=58;sT1=59
    sCUR=60;sNXT=61;sITEM=62;sOB=63;sC=64;sWOFF=65;sXL=66;sWL=67
    sMASK=68
    sXB=70
    sNONCE=74;sWOB=75;sOOB=76;sKWO=77;sKO=78;sWLO=79;sOLO=80;sOUTB=81;sEXW=82;sEXR=83
    S_ON=84
    sSEGN=89; sWS=90; sDBG=92; sSTB=94
    vKD=8; vVD=12; vKR=14; vVR=22; vOS=38; vOS1=39; vWOD=40; vPA=44; vTCH=45; sTCH=88
    vXD=46; vXR=48; vWD=50; vWR=54
    TA=52; vWOR=46
    QF=64; ACC=128
    OA=128; LAcc=160; ONES=168; QCUR=172; OACC=192
    def stamp():
        if not opt.get("stamps"): return
        g.e(f"""
        s_memrealtime s[96:97]
        s_memtime s[98:99]
        s_waitcnt lgkmcnt(0)
        v_mov_b32 v2, s96
        v_mov_b32 v3, s98
        s_lshl_b32 s96, s2, 7
        s_lshl_b32 s97, s{sSEGN}, 3
        s_add_u32 s96, s96, s97
        v_mov_b32 v1, s96
        global_store_dwordx2 v1, v[2:3], s[{sSTB}:{sSTB+1}]
        s_add_u32 s{sSEGN}, s{sSEGN}, 1
        """)
        g.lg=[]
        g.vm.append('stamp') if False else None
    def tick(k):
        if opt.get("steps"):
            g.e(f"s_memtime s[96:97]\ns_waitcnt lgkmcnt(0)\nv_writelane_b32 v62, s96, {k}"); g.lg=[]
    def tick_store():
        if opt.get("steps"):
            g.e(f"s_lshl_b32 s96, s2, 12\ns_lshl_b32 s97, s{sSEGN}, 8\ns_add_u32 s96, s96, s97\ns_add_u32 s96, s96, {MB}\nv_lshlrev_b32 v1, 2, v0\nv_add_u32 v1, s96, v1\nglobal_store_dword v1, v62, s[{sSTB}:{sSTB+1}]")
    if opt.get("stamps"): g.e("s_memrealtime s[100:101]")
    g.e(f"""
    s_cmp_ge_u32 s2, 256
    s_cbranch_scc1 L_END
    s_load_dwordx4 s[96:99], s[0:1], 80
    s_load_dwordx2 s[{sWS}:{sWS+1}], s[0:1], 96
    s_and_b32 s3, s2, 7                          ; xcd
    s_lshr_b32 s4, s2, 3                         ; idx
    s_lshr_b32 s{sBR}, s3, 2
    s_and_b32 s5, s3, 3
    s_lshl_b32 s5, s5, 3
    s_and_b32 s6, s4, 7
    s_add_u32 s{sH}, s5, s6
    s_lshr_b32 s{sBG}, s4, 3
    s_lshl_b32 s7, s{sBG}, 1
    s_add_u32 s7, s7, s6
    s_and_b32 s{sPHI}, s7, 7
    {"s_lshl_b32 s"+str(sPHI)+", s"+str(sPHI)+", 1" if FULL else ""}
    ; O mapping
    s_lshr_b32 s5, s3, 1
    s_and_b32 s5, s5, 1
    s_lshl_b32 s5, s5, 2
    s_and_b32 s6, s4, 3
    s_add_u32 s{sRB}, s5, s6
    s_and_b32 s5, s3, 1
    s_lshl_b32 s5, s5, 2
    s_lshr_b32 s7, s4, 2
    s_and_b32 s7, s7, 3
    s_add_u32 s{sCB}, s5, s7
    s_lshr_b32 s{sKH}, s4, 4
    s_add_u32 s{sPHO}, s6, s7
    s_and_b32 s{sPHO}, s{sPHO}, 3
    s_lshl_b32 s{sPHO}, s{sPHO}, 1
    s_mul_i32 s5, s{sBR}, 40
    s_add_u32 s4, s0, s5
    s_addc_u32 s5, s1, 0
    s_load_dwordx4 s[8:11], s[4:5], 0            ; x, k
    s_load_dwordx4 s[12:15], s[4:5], 16          ; v, wq
    s_load_dwordx2 s[16:17], s[4:5], 32          ; wo
    v_lshrrev_b32 v1, 6, v0
    v_and_b32 v0, 63, v0
    s_nop 0
    v_readfirstlane_b32 s{sW}, v1
    """)
    g.e(f"""
    v_lshrrev_b32 v1, 3, v0              ; r8
    v_and_b32 v2, 7, v0                  ; p8
    v_lshrrev_b32 v3, 4, v0              ; rr / g
    v_and_b32 v4, 15, v0                 ; p16 / q / key
    v_xor_b32 v5, v2, v3
    v_lshlrev_b32 v5, 4, v5
    v_lshl_add_u32 v{vXD}, v1, 11, v5
    v_xor_b32 v5, 64, v5
    v_lshl_add_u32 v5, v1, 11, v5
    v_add_u32 v{vXD+1}, {8*2048-1024}, v5
    v_lshrrev_b32 v5, 1, v4
    v_xor_b32 v5, v5, v3
    v_lshlrev_b32 v5, 4, v5
    v_lshl_add_u32 v5, v4, 7, v5
    s_lshl_b32 s{sXL}, s{sW}, 14
    s_add_u32 s{sXL}, s{sXL}, {XBASE}
    v_add_u32 v{vXR}, s{sXL}, v5
    v_xor_b32 v{vXR+1}, 64, v{vXR}
    v_and_b32 v5, 1, v3
    v_and_b32 v6, 2, v3
    v_lshl_or_b32 v5, v6, 1, v5          ; f0
    v_xor_b32 v5, v5, v4                 ; p ^ f0
    """)
    for j in range(4):
        g.e(f"""
        v_xor_b32 v6, {8*(j>>1)}, v5
        v_lshlrev_b32 v6, 4, v6
        v_lshl_add_u32 v6, v3, 13, v6
        v_add_u32 v{vWD+j}, {4*j*8192-1024*j}, v6
        """)
    g.e(f"""
    v_lshrrev_b32 v5, 2, v4              ; rp
    v_and_b32 v6, 3, v0                  ; c
    v_and_b32 v7, 1, v5
    v_and_b32 v1, 2, v5
    v_lshl_or_b32 v7, v1, 1, v7
    v_and_b32 v1, 1, v3
    v_lshl_or_b32 v7, v1, 3, v7          ; f
    v_xor_b32 v7, v7, v6                 ; c ^ f
    v_lshlrev_b32 v7, 4, v7
    v_and_b32 v1, 1, v6
    v_lshl_or_b32 v7, v1, 3, v7          ; + 8*(c&1)
    v_lshl_add_u32 v1, v3, 3, v5         ; 8kg+rp
    v_lshl_add_u32 v7, v1, 8, v7
    v_add_u32 v7, {WQBASE}, v7
    """)
    for dt in range(8):
        t,u=dt>>1,dt&1
        g.e(f"v_xor_b32 v{vWR+dt}, {(t<<6)^(u<<3)}, v7")
    for j in range(4):
        g.e(f"""
        v_add_u32 v5, {4*(j&1)}, v3
        v_lshlrev_b32 v5, 1, v5
        v_xor_b32 v5, v5, v4
        v_lshlrev_b32 v5, 4, v5
        v_lshl_add_u32 v5, v3, 11, v5
        v_add_u32 v{vWOD+j}, {4*j*2048-1024*j}, v5
        """)
    g.e(f"""
    s_lshl_b32 s{sT0}, s{sKH}, 4
    v_add_u32 v5, s{sT0}, v4             ; h = 16kh + t
    v_lshrrev_b32 v6, 3, v5              ; h>>3
    s_lshl_b32 s{sT0}, s{sBR}, 2
    v_add_u32 v6, s{sT0}, v6             ; xcd'
    v_and_b32 v5, 7, v5
    s_lshr_b32 s{sT0}, s{sRB}, 1
    s_lshl_b32 s{sT0}, s{sT0}, 3
    v_add_u32 v5, s{sT0}, v5             ; idx'
    v_lshl_add_u32 v5, v5, 3, v6         ; wg'
    v_lshlrev_b32 v5, 7, v5
    s_mov_b32 s{sT0}, {FLAG_OFF}
    v_add_u32 v{vPA}, s{sT0}, v5
    """)
    for j in range(4):
        g.e(f"""
        v_add_u32 v5, {4*j}, v3
        v_xor_b32 v5, v5, v4
        v_lshlrev_b32 v5, 4, v5
        v_lshl_add_u32 v{vKD+j}, v3, 8, v5
        """)
    g.e(f"""
    v_xor_b32 v5, v3, v4
    v_lshlrev_b32 v5, 4, v5
    v_lshl_add_u32 v5, v4, 8, v5
    """)
    for t in range(4): g.e(f"v_xor_b32 v{vKR+t}, {t<<6}, v5\nv_add_u32 v{vKR+4+t}, 0x10000, v{vKR+t}")
    for jp in range(2):
        g.e(f"""
        v_add_u32 v5, {4*jp}, v3
        v_lshlrev_b32 v5, 1, v5
        v_xor_b32 v5, v5, v4
        v_lshlrev_b32 v5, 4, v5
        v_lshl_add_u32 v{vVD+jp}, v3, 8, v5
        """)
    g.e(f"""
    v_lshrrev_b32 v5, 2, v4              ; rp
    v_and_b32 v6, 3, v0                  ; c
    v_and_b32 v7, 1, v3
    v_lshl_add_u32 v7, v7, 2, v5         ; 4(g&1)+rp
    v_lshlrev_b32 v7, 1, v7
    v_lshrrev_b32 v1, 1, v6
    v_xor_b32 v7, v7, v1
    v_lshlrev_b32 v7, 4, v7
    v_and_b32 v1, 1, v6
    v_lshl_or_b32 v7, v1, 3, v7
    v_lshl_add_u32 v1, v3, 2, v5         ; 4g+rp
    v_lshl_add_u32 v7, v1, 8, v7
    """)
    for dt in range(8): g.e(f"v_xor_b32 v{vVR+dt}, {dt<<5}, v7\nv_add_u32 v{vVR+8+dt}, 0x10000, v{vVR+dt}")
    g.e(f"v_lshlrev_b32 v{vTCH}, 7, v0")
    g.e(f"s_and_b32 s{sT0}, s2, 3\ns_lshl_b32 s{sT0}, s{sT0}, 5\ns_lshr_b32 s{sT1}, s2, 3\ns_add_u32 s{sT0}, s{sT0}, s{sT1}\ns_lshl_b32 s{sTCH}, s{sT0}, 16\ns_lshl_b32 s{sT0}, s{sW}, 14\ns_add_u32 s{sTCH}, s{sTCH}, s{sT0}")
    g.e(f"v_lshlrev_b32 v{vOS}, 4, v0\nv_add_u32 v{vOS1}, 0x20000, v{vOS}\nv_mov_b32 v1, 0x3f803f80")
    for r in range(4): g.e(f"v_accvgpr_write_b32 a{ONES+r}, v1")
    g.e("s_waitcnt lgkmcnt(0)")
    def mk(s,lo,hi,size): g.e(f"s_mov_b32 s{s}, s{lo}\ns_and_b32 s{s+1}, s{hi}, 0xffff\ns_mov_b32 s{s+2}, {size}\ns_mov_b32 s{s+3}, 0x20000")
    g.e(f"s_mov_b32 s{sDBG}, s98\ns_mov_b32 s{sDBG+1}, s99")
    mk(S_OUT,96,97,4*MB); mk(S_WO,16,17,8*MB); mk(S_WON,16,17,8*MB); mk(S_V,12,13,64*MB)
    mk(S_K,10,11,64*MB); mk(S_KN,10,11,64*MB)
    g.e(f"s_mov_b32 s4, s14\ns_mov_b32 s5, s15\ns_and_b32 s{S_X+1}, s9, 0xffff\ns_mov_b32 s{S_X+2}, {2*MB}\ns_mov_b32 s{S_X+3}, 0x20000")
    mk(S_WQ,4,5,8*MB); mk(S_O,sWS,sWS+1,32*MB); mk(S_ON,sWS,sWS+1,32*MB)
    g.e(f"""
    s_add_u32 s{sSTB}, s{sWS}, {STAMP_OFF}
    s_addc_u32 s{sSTB+1}, s{sWS+1}, 0
    s_mov_b32 s{sSEGN}, 0
    s_lshl_b32 s{sWOFF}, s{sW}, 12
    s_add_u32 s{sWL}, s{sWOFF}, {WQBASE}
    s_mov_b32 s{sC}, {C_SCALE}
    s_mov_b32 s{sMASK}, 0xffff0000
    s_mov_b32 s{sMASK+1}, 0xffff0000
    s_lshl_b32 s{sT0}, s{sBG}, 19
    s_lshl_b32 s{sT1}, s{sW}, 15
    s_add_u32 s{sXB}, s{sT0}, s{sT1}
    s_add_u32 s{sXB+1}, s{sXB}, 0x20000
    s_add_u32 s{sXB+2}, s{sXB}, 0x40000
    s_add_u32 s{sXB+3}, s{sXB}, 0x60000
    s_lshl_b32 s{sT0}, s{sW}, 17
    s_lshl_b32 s{sT1}, s{sH}, 8
    s_add_u32 s{sWQB}, s{sT0}, s{sT1}
    s_lshl_b32 s{sT0}, s{sBG}, 24
    s_lshl_b32 s{sT1}, s{sH}, 17
    s_add_u32 s{sCUR}, s{sT0}, s{sT1}
    s_add_u32 s{sCUR}, s{sCUR}, s{sWOFF}
    s_add_u32 s{sNXT}, s{sCUR}, 0x400000
    s_lshl_b32 s{sT0}, s{sBR}, 23
    s_lshl_b32 s{sT1}, s{sBG}, 21
    s_add_u32 s{sOB}, s{sT0}, s{sT1}
    s_lshl_b32 s{sT0}, s{sW}, 17
    s_add_u32 s{sOB}, s{sOB}, s{sT0}
    s_lshl_b32 s{sT0}, s{sH}, 12
    s_add_u32 s{sOB}, s{sOB}, s{sT0}
    s_lshl_b32 s{sT0}, s{sKH}, 22
    s_lshl_b32 s{sT1}, s{sW}, 15
    s_add_u32 s{sWOB}, s{sT0}, s{sT1}
    s_lshl_b32 s{sT0}, s{sCB}, 8
    s_add_u32 s{sWOB}, s{sWOB}, s{sT0}
    s_lshl_b32 s{sT0}, s{sRB}, 3
    s_lshl_b32 s{sT1}, s{sW}, 1
    s_add_u32 s{sT0}, s{sT0}, s{sT1}            ; 8rb+2w
    s_lshl_b32 s{sOUTB}, s{sT0}, 16
    s_lshl_b32 s{sOOB}, s{sT0}, 17
    s_lshl_b32 s{sT1}, s{sBR}, 23
    s_add_u32 s{sOOB}, s{sOOB}, s{sT1}
    s_lshl_b32 s{sT1}, s{sKH}, 16
    s_add_u32 s{sOOB}, s{sOOB}, s{sT1}
    s_lshl_b32 s{sT1}, s{sBR}, 11
    s_add_u32 s{sOUTB}, s{sOUTB}, s{sT1}
    s_lshl_b32 s{sT1}, s{sCB}, 8
    s_add_u32 s{sOUTB}, s{sOUTB}, s{sT1}
    s_lshl_b32 s{sT1}, s{sKH}, 7
    s_add_u32 s{sOUTB}, s{sOUTB}, s{sT1}
    s_lshl_b32 s{sT1}, s{sW}, 13
    s_lshl_b32 s{sEXW}, s2, 15
    s_add_u32 s{sEXW}, s{sEXW}, s{sT1}
    s_add_u32 s{sEXW}, s{sEXW}, {EXCH_OFF}
    s_xor_b32 s{sEXR}, s2, 128
    s_lshl_b32 s{sEXR}, s{sEXR}, 15
    s_add_u32 s{sEXR}, s{sEXR}, s{sT1}
    s_add_u32 s{sEXR}, s{sEXR}, {EXCH_OFF}
    s_mov_b32 s{sITEM}, 0
    s_mov_b32 s{sNONCE}, 0
    s_mov_b32 s{sPA}, 0
    s_mov_b32 s{sSIG}, 0
    s_cmp_lg_u32 s{sW}, 0
    s_cbranch_scc1 L_NONCE_DONE
    s_memrealtime s[96:97]
    s_waitcnt lgkmcnt(0)
    s_or_b32 s96, s96, 1
    v_mov_b32 v4, s96
    v_mov_b32 v5, 0
    v_accvgpr_write_b32 a164, v4
    v_accvgpr_write_b32 a165, v5
    s_mov_b64 exec, 1
    global_atomic_cmpswap a166, v5, a[164:165], s[{sDBG}:{sDBG+1}] sc0
    s_mov_b64 exec, -1
    L_NONCE_DONE:
    """)
    if opt.get("stamps"):
        g.e(f"v_mov_b32 v2, s100\nv_mov_b32 v3, 0\ns_lshl_b32 s96, s2, 7\ns_add_u32 s96, s96, 120\nv_mov_b32 v1, s96\nglobal_store_dwordx2 v1, v[2:3], s[{sSTB}:{sSTB+1}]")
    stamp()
    def flag_store(off):
        g.e(f"""
        s_lshl_b32 s{sT0}, s2, 7
        s_add_u32 s{sT0}, s{sT0}, {FLAG_OFF}
        s_add_u32 s{sT0}, s{sT0}, {off}
        v_mov_b32 v1, s{sT0}
        v_mov_b32 v3, s{sNONCE}
        s_mov_b64 exec, 1
        global_store_dword v1, v3, s[{sWS}:{sWS+1}] sc1
        s_mov_b64 exec, -1
        """)
    nsig=[0]
    def pending_signal():
        nsig[0]+=1; n=nsig[0]
        g.e(f"""
        s_cmp_eq_u32 s{sSIG}, 0
        s_cbranch_scc1 L_SG{n}
        s_cmp_lg_u32 s{sW}, 0
        s_cbranch_scc1 L_SGX{n}
        s_sub_u32 s{sCNT}, s{sSIG}, 1
        s_lshl_b32 s{sCNT}, s{sCNT}, 2
        """)
        flag_store(f"s{sCNT}")
        g.e(f"L_SGX{n}:\ns_mov_b32 s{sSIG}, 0\nL_SG{n}:")
    def kv_group(cc):
        if cc<8: srdn,base,vo,ch=S_K,sCUR,[vKD+j for j in range(4)],cc
        elif cc<16: srdn,base,vo,ch=S_V,sCUR,[vVD+(j&1) for j in range(4)],cc-8
        else: srdn,base,vo,ch=S_KN,sNXT,[vKD+j for j in range(4)],cc-16
        return (f"s_add_u32 m0, s{sWOFF}, {(cc&7)*SLOT}\ns_add_u32 s{sT1}, s{base}, {ch*16384}",
                [f"buffer_load_dwordx4 v{vo[j]}, {sr(srdn)}, s{sT1} offen offset:{1024*j}{NT} lds" for j in range(4)])
    def wo_group(c,track,srdn=S_WO):
        g.e(f"s_add_u32 s{sT1}, s{sPHO}, {c}\ns_and_b32 s{sT1}, s{sT1}, 7\ns_lshl_b32 s{sT1}, s{sT1}, 17\ns_add_u32 m0, s{sWOFF}, {(c&7)*SLOT}\ns_add_u32 s{sT1}, s{sT1}, s{sWOB}")
        for j in range(4):
            t=f"buffer_load_dwordx4 v{vWOD+j}, {sr(srdn)}, s{sT1} offen offset:{1024*j}{NTO} lds"
            g.vmop(t,('wo',c)) if track else g.e(t)
    def kidx(s,dst,shift):
        g.e(f"s_add_u32 s{sT0}, s{sPHI}, {s}\ns_and_b32 s{sT0}, s{sT0}, {KM}\ns_or_b32 s{sT0}, s{sT0}, {0 if FULL else s&8}\ns_lshl_b32 s{dst}, s{sT0}, {shift}")
    def x_dma(s,i):
        slot=(s&1)*4+i
        g.e(f"s_add_u32 m0, s{sXL}, {slot*2048}\ns_add_u32 s{sT1}, s{sXB+i}, s{sKX}")
        for j in range(2): g.vmop(f"buffer_load_dwordx4 v{vXD+j}, {sr(S_X)}, s{sT1} offen offset:{1024*j}{NTX} lds",('x',s,i))
    def wq_dma(s):
        g.e(f"s_add_u32 m0, s{sWL}, {(s%3)*16384}\ns_add_u32 s{sT1}, s{sWQB}, s{sKW}")
        for j in range(4): g.vmop(f"buffer_load_dwordx4 v{vWD+j}, {sr(S_WQ)}, s{sT1} offen offset:{1024*j}{NTW} lds",('wq',s))
    def a_read(s,ks,dt,hf):
        r=64*(s&1)+(ks*8+dt)*4+2*hf
        g.lgop(f"ds_read_b64_tr_b16 a[{r}:{r+1}], v{vWR+dt} offset:{(s%3)*16384+ks*8192+hf*1024}",('A',s))
    def b_read(s,i,ks):
        n=s*4+i
        r=128+(n&1)*8+ks*4
        g.lgop(f"ds_read_b128 a[{r}:{r+3}], v{vXR+ks} offset:{((s&1)*4+i)*2048}",('B',s,i))
    tick(40)
    kidx(0,sKW,19); wq_dma(0)
    kidx(0,sKX,7)
    for i in range(4): x_dma(0,i)
    kidx(1,sKW,19); wq_dma(1)
    if not opt.get("qpro",0):
        kidx(1,sKX,7)
        for i in range(4): x_dma(1,i)
        kidx(2,sKW,19); wq_dma(2)
    g.vmwait(('wq',0))
    g.e("s_barrier")
    AR=[(ks,dt,hf) for ks in range(2) for dt in range(8) for hf in range(2)]
    for (ks,dt,hf) in AR: a_read(0,ks,dt,hf)
    g.vmwait(('x',0,0))
    b_read(0,0,0); b_read(0,0,1)
    if opt.get("qpro",0):
        kidx(1,sKX,7)
        for i in range(4): x_dma(1,i)
        kidx(2,sKW,19); wq_dma(2)
    g.e(f"""s_add_u32 s{sT0}, s{sPHI}, 2
    s_and_b32 s{sT0}, s{sT0}, {KM}
    s_lshl_b32 s{sKX}, s{sT0}, 7
    s_add_u32 s{sT0}, s{sPHI}, 3
    s_and_b32 s{sT0}, s{sT0}, {KM}
    s_lshl_b32 s{sKW}, s{sT0}, 19""")
    for s in range(16):
        if s+1<16: g.vmwait(('wq',s+1))
        g.lgwait(('A',s))
        g.e("s_barrier")
        tick(s)
        G_=Gaps(64)
        dpos=opt.get("dpos",[2,7,12,17,23,28,34,39,45,50,56,61])
        if s+3<16:
            if (s+3)==8 and not FULL: G_.put_post(0,S(f"s_add_u32 s{sWQB}, s{sWQB}, {8<<19}"))
            G_.put_post(dpos[0]-2,S(f"s_add_u32 s{sWT}, s{sWQB}, s{sKW}"))
            G_.put_post(dpos[0]-1,S(f"s_add_u32 m0, s{sWL}, {((s+3)%3)*16384}"))
            for j in range(4):
                G_.mem[dpos[j]]=(lambda j=j,s=s: g.vmop(f"buffer_load_dwordx4 v{vWD+j}, {sr(S_WQ)}, s{sWT} offen offset:{1024*j}{NTW} lds",('wq',s+3)))
            G_.put_post(dpos[3],S(f"s_add_u32 s{sKW}, s{sKW}, {1<<19}"))
            G_.put_post(dpos[3]+1,S(f"s_and_b32 s{sKW}, s{sKW}, {KM<<19}"))
        if s+2<16:
            for i in range(4):
                p=dpos[4+2*i]
                if (s+2)==8 and not FULL: G_.put_post(p-3,S(f"s_add_u32 s{sXB+i}, s{sXB+i}, 1024"))
                G_.put_post(p-2,S(f"s_add_u32 s{sXT}, s{sXB+i}, s{sKX}"))
                G_.put_post(p-1,S(f"s_add_u32 m0, s{sXL}, {((s&1)*4+i)*2048}"))
                for j in range(2):
                    G_.mem[dpos[4+2*i+j]]=(lambda j=j,s=s,i=i: g.vmop(f"buffer_load_dwordx4 v{vXD+j}, {sr(S_X)}, s{sXT} offen offset:{1024*j}{NTX} lds",('x',s+2,i)))
            G_.put_post(dpos[11],S(f"s_add_u32 s{sKX}, s{sKX}, 128"))
            G_.put_post(dpos[11]+1,S(f"s_and_b32 s{sKX}, s{sKX}, {KM<<7}"))
        if s in KPRE:
            c=KPRE[s]
            for j,p in enumerate(opt.get("kpos",[19,30,41,52])):
                G_.put_post(p-2,S(f"s_add_u32 s{sT1}, s{sCUR}, {c*16384}"))
                G_.put_post(p-1,S(f"s_add_u32 m0, s{sWOFF}, {c*SLOT}"))
                assert G_.mem[p] is None
                G_.mem[p]=(lambda j=j,c=c: g.vmop(f"buffer_load_dwordx4 v{vKD+j}, {sr(S_K)}, s{sT1} offen offset:{1024*j}{NT} lds",('kv',c)))
        if s in KREG:
            c=KREG[s]
            for j,p in enumerate(opt.get("kpos",[19,30,41,52])):
                if j==0: G_.put_post(p-2,S(f"s_add_u32 s{sKRG}, s{sCUR}, {c*16384}"))
                assert G_.mem[p] is None
                r=OACC+16*KRI[c]+4*j
                G_.mem[p]=(lambda j=j,r=r: g.e(f"buffer_load_dwordx4 {ar(r)}, v{vKD+j}, {sr(S_K)}, s{sKRG} offen offset:{1024*j}{NT}"))
        WT={int(k):v for k,v in opt.get("wotouch",{}).items()}
        if s in WT:
            n_=WT[s]; p=20
            assert G_.mem[p] is None
            G_.put_post(p-2,S(f"s_add_u32 s{sT1}, s{sTCH}, {n_*8192}"))
            G_.put_post(p-1,S(f"s_add_u32 m0, s{sWOFF}, {2*SLOT}"))
            G_.mem[p]=(lambda: g.vmop(f"buffer_load_dword v{vTCH}, {sr(S_WO)}, s{sT1} offen lds",('tch',)))
        for i in range(4):
            nxt=(s,i+1) if i<3 else ((s+1,0) if s+1<16 else None)
            if nxt:
                q=G_.put_mem(16*i+opt.get("bpos",4),lambda nxt=nxt: b_read(nxt[0],nxt[1],0),lo=16*i,hi=16*i+16)
                G_.put_pre(q,lambda nxt=nxt: g.vmwait(('x',)+nxt))
                G_.put_mem(q+1,lambda nxt=nxt: b_read(nxt[0],nxt[1],1),lo=q+1,hi=16*i+16)
        if s+1<16:
            aend=opt.get("aend",56)
            for n_,(ks,dt,hf) in enumerate(AR):
                G_.put_mem(n_*aend/32.0,lambda ks=ks,dt=dt,hf=hf,s=s: a_read(s+1,ks,dt,hf),hi=62)
        M=[]
        for i in range(4):
            n=s*4+i
            for ks in range(2):
                for dt in range(8):
                    d=ACC+(i*8+dt)*4
                    txt=f"v_mfma_f32_16x16x32_bf16 {vr(d)}, {ar(64*(s&1)+(ks*8+dt)*4)}, {ar(128+(n&1)*8+ks*4)}, {'0' if (s==0 and ks==0) else vr(d)}"
                    if ks==0 and dt==0: M.append(lambda txt=txt,s=s,i=i: (g.lgwait(('B',s,i)), g.e(txt)))
                    else: M.append(txt)
        G_.emit(g,M)
    tick(16)
    if KREG: g.e("s_waitcnt vmcnt(0)")
    g.e("s_barrier")
    if KREG:
        g.e(f"v_add_u32 v1, s{sWOFF}, v{vOS}\nv_add_u32 v3, 0x10000, v1")
        for c in sorted(KREG.values()):
            for j in range(4):
                r=OACC+16*KRI[c]+4*j
                off=c*SLOT+j*1024
                if off<65536: g.e(f"ds_write_b128 v1, {ar(r)} offset:{off}")
                else: g.e(f"ds_write_b128 v3, {ar(r)} offset:{off-65536}")
            if c==3: pass
    for cc in range(LA):
        if cc not in KPRE.values() and cc not in KREG.values():
            h,dm=kv_group(cc); g.e(h)
            for l in dm: g.e(l)
    for i in range(4):
        for t in range(4):
            bx=ACC+(i*8+2*t)*4; by=bx+4; F=QF+16*i+4*t
            g.e(f"""
            v_cvt_pk_bf16_f32 v56, v{bx}, v{bx+1}
            v_cvt_pk_bf16_f32 v57, v{bx+2}, v{bx+3}
            v_cvt_pk_bf16_f32 v58, v{by}, v{by+1}
            v_cvt_pk_bf16_f32 v59, v{by+2}, v{by+3}
            v_cndmask_b32 v{F}, v56, v58, s[{sMASK}:{sMASK+1}]
            v_cndmask_b32 v{F+1}, v57, v59, s[{sMASK}:{sMASK+1}]
            v_cndmask_b32 v{F+2}, v58, v56, s[{sMASK}:{sMASK+1}]
            v_cndmask_b32 v{F+3}, v59, v57, s[{sMASK}:{sMASK+1}]
            """)
    if KREG: g.e("s_waitcnt lgkmcnt(0)")
    tick(17); tick_store(); stamp()
    g.label("L_ITEM")
    g.vm=[]; g.lg=[]
    tick(40)
    g.e(f"s_cmp_lt_u32 s{sITEM}, 3\ns_cselect_b32 s{S_KN+2}, {64*MB}, 0\ns_cselect_b32 s{sLAST}, 0, 1")
    for n in range(4):
        g.e(f"s_cmp_eq_u32 s{sITEM}, {n}\ns_cbranch_scc0 L_QC{n}")
        for r in range(16): g.e(f"v_accvgpr_write_b32 a{QCUR+r}, v{QF+16*n+r}")
        g.label(f"L_QC{n}")
    MX=4
    def pcalc(J):
        b=ACC+8*J
        L=[f"v_fma_f32 v{TA+r}, v{b+r}, s{sC}, -v4" for r in range(8)]
        L+=[f"v_exp_f32 v{TA+r}, v{TA+r}" for r in range(8)]
        L+=[f"v_cvt_pk_bf16_f32 v{ACC+4*J+r}, v{TA+2*r}, v{TA+2*r+1}" for r in range(4)]
        return L
    def reads(c):
        st=c&1; sl=c&7; hi=sl>=4; so=(sl&3)*SLOT; R=[]
        if c<8:
            for kt in range(4):
                for t in range(4):
                    R.append(lambda kt=kt,t=t: g.lgop(f"ds_read_b128 {ar(64*st+(kt*4+t)*4)}, v{vKR+(4 if hi else 0)+t} offset:{so+kt*4096}",('F',c,kt)))
        else:
            for js in range(2):
                for dt in range(8):
                    for hf in range(2):
                        r=64*st+(js*8+dt)*4+2*hf
                        R.append(lambda r=r,js=js,dt=dt,hf=hf: g.lgop(f"ds_read_b64_tr_b16 a[{r}:{r+1}], v{vVR+(8 if hi else 0)+dt} offset:{so+js*8192+hf*4096}",('F',c,js*8+dt)))
        return R
    g.e(f"s_waitcnt vmcnt({4*(LA-1)})\ns_barrier")
    for f in reads(0): f()
    for c in range(16):
        cc=c+LA
        if c<15: g.e(f"s_waitcnt vmcnt({4*(LA-2)})")
        if opt.get("thra") is not None and c<15: g.e(f"s_waitcnt vmcnt({opt['thra']})")
        if opt.get("thr") is not None and c<15:
            g.e(f"s_bitcmp1_b32 s2, 0\ns_cbranch_scc{opt.get('thr_par',1)} L_TH{c}\ns_waitcnt vmcnt({opt['thr']})\nL_TH{c}:")
        g.e("s_barrier")
        tick(c)
        dm=[]
        if cc<16 or cc>=16+NWOP:
            h,dl=kv_group(cc); g.e(h); dm=[(lambda l=l: g.e(l)) for l in dl]
        else:
            k=cc-16
            g.e(f"s_cmp_eq_u32 s{sLAST}, 1\ns_cbranch_scc1 L_HO{k}")
            h,dl=kv_group(cc); g.e(h)
            for l in dl: g.e(l)
            g.e(f"s_branch L_HJ{k}")
            g.label(f"L_HO{k}")
            wo_group(k,False)
            g.label(f"L_HJ{k}")
        R=reads(c+1) if c<15 else []
        st=c&1; M=[]; VL=[]
        if c<8:
            for kt in range(4):
                T=4*c+kt; d=ACC+4*T
                for t in range(4):
                    txt=f"v_mfma_f32_16x16x32_bf16 {vr(d)}, {ar(64*st+(kt*4+t)*4)}, {ar(QCUR+4*t)}, {'0' if t==0 else vr(d)}"
                    M.append((lambda txt=txt,kt=kt,c=c: (g.lgwait(('F',c,kt)), g.e(txt))) if t==0 else txt)
            if c>0:
                for kt in range(4):
                    b=ACC+16*(c-1)+4*kt
                    if c==1: VL+=[f"v_max3_f32 v{MX+kt}, v{b}, v{b+1}, v{b+2}",f"v_max_f32 v{MX+kt}, v{MX+kt}, v{b+3}"]
                    else: VL+=[f"v_max3_f32 v{MX+kt}, v{MX+kt}, v{b}, v{b+1}",f"v_max3_f32 v{MX+kt}, v{MX+kt}, v{b+2}, v{b+3}"]
        else:
            cv=c-8
            for js in range(2):
                J=2*cv+js; P=ACC+4*J
                for dt in range(8):
                    d=OA+4*dt
                    txt=f"v_mfma_f32_16x16x32_bf16 {ar(d)}, {ar(64*st+(js*8+dt)*4)}, {vr(P)}, {'0' if J==0 else ar(d)}"
                    M.append(lambda txt=txt,c=c,k=js*8+dt: (g.lgwait(('F',c,k)), g.e(txt)))
                M.append(f"v_mfma_f32_16x16x32_bf16 {ar(LAcc)}, {ar(ONES)}, {vr(P)}, {'0' if J==0 else ar(LAcc)}")
            if cv<7:
                for J in (2*cv+2,2*cv+3): VL+=pcalc(J)
        if c<7: pat=['tv','tv','tt','d']*4
        elif c==7: pat=['ttv','tt','ttv','dtt']*4
        else: pat=['ttv','ttv','ttv','dvvvv']*4+['ttttvv','ttttvv']
        ti=vi=di=0
        for m,p in zip(M,pat):
            m() if callable(m) else g.e(m)
            for ch in p:
                if ch=='t' and ti<len(R): R[ti](); ti+=1
                elif ch=='v' and vi<len(VL): g.e(VL[vi]); vi+=1
                elif ch=='d' and di<len(dm): dm[di](); di+=1
        while ti<len(R): R[ti](); ti+=1
        while di<len(dm): dm[di](); di+=1
        while vi<len(VL): g.e(VL[vi]); vi+=1
        if c==7:
            g.e("s_nop 7")
            for kt in range(4):
                b=ACC+16*7+4*kt
                g.e(f"v_max3_f32 v{MX+kt}, v{MX+kt}, v{b}, v{b+1}\nv_max3_f32 v{MX+kt}, v{MX+kt}, v{b+2}, v{b+3}")
            g.e(f"""
            v_max3_f32 v4, v4, v5, v6
            v_max_f32 v4, v4, v7
            v_mov_b32 v5, v4
            s_nop 1
            v_permlane16_swap_b32 v4, v5
            v_max_f32 v4, v4, v5
            v_mov_b32 v5, v4
            s_nop 1
            v_permlane32_swap_b32 v4, v5
            v_max_f32 v4, v4, v5
            v_mul_f32 v4, s{sC}, v4
            """)
            for J in (0,1):
                for l in pcalc(J): g.e(l)
    tick(16)
    g.e(f"s_nop 7\nv_accvgpr_read_b32 v4, a{LAcc}\ns_nop 0\nv_rcp_f32 v4, v4")
    for t in range(4):
        tb=128+16*t
        for r in range(8): g.e(f"v_accvgpr_read_b32 v{tb+r}, a{OA+8*t+r}")
        for r in range(8): g.e(f"v_mul_f32 v{tb+r}, v{tb+r}, v4")
        for r in range(4): g.e(f"v_cvt_pk_bf16_f32 v{tb+8+r}, v{tb+2*r}, v{tb+2*r+1}")
        if not opt.get("no_ostore"): g.e(f"buffer_store_dwordx4 {vr(tb+8)}, v{vOS}, {sr(S_O)}, s{sOB} offen offset:{t*1024}{STO}")
    g.e(f"""
    s_add_u32 s{sCUR}, s{sCUR}, 0x400000
    s_add_u32 s{sNXT}, s{sNXT}, 0x400000
    s_add_u32 s{sOB}, s{sOB}, 0x80000
    s_cmp_eq_u32 s{sLAST}, 1
    s_cbranch_scc0 L_A_DONE
    s_waitcnt vmcnt(0)
    s_barrier
    s_cmp_lg_u32 s{sW}, 0
    s_cbranch_scc1 L_A_DONE
    v_accvgpr_read_b32 v1, a166
    v_accvgpr_read_b32 v3, a164
    s_nop 0
    v_readfirstlane_b32 s{sT0}, v1
    v_readfirstlane_b32 s{sT1}, v3
    s_nop 3
    s_cmp_eq_u32 s{sT0}, 0
    s_cselect_b32 s{sNONCE}, s{sT1}, s{sT0}
    """)
    flag_store(0)
    g.e(f"L_A_DONE:\ns_add_u32 s{sITEM}, s{sITEM}, 1")
    tick(17); tick_store(); stamp()
    g.e(f"s_cmp_lt_u32 s{sITEM}, 4\ns_cbranch_scc1 L_ITEM")
    g.vm=[]; g.lg=[]
    tick(40)
    g.e(f"s_lshl_b32 s{sT0}, s{sKH}, 7")
    for dt in range(16): g.e(f"v_xor_b32 v{vWOR+dt}, s{sT0}, v{vVR+dt}")
    g.e("v_mov_b32 v1, 0")
    for r in range(64): g.e(f"v_accvgpr_write_b32 a{OACC+r}, v1")
    g.e(f"""
    s_cmp_lg_u32 s{sW}, 0
    s_cbranch_scc1 L_O_WAITB
    v_mov_b32 v1, {128*K1}
    v_mov_b32 v3, s{sNONCE}
    ds_write_b32 v1, v3
    s_mov_b32 s{sCNT}, 0
    s_mov_b64 exec, 0xffff
    L_O_POLL:
    global_load_dword v3, v{vPA}, s[{sWS}:{sWS+1}] sc1
    s_add_u32 s{sCNT}, s{sCNT}, 1
    s_waitcnt vmcnt(0)
    v_cmp_eq_u32 vcc, s{sNONCE}, v3
    s_cmp_gt_u32 s{sCNT}, 0x40000
    s_cbranch_scc1 L_O_POLLX
    s_nop 1
    s_cmp_lg_u32 vcc_lo, 0xffff
    s_cbranch_scc1 L_O_POLL
    L_O_POLLX:
    s_mov_b64 exec, -1
    s_waitcnt lgkmcnt(0)
    L_O_WAITB:
    s_barrier
    v_mov_b32 v1, {128*K1}
    ds_read_b32 v3, v1
    s_waitcnt lgkmcnt(0)
    v_readfirstlane_b32 s{sNONCE}, v3
    """)
    tick(41)
    if opt.get("stamps"):
        g.e(f"s_mov_b32 s101, s{sSEGN}\ns_mov_b32 s{sSEGN}, 9"); stamp(); g.e(f"s_mov_b32 s{sSEGN}, s101")
    OL=3; WL=NWOP; OF=128; NCH=32
    def o_1(st,k,srdn,tag=None):
        rt,js=k>>1,k&1
        r=OF+st*16+(rt*2+js)*4
        g.e(f"buffer_load_dwordx4 {vr(r)}, v{vOS if rt==0 else vOS1}, {sr(srdn)}, s{sKO} offen offset:{js*1024}{NTOO}")
    for c in range(OL):
        g.e(f"s_add_u32 s{sT0}, s{sPHO}, {c}\ns_and_b32 s{sT0}, s{sT0}, 7\ns_lshl_b32 s{sT0}, s{sT0}, 11\ns_add_u32 s{sKO}, s{sT0}, s{sOOB}")
        for k in range(4): o_1(c,k,S_O)
    RD=[(js,nt,hf) for js in range(2) for nt in range(8) for hf in range(2)]
    def a_read2(u,js,nt,hf):
        r=64*(u&1)+(js*8+nt)*4+2*hf
        sl=u&7
        g.lgop(f"ds_read_b64_tr_b16 a[{r}:{r+1}], v{vWOR+(8 if sl>=4 else 0)+nt} offset:{(sl&3)*SLOT+js*8192+hf*4096}",('A',u&1,js,nt))
    for (js,nt,hf) in RD: a_read2(0,js,nt,hf)
    g.e(f"""s_add_u32 s{sT0}, s{sPHO}, {WL}
    s_and_b32 s{sT0}, s{sT0}, 7
    s_lshl_b32 s{sWLO}, s{sT0}, 17
    s_add_u32 s{sT0}, s{sPHO}, {OL}
    s_and_b32 s{sT0}, s{sT0}, 7
    s_lshl_b32 s{sOLO}, s{sT0}, 11
    s_mov_b32 s{sJ}, 0""")
    def body(u):
        g.e(f"s_waitcnt vmcnt(8)")
        g.e("s_barrier")
        if opt.get("steps"): g.e(f"s_memtime s[96:97]\ns_waitcnt lgkmcnt(0)\ns_sub_u32 s99, s96, s98\ns_mov_b32 s98, s96\nv_readlane_b32 s97, v62, {u}\ns_nop 3\ns_add_u32 s97, s97, s99\ns_nop 0\nv_writelane_b32 v62, s97, {u}"); g.lg=[]
        G_=Gaps(32)
        vp=opt.get("o_vpos",[3,7,11,15,19,23,27,31])
        if u+WL==8:
            G_.put_post(0,S(f"s_add_u32 s{sWOB}, s{sWOB}, {8<<17}\ns_cmp_lt_u32 s{sJ}, {NCH-8}\ns_cselect_b32 s{S_WON+2}, {8*MB}, 0"))
        G_.put_post(1,S(f"s_add_u32 s{sKWO}, s{sWLO}, s{sWOB}"))
        G_.put_post(2,S(f"s_add_u32 m0, s{sWOFF}, {((u+WL)&7)*SLOT}"))
        if u+OL==8:
            G_.put_post(4,S(f"s_add_u32 s{sOOB}, s{sOOB}, {8<<11}\ns_cmp_lt_u32 s{sJ}, {NCH-8}\ns_cselect_b32 s{S_ON+2}, {32*MB}, 0"))
        G_.put_post(5,S(f"s_add_u32 s{sKO}, s{sOLO}, s{sOOB}"))
        G_.put_post(8,S(f"s_add_u32 s{sWLO}, s{sWLO}, {1<<17}"))
        G_.put_post(9,S(f"s_and_b32 s{sWLO}, s{sWLO}, {7<<17}"))
        G_.put_post(12,S(f"s_add_u32 s{sOLO}, s{sOLO}, {1<<11}"))
        G_.put_post(13,S(f"s_and_b32 s{sOLO}, s{sOLO}, {7<<11}"))
        for j in range(4):
            G_.mem[vp[2*j]]=(lambda j=j: g.e(f"buffer_load_dwordx4 v{vWOD+j}, {sr(S_WON)}, s{sKWO} offen offset:{1024*j}{NTO} lds"))
            G_.mem[vp[2*j+1]]=(lambda j=j,u=u: o_1((u+OL)&3,j,S_ON))
        rend=opt.get("o_rend",30)
        for n_,(js,nt,hf) in enumerate(RD):
            G_.put_mem(n_*rend/32.0,lambda js=js,nt=nt,hf=hf,u=u: a_read2(u+1,js,nt,hf))
        M=[]
        for js in range(2):
            for nt in range(8):
                for rt in range(2):
                    d=OACC+(rt*8+nt)*4
                    txt=f"v_mfma_f32_16x16x32_bf16 {ar(d)}, {ar(64*(u&1)+(js*8+nt)*4)}, {vr(OF+(u&3)*16+(rt*2+js)*4)}, {ar(d)}"
                    if rt==0: M.append(lambda txt=txt,u=u,js=js,nt=nt: (g.lgwait(('A',u&1,js,nt)), g.e(txt)))
                    else: M.append(txt)
        G_.emit(g,M)
    save=list(g.L)
    for u in range(8): body(u)
    lg_end=list(g.lg)
    g.L=save; g.lg=list(lg_end)
    g.e("s_waitcnt lgkmcnt(0)")
    if opt.get("steps"): g.e("v_mov_b32 v62, 0\ns_memtime s[98:99]\ns_waitcnt lgkmcnt(0)")
    g.label("L_O_LOOP")
    for u in range(8): body(u)
    assert g.lg==lg_end
    g.e(f"s_add_u32 s{sJ}, s{sJ}, 8\ns_cmp_lt_u32 s{sJ}, {NCH}\ns_cbranch_scc1 L_O_LOOP\ns_waitcnt lgkmcnt(0)")
    tick_store(); stamp()
    g.e("s_nop 7")
    for rt in range(2):
        if rt==1: g.e(f"s_add_u32 s{sEXW}, s{sEXW}, 4096")
        for m in range(4):
            d=OACC+(rt*8+4+m)*4
            g.e(f"buffer_store_dwordx4 {ar(d)}, v{vOS}, {sr(S_O)}, s{sEXW} offen offset:{m*1024} sc1")
    for rt in range(2):
        for m in range(4):
            for q in range(4): g.e(f"v_accvgpr_read_b32 v{128+(rt*4+m)*4+q}, a{OACC+(rt*8+m)*4+q}")
    g.e(f"""
    v_lshrrev_b32 v3, 4, v0
    v_and_b32 v4, 15, v0
    v_lshlrev_b32 v5, 3, v3
    v_lshl_add_u32 v52, v4, 12, v5
    s_lshl_b32 s{sCNT}, s{sW}, 2
    s_add_u32 s{sCNT}, s{sCNT}, 16
    s_waitcnt vmcnt(0)
    """)
    flag_store(f"s{sCNT}")
    g.e(f"""
    s_xor_b32 s{sT0}, s2, 128
    s_lshl_b32 s{sT0}, s{sT0}, 7
    s_add_u32 s{sT0}, s{sT0}, {FLAG_OFF}
    s_add_u32 s{sT0}, s{sT0}, s{sCNT}
    v_mov_b32 v1, s{sT0}
    s_mov_b32 s{sCNT}, 0
    s_mov_b64 exec, 1
    L_X_POLL:
    global_load_dword v3, v1, s[{sWS}:{sWS+1}] sc1
    s_add_u32 s{sCNT}, s{sCNT}, 1
    s_waitcnt vmcnt(0)
    v_readfirstlane_b32 s{sT0}, v3
    s_cmp_gt_u32 s{sCNT}, 0x40000
    s_cbranch_scc1 L_X_POLLX
    s_cmp_lg_u32 s{sT0}, s{sNONCE}
    s_cbranch_scc1 L_X_POLL
    L_X_POLLX:
    s_mov_b64 exec, -1
    """)
    for rt in range(2):
        if rt==1: g.e(f"s_add_u32 s{sEXR}, s{sEXR}, 4096")
        for m in range(4):
            r=192+(rt*4+m)*4
            g.e(f"buffer_load_dwordx4 {vr(r)}, v{vOS}, {sr(S_O)}, s{sEXR} offen offset:{m*1024} sc1")
    for rt in range(2):
        if rt==1: g.e(f"s_add_u32 s{sOUTB}, s{sOUTB}, 0x10000")
        for m in range(4):
            d=128+(rt*4+m)*4; r=192+(rt*4+m)*4
            if rt==0 and m==0: g.e("s_waitcnt vmcnt(0)")
            for q in range(4): g.e(f"v_add_f32 v{d+q}, v{d+q}, v{r+q}")
            g.e(f"""v_cvt_pk_bf16_f32 v{d}, v{d}, v{d+1}
            v_cvt_pk_bf16_f32 v{d+1}, v{d+2}, v{d+3}
            buffer_store_dwordx2 v[{d}:{d+1}], v52, {sr(S_OUT)}, s{sOUTB} offen offset:{m*32}{opt.get("st_out","")}""")
    stamp()
    if opt.get("stamps"):
        g.e("s_waitcnt vmcnt(0)")
        g.e(f"s_mov_b32 s{sSEGN}, 10")
        stamp()
    g.label("L_END")
    g.e("s_endpgm")
    return g.text()

def build(opt):
    s="; @launch grid=(256,1,1) block=(256,1,1) lds=163840\n"
    s+='.amdgcn_target "amdgcn-amd-amdhsa--gfx950"\n'
    s+=f".text\n.globl {KN}\n.p2align 8\n.type {KN},@function\n{KN}:\n"
    s+=gen(opt)
    s+=f""".section .rodata,"a"
.p2align 6
.amdhsa_kernel {KN}
  .amdhsa_next_free_vgpr 512
  .amdhsa_next_free_sgpr 102
  .amdhsa_accum_offset 256
  .amdhsa_group_segment_fixed_size 0
  .amdhsa_kernarg_size 104
  .amdhsa_user_sgpr_count 2
  .amdhsa_user_sgpr_kernarg_segment_ptr 1
  .amdhsa_system_sgpr_workgroup_id_x 1
.end_amdhsa_kernel
"""
    return s
if __name__=="__main__":
    opt=json.loads(sys.argv[2]) if len(sys.argv)>2 else {}
    open(sys.argv[1],"w").write(build(opt))
```

```python
import sys, struct, math, json
from gl import *
KN="concat_heads__mha_block_cached__mha_block_cached__near_ridge_kernel"
C_SCALE=struct.unpack("<I",struct.pack("<f",math.log2(math.e)/math.sqrt(128.0)))[0]
K1=1024; MB=K1*K1
EXCH_OFF=16*MB; FLAG_OFF=24*MB+512*K1; STAMP_OFF=32*MB
SLOT=16384; LA=7; NPRE=3
WQBASE=48*K1; XBASE=96*K1
WO_AREA=[128*K1,144*K1,96*K1,112*K1]; WO_RB=96*K1

def gen(opt):
    opt=dict(opt); opt.setdefault('thra',4); opt.setdefault('thra_skip',3); opt.setdefault('late',1)
    g=G()
    S=lambda txt: (lambda: g.e(txt))
    NT=opt.get('nt_kv',' nt')
    NTX=opt.get("nt_x",""); NTW=opt.get("nt_wq"," nt"); NTO=opt.get("nt_wo",""); NTOO=opt.get("nt_o"," sc1"); STO=opt.get("st_o"," sc1")
    FULL=opt.get("fullrot",0); KM=15 if FULL else 7
    NWOP=opt.get("nwop",7)
    KREG={int(k):v for k,v in opt.get("kreg",{}).items()}
    KRI={c:n for n,c in enumerate(sorted(KREG.values()))}
    KPRE={int(k):v for k,v in opt.get("kpre",{10:0,12:1,14:2}).items()}
    sPA=7;sKRG=7;sSIG=3;sKRO=100;sJ=4;sLAST=5;sCNT=6
    S_X=8;S_WQ=12;S_K=16;S_V=20;S_KN=24;S_O=28;S_WO=32;S_OUT=36;S_WON=40
    sW=44;sBR=45;sH=46;sBG=47;sRB=48;sCB=49;sKH=50;sPHI=51;sPHO=52
    sWQB=53;sKX=54;sKW=55;sXT=56;sWT=57;sT0=58;sT1=59
    sCUR=60;sNXT=61;sITEM=62;sOB=63;sC=64;sWOFF=65;sXL=66;sWL=67
    sMASK=68
    sXB=70
    sNONCE=74;sWOB=75;sOOB=76;sKWO=77;sKO=78;sWLO=79;sOLO=80;sOUTB=81;sEXW=82;sEXR=83
    S_ON=84
    sSEGN=89; sWS=90; sDBG=92; sSTB=94
    vKD=8; vVD=12; vKR=14; vVR=22; vOS=38; vOS1=39; vWOD=40; vPA=44; vTCH=45; sTCH=88
    vXD=46; vXR=48; vWD=50; vWR=54
    TA=52; vWOR=46
    QF=64; ACC=128
    OA=128; LAcc=160; ONES=168; QCUR=172; OACC=192
    def stamp():
        if not opt.get("stamps"): return
        g.e(f"""
        s_memrealtime s[96:97]
        s_memtime s[98:99]
        s_waitcnt lgkmcnt(0)
        v_mov_b32 v2, s96
        v_mov_b32 v3, s98
        s_lshl_b32 s96, s2, 7
        s_lshl_b32 s97, s{sSEGN}, 3
        s_add_u32 s96, s96, s97
        v_mov_b32 v1, s96
        global_store_dwordx2 v1, v[2:3], s[{sSTB}:{sSTB+1}]
        s_add_u32 s{sSEGN}, s{sSEGN}, 1
        """)
        g.lg=[]
        g.vm.append('stamp') if False else None
    def tick(k):
        if opt.get("steps"):
            g.e(f"s_memtime s[96:97]\ns_waitcnt lgkmcnt(0)\nv_writelane_b32 v62, s96, {k}"); g.lg=[]
    def tick_store():
        if opt.get("steps"):
            g.e(f"s_lshl_b32 s96, s2, 12\ns_lshl_b32 s97, s{sSEGN}, 8\ns_add_u32 s96, s96, s97\ns_add_u32 s96, s96, {MB}\nv_lshlrev_b32 v1, 2, v0\nv_add_u32 v1, s96, v1\nglobal_store_dword v1, v62, s[{sSTB}:{sSTB+1}]")
    if opt.get("stamps"): g.e("s_memrealtime s[88:89]\ns_waitcnt lgkmcnt(0)\ns_mov_b32 s101, s88")
    g.e(f"""
    s_cmp_ge_u32 s2, 256
    s_cbranch_scc1 L_END
    s_load_dwordx4 s[96:99], s[0:1], 80
    s_load_dwordx2 s[{sWS}:{sWS+1}], s[0:1], 96
    s_and_b32 s3, s2, 7                          ; xcd
    s_lshr_b32 s4, s2, 3                         ; idx
    s_lshr_b32 s{sBR}, s3, 2
    s_and_b32 s5, s3, 3
    s_lshl_b32 s5, s5, 3
    s_and_b32 s6, s4, 7
    s_add_u32 s{sH}, s5, s6
    s_lshr_b32 s{sBG}, s4, 3
    s_lshl_b32 s7, s{sBG}, 1
    s_add_u32 s7, s7, s6
    s_and_b32 s{sPHI}, s7, 7
    {"s_lshl_b32 s"+str(sPHI)+", s"+str(sPHI)+", 1" if FULL else ""}
    ; O mapping
    s_lshr_b32 s5, s3, 1
    s_and_b32 s5, s5, 1
    s_lshl_b32 s5, s5, 2
    s_and_b32 s6, s4, 3
    s_add_u32 s{sRB}, s5, s6
    s_and_b32 s5, s3, 1
    s_lshl_b32 s5, s5, 2
    s_lshr_b32 s7, s4, 2
    s_and_b32 s7, s7, 3
    s_add_u32 s{sCB}, s5, s7
    s_lshr_b32 s{sKH}, s4, 4
    s_add_u32 s{sPHO}, s6, s7
    s_and_b32 s{sPHO}, s{sPHO}, 3
    s_lshl_b32 s{sPHO}, s{sPHO}, 1
    s_mul_i32 s5, s{sBR}, 40
    s_add_u32 s4, s0, s5
    s_addc_u32 s5, s1, 0
    s_load_dwordx4 s[8:11], s[4:5], 0            ; x, k
    s_load_dwordx4 s[12:15], s[4:5], 16          ; v, wq
    s_load_dwordx2 s[16:17], s[4:5], 32          ; wo
    v_lshrrev_b32 v1, 6, v0
    v_and_b32 v0, 63, v0
    s_nop 0
    v_readfirstlane_b32 s{sW}, v1
    """)
    g.e(f"""
    v_lshrrev_b32 v1, 3, v0              ; r8
    v_and_b32 v2, 7, v0                  ; p8
    v_lshrrev_b32 v3, 4, v0              ; rr / g
    v_and_b32 v4, 15, v0                 ; p16 / q / key
    v_xor_b32 v5, v2, v3
    v_lshlrev_b32 v5, 4, v5
    v_lshl_add_u32 v{vXD}, v1, 11, v5
    v_xor_b32 v5, 64, v5
    v_lshl_add_u32 v5, v1, 11, v5
    v_add_u32 v{vXD+1}, {8*2048-1024}, v5
    v_lshrrev_b32 v5, 1, v4
    v_xor_b32 v5, v5, v3
    v_lshlrev_b32 v5, 4, v5
    v_lshl_add_u32 v5, v4, 7, v5
    s_lshl_b32 s{sXL}, s{sW}, 14
    s_add_u32 s{sXL}, s{sXL}, {XBASE}
    v_add_u32 v{vXR}, s{sXL}, v5
    v_xor_b32 v{vXR+1}, 64, v{vXR}
    v_and_b32 v5, 1, v3
    v_and_b32 v6, 2, v3
    v_lshl_or_b32 v5, v6, 1, v5          ; f0
    v_xor_b32 v5, v5, v4                 ; p ^ f0
    """)
    for j in range(4):
        g.e(f"""
        v_xor_b32 v6, {8*(j>>1)}, v5
        v_lshlrev_b32 v6, 4, v6
        v_lshl_add_u32 v6, v3, 13, v6
        v_add_u32 v{vWD+j}, {4*j*8192-1024*j}, v6
        """)
    g.e(f"""
    v_lshrrev_b32 v5, 2, v4              ; rp
    v_and_b32 v6, 3, v0                  ; c
    v_and_b32 v7, 1, v5
    v_and_b32 v1, 2, v5
    v_lshl_or_b32 v7, v1, 1, v7
    v_and_b32 v1, 1, v3
    v_lshl_or_b32 v7, v1, 3, v7          ; f
    v_xor_b32 v7, v7, v6                 ; c ^ f
    v_lshlrev_b32 v7, 4, v7
    v_and_b32 v1, 1, v6
    v_lshl_or_b32 v7, v1, 3, v7          ; + 8*(c&1)
    v_lshl_add_u32 v1, v3, 3, v5         ; 8kg+rp
    v_lshl_add_u32 v7, v1, 8, v7
    v_add_u32 v7, {WQBASE}, v7
    """)
    for dt in range(8):
        t,u=dt>>1,dt&1
        g.e(f"v_xor_b32 v{vWR+dt}, {(t<<6)^(u<<3)}, v7")
    for j in range(4):
        g.e(f"""
        v_add_u32 v5, {4*(j&1)}, v3
        v_lshlrev_b32 v5, 1, v5
        v_xor_b32 v5, v5, v4
        v_lshlrev_b32 v5, 4, v5
        v_lshl_add_u32 v5, v3, 11, v5
        v_add_u32 v{vWOD+j}, {4*j*2048-1024*j}, v5
        """)
    g.e(f"""
    s_lshl_b32 s{sT0}, s{sKH}, 4
    v_add_u32 v5, s{sT0}, v4             ; h = 16kh + t
    v_lshrrev_b32 v6, 3, v5              ; h>>3
    s_lshl_b32 s{sT0}, s{sBR}, 2
    v_add_u32 v6, s{sT0}, v6             ; xcd'
    v_and_b32 v5, 7, v5
    s_lshr_b32 s{sT0}, s{sRB}, 1
    s_lshl_b32 s{sT0}, s{sT0}, 3
    v_add_u32 v5, s{sT0}, v5             ; idx'
    v_lshl_add_u32 v5, v5, 3, v6         ; wg'
    v_lshlrev_b32 v5, 7, v5
    s_mov_b32 s{sT0}, {FLAG_OFF}
    v_add_u32 v{vPA}, s{sT0}, v5
    """)
    for j in range(4):
        g.e(f"""
        v_add_u32 v5, {4*j}, v3
        v_xor_b32 v5, v5, v4
        v_lshlrev_b32 v5, 4, v5
        v_lshl_add_u32 v{vKD+j}, v3, 8, v5
        """)
    g.e(f"""
    v_xor_b32 v5, v3, v4
    v_lshlrev_b32 v5, 4, v5
    v_lshl_add_u32 v5, v4, 8, v5
    """)
    for t in range(4): g.e(f"v_xor_b32 v{vKR+t}, {t<<6}, v5\nv_add_u32 v{vKR+4+t}, 0x10000, v{vKR+t}")
    for jp in range(2):
        g.e(f"""
        v_add_u32 v5, {4*jp}, v3
        v_lshlrev_b32 v5, 1, v5
        v_xor_b32 v5, v5, v4
        v_lshlrev_b32 v5, 4, v5
        v_lshl_add_u32 v{vVD+jp}, v3, 8, v5
        """)
    g.e(f"""
    v_lshrrev_b32 v5, 2, v4              ; rp
    v_and_b32 v6, 3, v0                  ; c
    v_and_b32 v7, 1, v3
    v_lshl_add_u32 v7, v7, 2, v5         ; 4(g&1)+rp
    v_lshlrev_b32 v7, 1, v7
    v_lshrrev_b32 v1, 1, v6
    v_xor_b32 v7, v7, v1
    v_lshlrev_b32 v7, 4, v7
    v_and_b32 v1, 1, v6
    v_lshl_or_b32 v7, v1, 3, v7
    v_lshl_add_u32 v1, v3, 2, v5         ; 4g+rp
    v_lshl_add_u32 v7, v1, 8, v7
    """)
    for dt in range(8): g.e(f"v_xor_b32 v{vVR+dt}, {dt<<5}, v7\nv_add_u32 v{vVR+8+dt}, 0x10000, v{vVR+dt}")
    g.e(f"v_lshlrev_b32 v{vTCH}, 7, v0")
    g.e(f"s_and_b32 s{sT0}, s2, 3\ns_lshl_b32 s{sT0}, s{sT0}, 5\ns_lshr_b32 s{sT1}, s2, 3\ns_add_u32 s{sT0}, s{sT0}, s{sT1}\ns_lshl_b32 s{sTCH}, s{sT0}, 16\ns_lshl_b32 s{sT0}, s{sW}, 14\ns_add_u32 s{sTCH}, s{sTCH}, s{sT0}")
    g.e(f"v_lshlrev_b32 v{vOS}, 4, v0\nv_add_u32 v{vOS1}, 0x20000, v{vOS}\nv_mov_b32 v1, 0x3f803f80")
    for r in range(4): g.e(f"v_accvgpr_write_b32 a{ONES+r}, v1")
    g.e("s_waitcnt lgkmcnt(0)")
    def mk(s,lo,hi,size): g.e(f"s_mov_b32 s{s}, s{lo}\ns_and_b32 s{s+1}, s{hi}, 0xffff\ns_mov_b32 s{s+2}, {size}\ns_mov_b32 s{s+3}, 0x20000")
    g.e(f"s_mov_b32 s{sDBG}, s98\ns_mov_b32 s{sDBG+1}, s99")
    mk(S_OUT,96,97,4*MB); mk(S_WO,16,17,8*MB); mk(S_WON,16,17,8*MB); mk(S_V,12,13,64*MB)
    mk(S_K,10,11,64*MB); mk(S_KN,10,11,64*MB)
    g.e(f"s_mov_b32 s4, s14\ns_mov_b32 s5, s15\ns_and_b32 s{S_X+1}, s9, 0xffff\ns_mov_b32 s{S_X+2}, {2*MB}\ns_mov_b32 s{S_X+3}, 0x20000")
    mk(S_WQ,4,5,8*MB); mk(S_O,sWS,sWS+1,32*MB); mk(S_ON,sWS,sWS+1,32*MB)
    g.e(f"""
    s_add_u32 s{sSTB}, s{sWS}, {STAMP_OFF}
    s_addc_u32 s{sSTB+1}, s{sWS+1}, 0
    s_mov_b32 s{sSEGN}, 0
    s_lshl_b32 s{sWOFF}, s{sW}, 12
    s_add_u32 s{sWL}, s{sWOFF}, {WQBASE}
    s_lshl_b32 s{sT0}, s{sBG}, 19
    s_lshl_b32 s{sT1}, s{sW}, 15
    s_add_u32 s{sXB}, s{sT0}, s{sT1}
    s_add_u32 s{sXB+1}, s{sXB}, 0x20000
    s_add_u32 s{sXB+2}, s{sXB}, 0x40000
    s_add_u32 s{sXB+3}, s{sXB}, 0x60000
    s_lshl_b32 s{sT0}, s{sW}, 17
    s_lshl_b32 s{sT1}, s{sH}, 8
    s_add_u32 s{sWQB}, s{sT0}, s{sT1}
    """)
    if opt.get("stamps"):
        g.e(f"v_mov_b32 v2, s101\nv_mov_b32 v3, 0\ns_lshl_b32 s96, s2, 7\ns_add_u32 s96, s96, 120\nv_mov_b32 v1, s96\nglobal_store_dwordx2 v1, v[2:3], s[{sSTB}:{sSTB+1}]")
    stamp()
    def late_setup():
        g.e(f"""
        s_mov_b32 s{sC}, {C_SCALE}
        s_mov_b32 s{sMASK}, 0xffff0000
        s_mov_b32 s{sMASK+1}, 0xffff0000
        s_lshl_b32 s{sT0}, s{sBG}, 24
        s_lshl_b32 s{sT1}, s{sH}, 17
        s_add_u32 s{sCUR}, s{sT0}, s{sT1}
        s_add_u32 s{sCUR}, s{sCUR}, s{sWOFF}
        s_add_u32 s{sNXT}, s{sCUR}, 0x400000
        s_lshl_b32 s{sT0}, s{sBR}, 23
        s_lshl_b32 s{sT1}, s{sBG}, 21
        s_add_u32 s{sOB}, s{sT0}, s{sT1}
        s_lshl_b32 s{sT0}, s{sW}, 17
        s_add_u32 s{sOB}, s{sOB}, s{sT0}
        s_lshl_b32 s{sT0}, s{sH}, 12
        s_add_u32 s{sOB}, s{sOB}, s{sT0}
        s_lshl_b32 s{sT0}, s{sKH}, 22
        s_lshl_b32 s{sT1}, s{sW}, 15
        s_add_u32 s{sWOB}, s{sT0}, s{sT1}
        s_lshl_b32 s{sT0}, s{sCB}, 8
        s_add_u32 s{sWOB}, s{sWOB}, s{sT0}
        s_lshl_b32 s{sT0}, s{sRB}, 3
        s_lshl_b32 s{sT1}, s{sW}, 1
        s_add_u32 s{sT0}, s{sT0}, s{sT1}            ; 8rb+2w
        s_lshl_b32 s{sOUTB}, s{sT0}, 16
        s_lshl_b32 s{sOOB}, s{sT0}, 17
        s_lshl_b32 s{sT1}, s{sBR}, 23
        s_add_u32 s{sOOB}, s{sOOB}, s{sT1}
        s_lshl_b32 s{sT1}, s{sKH}, 16
        s_add_u32 s{sOOB}, s{sOOB}, s{sT1}
        s_lshl_b32 s{sT1}, s{sBR}, 11
        s_add_u32 s{sOUTB}, s{sOUTB}, s{sT1}
        s_lshl_b32 s{sT1}, s{sCB}, 8
        s_add_u32 s{sOUTB}, s{sOUTB}, s{sT1}
        s_lshl_b32 s{sT1}, s{sKH}, 7
        s_add_u32 s{sOUTB}, s{sOUTB}, s{sT1}
        s_lshl_b32 s{sT1}, s{sW}, 13
        s_lshl_b32 s{sEXW}, s2, 15
        s_add_u32 s{sEXW}, s{sEXW}, s{sT1}
        s_add_u32 s{sEXW}, s{sEXW}, {EXCH_OFF}
        s_xor_b32 s{sEXR}, s2, 128
        s_lshl_b32 s{sEXR}, s{sEXR}, 15
        s_add_u32 s{sEXR}, s{sEXR}, s{sT1}
        s_add_u32 s{sEXR}, s{sEXR}, {EXCH_OFF}
        s_lshr_b32 s{sT0}, s2, {opt.get("krot_sh",3)}
        s_and_b32 s{sT0}, s{sT0}, 7
        s_lshl_b32 s{sKRO}, s{sT0}, 14
        s_mov_b32 s{sITEM}, 0
        s_mov_b32 s{sNONCE}, 0
        s_mov_b32 s{sPA}, 0
        s_mov_b32 s{sSIG}, 0
        s_cmp_lg_u32 s{sW}, 0
        s_cbranch_scc1 L_NONCE_DONE
        s_memrealtime s[96:97]
        s_waitcnt lgkmcnt(0)
        s_or_b32 s96, s96, 1
        v_mov_b32 v4, s96
        v_mov_b32 v5, 0
        v_accvgpr_write_b32 a164, v4
        v_accvgpr_write_b32 a165, v5
        s_mov_b64 exec, 1
        global_atomic_cmpswap a166, v5, a[164:165], s[{sDBG}:{sDBG+1}] sc0
        s_mov_b64 exec, -1
        L_NONCE_DONE:
        """)
    def flag_store(off):
        g.e(f"""
        s_lshl_b32 s{sT0}, s2, 7
        s_add_u32 s{sT0}, s{sT0}, {FLAG_OFF}
        s_add_u32 s{sT0}, s{sT0}, {off}
        v_mov_b32 v1, s{sT0}
        v_mov_b32 v3, s{sNONCE}
        s_mov_b64 exec, 1
        global_store_dword v1, v3, s[{sWS}:{sWS+1}] sc1
        s_mov_b64 exec, -1
        """)
    nsig=[0]
    def pending_signal():
        nsig[0]+=1; n=nsig[0]
        g.e(f"""
        s_cmp_eq_u32 s{sSIG}, 0
        s_cbranch_scc1 L_SG{n}
        s_cmp_lg_u32 s{sW}, 0
        s_cbranch_scc1 L_SGX{n}
        s_sub_u32 s{sCNT}, s{sSIG}, 1
        s_lshl_b32 s{sCNT}, s{sCNT}, 2
        """)
        flag_store(f"s{sCNT}")
        g.e(f"L_SGX{n}:\ns_mov_b32 s{sSIG}, 0\nL_SG{n}:")
    def kv_soff(dst,base,ch):
        if opt.get("krot"):
            return f"s_add_u32 s{dst}, s{sKRO}, {ch*16384}\ns_and_b32 s{dst}, s{dst}, 0x1ffff\ns_add_u32 s{dst}, s{dst}, s{base}"
        return f"s_add_u32 s{dst}, s{base}, {ch*16384}"
    def kv_group(cc):
        if cc<8: srdn,base,vo,ch=S_K,sCUR,[vKD+j for j in range(4)],cc
        elif cc<16: srdn,base,vo,ch=S_V,sCUR,[vVD+(j&1) for j in range(4)],cc-8
        else: srdn,base,vo,ch=S_KN,sNXT,[vKD+j for j in range(4)],cc-16
        return (f"s_add_u32 m0, s{sWOFF}, {(cc&7)*SLOT}\n"+kv_soff(sT1,base,ch),
                [f"buffer_load_dwordx4 v{vo[j]}, {sr(srdn)}, s{sT1} offen offset:{1024*j}{NT} lds" for j in range(4)])
    def wo_group(c,track,srdn=S_WO):
        g.e(f"s_add_u32 s{sT1}, s{sPHO}, {c}\ns_and_b32 s{sT1}, s{sT1}, 7\ns_lshl_b32 s{sT1}, s{sT1}, 17\ns_add_u32 m0, s{sWOFF}, {(c&7)*SLOT}\ns_add_u32 s{sT1}, s{sT1}, s{sWOB}")
        for j in range(4):
            t=f"buffer_load_dwordx4 v{vWOD+j}, {sr(srdn)}, s{sT1} offen offset:{1024*j}{NTO} lds"
            g.vmop(t,('wo',c)) if track else g.e(t)
    def kidx(s,dst,shift):
        g.e(f"s_add_u32 s{sT0}, s{sPHI}, {s}\ns_and_b32 s{sT0}, s{sT0}, {KM}\ns_or_b32 s{sT0}, s{sT0}, {0 if FULL else s&8}\ns_lshl_b32 s{dst}, s{sT0}, {shift}")
    def x_dma(s,i):
        slot=(s&1)*4+i
        g.e(f"s_add_u32 m0, s{sXL}, {slot*2048}\ns_add_u32 s{sT1}, s{sXB+i}, s{sKX}")
        for j in range(2): g.vmop(f"buffer_load_dwordx4 v{vXD+j}, {sr(S_X)}, s{sT1} offen offset:{1024*j}{NTX} lds",('x',s,i))
    def wq_dma(s):
        g.e(f"s_add_u32 m0, s{sWL}, {(s%3)*16384}\ns_add_u32 s{sT1}, s{sWQB}, s{sKW}")
        for j in range(4): g.vmop(f"buffer_load_dwordx4 v{vWD+j}, {sr(S_WQ)}, s{sT1} offen offset:{1024*j}{NTW} lds",('wq',s))
    def a_read(s,ks,dt,hf):
        r=64*(s&1)+(ks*8+dt)*4+2*hf
        g.lgop(f"ds_read_b64_tr_b16 a[{r}:{r+1}], v{vWR+dt} offset:{(s%3)*16384+ks*8192+hf*1024}",('A',s))
    def b_read(s,i,ks):
        n=s*4+i
        r=128+(n&1)*8+ks*4
        g.lgop(f"ds_read_b128 a[{r}:{r+3}], v{vXR+ks} offset:{((s&1)*4+i)*2048}",('B',s,i))
    tick(40)
    kidx(0,sKW,19); wq_dma(0)
    kidx(0,sKX,7)
    for i in range(4): x_dma(0,i)
    kidx(1,sKW,19); wq_dma(1)
    if not opt.get("qpro",0):
        kidx(1,sKX,7)
        for i in range(4): x_dma(1,i)
        kidx(2,sKW,19); wq_dma(2)
    late_setup()
    g.vmwait(('wq',0))
    g.e("s_barrier")
    AR=[(ks,dt,hf) for ks in range(2) for dt in range(8) for hf in range(2)]
    for (ks,dt,hf) in AR: a_read(0,ks,dt,hf)
    g.vmwait(('x',0,0))
    b_read(0,0,0); b_read(0,0,1)
    if opt.get("qpro",0):
        kidx(1,sKX,7)
        for i in range(4): x_dma(1,i)
        kidx(2,sKW,19); wq_dma(2)
    g.e(f"""s_add_u32 s{sT0}, s{sPHI}, 2
    s_and_b32 s{sT0}, s{sT0}, {KM}
    s_lshl_b32 s{sKX}, s{sT0}, 7
    s_add_u32 s{sT0}, s{sPHI}, 3
    s_and_b32 s{sT0}, s{sT0}, {KM}
    s_lshl_b32 s{sKW}, s{sT0}, 19""")
    for s in range(16):
        if s+1<16: g.vmwait(('wq',s+1))
        g.lgwait(('A',s))
        g.e("s_barrier")
        tick(s)
        G_=Gaps(64)
        dpos=opt.get("dpos",[2,7,12,17,23,28,34,39,45,50,56,61])
        if s+3<16:
            if (s+3)==8 and not FULL: G_.put_post(0,S(f"s_add_u32 s{sWQB}, s{sWQB}, {8<<19}"))
            G_.put_post(dpos[0]-2,S(f"s_add_u32 s{sWT}, s{sWQB}, s{sKW}"))
            G_.put_post(dpos[0]-1,S(f"s_add_u32 m0, s{sWL}, {((s+3)%3)*16384}"))
            for j in range(4):
                G_.mem[dpos[j]]=(lambda j=j,s=s: g.vmop(f"buffer_load_dwordx4 v{vWD+j}, {sr(S_WQ)}, s{sWT} offen offset:{1024*j}{NTW} lds",('wq',s+3)))
            G_.put_post(dpos[3],S(f"s_add_u32 s{sKW}, s{sKW}, {1<<19}"))
            G_.put_post(dpos[3]+1,S(f"s_and_b32 s{sKW}, s{sKW}, {KM<<19}"))
        if s+2<16:
            for i in range(4):
                p=dpos[4+2*i]
                if (s+2)==8 and not FULL: G_.put_post(p-3,S(f"s_add_u32 s{sXB+i}, s{sXB+i}, 1024"))
                G_.put_post(p-2,S(f"s_add_u32 s{sXT}, s{sXB+i}, s{sKX}"))
                G_.put_post(p-1,S(f"s_add_u32 m0, s{sXL}, {((s&1)*4+i)*2048}"))
                for j in range(2):
                    G_.mem[dpos[4+2*i+j]]=(lambda j=j,s=s,i=i: g.vmop(f"buffer_load_dwordx4 v{vXD+j}, {sr(S_X)}, s{sXT} offen offset:{1024*j}{NTX} lds",('x',s+2,i)))
            G_.put_post(dpos[11],S(f"s_add_u32 s{sKX}, s{sKX}, 128"))
            G_.put_post(dpos[11]+1,S(f"s_and_b32 s{sKX}, s{sKX}, {KM<<7}"))
        if s in KPRE:
            c=KPRE[s]
            for j,p in enumerate(opt.get("kpos",[19,30,41,52])):
                G_.put_post(p-2,S(kv_soff(sT1,sCUR,c)))
                G_.put_post(p-1,S(f"s_add_u32 m0, s{sWOFF}, {c*SLOT}"))
                assert G_.mem[p] is None
                G_.mem[p]=(lambda j=j,c=c: g.vmop(f"buffer_load_dwordx4 v{vKD+j}, {sr(S_K)}, s{sT1} offen offset:{1024*j}{NT} lds",('kv',c)))
        if s in KREG:
            c=KREG[s]
            for j,p in enumerate(opt.get("kpos",[19,30,41,52])):
                if j==0: G_.put_post(p-2,S(f"s_add_u32 s{sKRG}, s{sCUR}, {c*16384}"))
                assert G_.mem[p] is None
                r=OACC+16*KRI[c]+4*j
                G_.mem[p]=(lambda j=j,r=r: g.e(f"buffer_load_dwordx4 {ar(r)}, v{vKD+j}, {sr(S_K)}, s{sKRG} offen offset:{1024*j}{NT}"))
        WT={int(k):v for k,v in opt.get("wotouch",{}).items()}
        if s in WT:
            n_=WT[s]; p=20
            assert G_.mem[p] is None
            G_.put_post(p-2,S(f"s_add_u32 s{sT1}, s{sTCH}, {n_*8192}"))
            G_.put_post(p-1,S(f"s_add_u32 m0, s{sWOFF}, {2*SLOT}"))
            G_.mem[p]=(lambda: g.vmop(f"buffer_load_dword v{vTCH}, {sr(S_WO)}, s{sT1} offen lds",('tch',)))
        for i in range(4):
            nxt=(s,i+1) if i<3 else ((s+1,0) if s+1<16 else None)
            if nxt:
                q=G_.put_mem(16*i+opt.get("bpos",4),lambda nxt=nxt: b_read(nxt[0],nxt[1],0),lo=16*i,hi=16*i+16)
                G_.put_pre(q,lambda nxt=nxt: g.vmwait(('x',)+nxt))
                G_.put_mem(q+1,lambda nxt=nxt: b_read(nxt[0],nxt[1],1),lo=q+1,hi=16*i+16)
        if s+1<16:
            aend=opt.get("aend",56)
            for n_,(ks,dt,hf) in enumerate(AR):
                G_.put_mem(n_*aend/32.0,lambda ks=ks,dt=dt,hf=hf,s=s: a_read(s+1,ks,dt,hf),hi=62)
        M=[]
        for i in range(4):
            n=s*4+i
            for ks in range(2):
                for dt in range(8):
                    d=ACC+(i*8+dt)*4
                    txt=f"v_mfma_f32_16x16x32_bf16 {vr(d)}, {ar(64*(s&1)+(ks*8+dt)*4)}, {ar(128+(n&1)*8+ks*4)}, {'0' if (s==0 and ks==0) else vr(d)}"
                    if ks==0 and dt==0: M.append(lambda txt=txt,s=s,i=i: (g.lgwait(('B',s,i)), g.e(txt)))
                    else: M.append(txt)
        G_.emit(g,M)
    tick(16)
    if KREG: g.e("s_waitcnt vmcnt(0)")
    g.e("s_barrier")
    if KREG:
        g.e(f"v_add_u32 v1, s{sWOFF}, v{vOS}\nv_add_u32 v3, 0x10000, v1")
        for c in sorted(KREG.values()):
            for j in range(4):
                r=OACC+16*KRI[c]+4*j
                off=c*SLOT+j*1024
                if off<65536: g.e(f"ds_write_b128 v1, {ar(r)} offset:{off}")
                else: g.e(f"ds_write_b128 v3, {ar(r)} offset:{off-65536}")
            if c==3: pass
    rest=[cc for cc in range(LA) if cc not in KPRE.values() and cc not in KREG.values()]
    late=rest[-opt.get("late",0):] if opt.get("late",0) else []
    for cc in rest:
        if cc in late: continue
        h,dm=kv_group(cc); g.e(h)
        for l in dm: g.e(l)
    for i in range(4):
        for t in range(4):
            bx=ACC+(i*8+2*t)*4; by=bx+4; F=QF+16*i+4*t
            g.e(f"""
            v_cvt_pk_bf16_f32 v56, v{bx}, v{bx+1}
            v_cvt_pk_bf16_f32 v57, v{bx+2}, v{bx+3}
            v_cvt_pk_bf16_f32 v58, v{by}, v{by+1}
            v_cvt_pk_bf16_f32 v59, v{by+2}, v{by+3}
            v_cndmask_b32 v{F}, v56, v58, s[{sMASK}:{sMASK+1}]
            v_cndmask_b32 v{F+1}, v57, v59, s[{sMASK}:{sMASK+1}]
            v_cndmask_b32 v{F+2}, v58, v56, s[{sMASK}:{sMASK+1}]
            v_cndmask_b32 v{F+3}, v59, v57, s[{sMASK}:{sMASK+1}]
            """)
    for cc in late:
        h,dm=kv_group(cc); g.e(h)
        for l in dm: g.e(l)
    if KREG: g.e("s_waitcnt lgkmcnt(0)")
    tick(17); tick_store(); stamp()
    g.label("L_ITEM")
    g.vm=[]; g.lg=[]
    tick(40)
    g.e(f"s_cmp_lt_u32 s{sITEM}, 3\ns_cselect_b32 s{S_KN+2}, {64*MB}, 0\ns_cselect_b32 s{sLAST}, 0, 1")
    for n in range(4):
        g.e(f"s_cmp_eq_u32 s{sITEM}, {n}\ns_cbranch_scc0 L_QC{n}")
        for r in range(16): g.e(f"v_accvgpr_write_b32 a{QCUR+r}, v{QF+16*n+r}")
        g.label(f"L_QC{n}")
    MX=4
    def pcalc(J):
        b=ACC+8*J
        L=[f"v_fma_f32 v{TA+r}, v{b+r}, s{sC}, -v4" for r in range(8)]
        L+=[f"v_exp_f32 v{TA+r}, v{TA+r}" for r in range(8)]
        L+=[f"v_cvt_pk_bf16_f32 v{ACC+4*J+r}, v{TA+2*r}, v{TA+2*r+1}" for r in range(4)]
        return L
    def reads(c):
        st=c&1; sl=c&7; hi=sl>=4; so=(sl&3)*SLOT; R=[]
        if c<8:
            for kt in range(4):
                for t in range(4):
                    R.append(lambda kt=kt,t=t: g.lgop(f"ds_read_b128 {ar(64*st+(kt*4+t)*4)}, v{vKR+(4 if hi else 0)+t} offset:{so+kt*4096}",('F',c,kt)))
        else:
            for js in range(2):
                for dt in range(8):
                    for hf in range(2):
                        r=64*st+(js*8+dt)*4+2*hf
                        R.append(lambda r=r,js=js,dt=dt,hf=hf: g.lgop(f"ds_read_b64_tr_b16 a[{r}:{r+1}], v{vVR+(8 if hi else 0)+dt} offset:{so+js*8192+hf*4096}",('F',c,js*8+dt)))
        return R
    g.e(f"s_waitcnt vmcnt({4*(LA-1)})\ns_barrier")
    for f in reads(0): f()
    for c in range(16):
        cc=c+LA
        if c<15: g.e(f"s_waitcnt vmcnt({4*(LA-2)})")
        if opt.get("thra") is not None and c<15:
            if c<opt.get("thra_skip",0):
                g.e(f"s_cmp_eq_u32 s{sITEM}, 0\ns_cbranch_scc1 L_TS{c}\ns_waitcnt vmcnt({opt['thra']})\nL_TS{c}:")
            else: g.e(f"s_waitcnt vmcnt({opt['thra']})")
        if opt.get("thr") is not None and c<15:
            g.e(f"s_bitcmp1_b32 s2, 0\ns_cbranch_scc{opt.get('thr_par',1)} L_TH{c}\ns_waitcnt vmcnt({opt['thr']})\nL_TH{c}:")
        g.e("s_barrier")
        tick(c)
        dm=[]
        if cc<16 or cc>=16+NWOP:
            h,dl=kv_group(cc); g.e(h); dm=[(lambda l=l: g.e(l)) for l in dl]
        else:
            k=cc-16
            g.e(f"s_cmp_eq_u32 s{sLAST}, 1\ns_cbranch_scc1 L_HO{k}")
            h,dl=kv_group(cc); g.e(h)
            for l in dl: g.e(l)
            g.e(f"s_branch L_HJ{k}")
            g.label(f"L_HO{k}")
            wo_group(k,False)
            g.label(f"L_HJ{k}")
        R=reads(c+1) if c<15 else []
        st=c&1; M=[]; VL=[]
        if c<8:
            for kt in range(4):
                T=4*c+kt; d=ACC+4*T
                for t in range(4):
                    txt=f"v_mfma_f32_16x16x32_bf16 {vr(d)}, {ar(64*st+(kt*4+t)*4)}, {ar(QCUR+4*t)}, {'0' if t==0 else vr(d)}"
                    M.append((lambda txt=txt,kt=kt,c=c: (g.lgwait(('F',c,kt)), g.e(txt))) if t==0 else txt)
            if c>0:
                for kt in range(4):
                    b=ACC+16*(c-1)+4*kt
                    if c==1: VL+=[f"v_max3_f32 v{MX+kt}, v{b}, v{b+1}, v{b+2}",f"v_max_f32 v{MX+kt}, v{MX+kt}, v{b+3}"]
                    else: VL+=[f"v_max3_f32 v{MX+kt}, v{MX+kt}, v{b}, v{b+1}",f"v_max3_f32 v{MX+kt}, v{MX+kt}, v{b+2}, v{b+3}"]
        else:
            cv=c-8
            for js in range(2):
                J=2*cv+js; P=ACC+4*J
                for dt in range(8):
                    d=OA+4*dt
                    txt=f"v_mfma_f32_16x16x32_bf16 {ar(d)}, {ar(64*st+(js*8+dt)*4)}, {vr(P)}, {'0' if J==0 else ar(d)}"
                    M.append(lambda txt=txt,c=c,k=js*8+dt: (g.lgwait(('F',c,k)), g.e(txt)))
                M.append(f"v_mfma_f32_16x16x32_bf16 {ar(LAcc)}, {ar(ONES)}, {vr(P)}, {'0' if J==0 else ar(LAcc)}")
            if cv<7:
                for J in (2*cv+2,2*cv+3): VL+=pcalc(J)
        if c<7: pat=['tv','tv','tt','d']*4
        elif c==7: pat=['ttv','tt','ttv','dtt']*4
        else: pat=['ttv','ttv','ttv','dvvvv']*4+['ttttvv','ttttvv']
        ti=vi=di=0
        for m,p in zip(M,pat):
            m() if callable(m) else g.e(m)
            for ch in p:
                if ch=='t' and ti<len(R): R[ti](); ti+=1
                elif ch=='v' and vi<len(VL): g.e(VL[vi]); vi+=1
                elif ch=='d' and di<len(dm): dm[di](); di+=1
        while ti<len(R): R[ti](); ti+=1
        while di<len(dm): dm[di](); di+=1
        while vi<len(VL): g.e(VL[vi]); vi+=1
        if c==7:
            g.e("s_nop 7")
            for kt in range(4):
                b=ACC+16*7+4*kt
                g.e(f"v_max3_f32 v{MX+kt}, v{MX+kt}, v{b}, v{b+1}\nv_max3_f32 v{MX+kt}, v{MX+kt}, v{b+2}, v{b+3}")
            g.e(f"""
            v_max3_f32 v4, v4, v5, v6
            v_max_f32 v4, v4, v7
            v_mov_b32 v5, v4
            s_nop 1
            v_permlane16_swap_b32 v4, v5
            v_max_f32 v4, v4, v5
            v_mov_b32 v5, v4
            s_nop 1
            v_permlane32_swap_b32 v4, v5
            v_max_f32 v4, v4, v5
            v_mul_f32 v4, s{sC}, v4
            """)
            for J in (0,1):
                for l in pcalc(J): g.e(l)
    tick(16)
    g.e(f"s_nop 7\nv_accvgpr_read_b32 v4, a{LAcc}\ns_nop 0\nv_rcp_f32 v4, v4")
    for t in range(4):
        tb=128+16*t
        for r in range(8): g.e(f"v_accvgpr_read_b32 v{tb+r}, a{OA+8*t+r}")
        for r in range(8): g.e(f"v_mul_f32 v{tb+r}, v{tb+r}, v4")
        for r in range(4): g.e(f"v_cvt_pk_bf16_f32 v{tb+8+r}, v{tb+2*r}, v{tb+2*r+1}")
        if not opt.get("no_ostore"): g.e(f"buffer_store_dwordx4 {vr(tb+8)}, v{vOS}, {sr(S_O)}, s{sOB} offen offset:{t*1024}{STO}")
    g.e(f"""
    s_add_u32 s{sCUR}, s{sCUR}, 0x400000
    s_add_u32 s{sNXT}, s{sNXT}, 0x400000
    s_add_u32 s{sOB}, s{sOB}, 0x80000
    s_cmp_eq_u32 s{sLAST}, 1
    s_cbranch_scc0 L_A_DONE
    s_waitcnt vmcnt(0)
    s_barrier
    s_cmp_lg_u32 s{sW}, 0
    s_cbranch_scc1 L_A_DONE
    v_accvgpr_read_b32 v1, a166
    v_accvgpr_read_b32 v3, a164
    s_nop 0
    v_readfirstlane_b32 s{sT0}, v1
    v_readfirstlane_b32 s{sT1}, v3
    s_nop 3
    s_cmp_eq_u32 s{sT0}, 0
    s_cselect_b32 s{sNONCE}, s{sT1}, s{sT0}
    """)
    flag_store(0)
    g.e(f"L_A_DONE:\ns_add_u32 s{sITEM}, s{sITEM}, 1")
    tick(17); tick_store(); stamp()
    g.e(f"s_cmp_lt_u32 s{sITEM}, 4\ns_cbranch_scc1 L_ITEM")
    g.vm=[]; g.lg=[]
    tick(40)
    g.e(f"s_lshl_b32 s{sT0}, s{sKH}, 7")
    for dt in range(16): g.e(f"v_xor_b32 v{vWOR+dt}, s{sT0}, v{vVR+dt}")
    g.e("v_mov_b32 v1, 0")
    for r in range(64): g.e(f"v_accvgpr_write_b32 a{OACC+r}, v1")
    g.e(f"""
    s_cmp_lg_u32 s{sW}, 0
    s_cbranch_scc1 L_O_WAITB
    v_mov_b32 v1, {128*K1}
    v_mov_b32 v3, s{sNONCE}
    ds_write_b32 v1, v3
    s_mov_b32 s{sCNT}, 0
    s_mov_b64 exec, 0xffff
    L_O_POLL:
    global_load_dword v3, v{vPA}, s[{sWS}:{sWS+1}] sc1
    s_add_u32 s{sCNT}, s{sCNT}, 1
    s_waitcnt vmcnt(0)
    v_cmp_eq_u32 vcc, s{sNONCE}, v3
    s_cmp_gt_u32 s{sCNT}, 0x40000
    s_cbranch_scc1 L_O_POLLX
    s_nop 1
    s_cmp_lg_u32 vcc_lo, 0xffff
    s_cbranch_scc1 L_O_POLL
    L_O_POLLX:
    s_mov_b64 exec, -1
    s_waitcnt lgkmcnt(0)
    L_O_WAITB:
    s_barrier
    v_mov_b32 v1, {128*K1}
    ds_read_b32 v3, v1
    s_waitcnt lgkmcnt(0)
    v_readfirstlane_b32 s{sNONCE}, v3
    """)
    tick(41)
    if opt.get("stamps"):
        g.e(f"s_mov_b32 s101, s{sSEGN}\ns_mov_b32 s{sSEGN}, 9"); stamp(); g.e(f"s_mov_b32 s{sSEGN}, s101")
    OL=3; WL=NWOP; OF=128; NCH=32
    def o_1(st,k,srdn,tag=None):
        rt,js=k>>1,k&1
        r=OF+st*16+(rt*2+js)*4
        g.e(f"buffer_load_dwordx4 {vr(r)}, v{vOS if rt==0 else vOS1}, {sr(srdn)}, s{sKO} offen offset:{js*1024}{NTOO}")
    for c in range(OL):
        g.e(f"s_add_u32 s{sT0}, s{sPHO}, {c}\ns_and_b32 s{sT0}, s{sT0}, 7\ns_lshl_b32 s{sT0}, s{sT0}, 11\ns_add_u32 s{sKO}, s{sT0}, s{sOOB}")
        for k in range(4): o_1(c,k,S_O)
    RD=[(js,nt,hf) for js in range(2) for nt in range(8) for hf in range(2)]
    def a_read2(u,js,nt,hf):
        r=64*(u&1)+(js*8+nt)*4+2*hf
        sl=u&7
        g.lgop(f"ds_read_b64_tr_b16 a[{r}:{r+1}], v{vWOR+(8 if sl>=4 else 0)+nt} offset:{(sl&3)*SLOT+js*8192+hf*4096}",('A',u&1,js,nt))
    for (js,nt,hf) in RD: a_read2(0,js,nt,hf)
    g.e(f"""s_add_u32 s{sT0}, s{sPHO}, {WL}
    s_and_b32 s{sT0}, s{sT0}, 7
    s_lshl_b32 s{sWLO}, s{sT0}, 17
    s_add_u32 s{sT0}, s{sPHO}, {OL}
    s_and_b32 s{sT0}, s{sT0}, 7
    s_lshl_b32 s{sOLO}, s{sT0}, 11
    s_mov_b32 s{sJ}, 0""")
    def body(u):
        g.e(f"s_waitcnt vmcnt(8)")
        g.e("s_barrier")
        if opt.get("steps"): g.e(f"s_memtime s[96:97]\ns_waitcnt lgkmcnt(0)\ns_sub_u32 s99, s96, s98\ns_mov_b32 s98, s96\nv_readlane_b32 s97, v62, {u}\ns_nop 3\ns_add_u32 s97, s97, s99\ns_nop 0\nv_writelane_b32 v62, s97, {u}"); g.lg=[]
        G_=Gaps(32)
        vp=opt.get("o_vpos",[3,7,11,15,19,23,27,31])
        if u+WL==8:
            G_.put_post(0,S(f"s_add_u32 s{sWOB}, s{sWOB}, {8<<17}\ns_cmp_lt_u32 s{sJ}, {NCH-8}\ns_cselect_b32 s{S_WON+2}, {8*MB}, 0"))
        G_.put_post(1,S(f"s_add_u32 s{sKWO}, s{sWLO}, s{sWOB}"))
        G_.put_post(2,S(f"s_add_u32 m0, s{sWOFF}, {((u+WL)&7)*SLOT}"))
        if u+OL==8:
            G_.put_post(4,S(f"s_add_u32 s{sOOB}, s{sOOB}, {8<<11}\ns_cmp_lt_u32 s{sJ}, {NCH-8}\ns_cselect_b32 s{S_ON+2}, {32*MB}, 0"))
        G_.put_post(5,S(f"s_add_u32 s{sKO}, s{sOLO}, s{sOOB}"))
        G_.put_post(8,S(f"s_add_u32 s{sWLO}, s{sWLO}, {1<<17}"))
        G_.put_post(9,S(f"s_and_b32 s{sWLO}, s{sWLO}, {7<<17}"))
        G_.put_post(12,S(f"s_add_u32 s{sOLO}, s{sOLO}, {1<<11}"))
        G_.put_post(13,S(f"s_and_b32 s{sOLO}, s{sOLO}, {7<<11}"))
        for j in range(4):
            G_.mem[vp[2*j]]=(lambda j=j: g.e(f"buffer_load_dwordx4 v{vWOD+j}, {sr(S_WON)}, s{sKWO} offen offset:{1024*j}{NTO} lds"))
            G_.mem[vp[2*j+1]]=(lambda j=j,u=u: o_1((u+OL)&3,j,S_ON))
        rend=opt.get("o_rend",30)
        for n_,(js,nt,hf) in enumerate(RD):
            G_.put_mem(n_*rend/32.0,lambda js=js,nt=nt,hf=hf,u=u: a_read2(u+1,js,nt,hf))
        M=[]
        for js in range(2):
            for nt in range(8):
                for rt in range(2):
                    d=OACC+(rt*8+nt)*4
                    txt=f"v_mfma_f32_16x16x32_bf16 {ar(d)}, {ar(64*(u&1)+(js*8+nt)*4)}, {vr(OF+(u&3)*16+(rt*2+js)*4)}, {ar(d)}"
                    if rt==0: M.append(lambda txt=txt,u=u,js=js,nt=nt: (g.lgwait(('A',u&1,js,nt)), g.e(txt)))
                    else: M.append(txt)
        G_.emit(g,M)
    save=list(g.L)
    for u in range(8): body(u)
    lg_end=list(g.lg)
    g.L=save; g.lg=list(lg_end)
    g.e("s_waitcnt lgkmcnt(0)")
    if opt.get("steps"): g.e("v_mov_b32 v62, 0\ns_memtime s[98:99]\ns_waitcnt lgkmcnt(0)")
    g.label("L_O_LOOP")
    for u in range(8): body(u)
    assert g.lg==lg_end
    g.e(f"s_add_u32 s{sJ}, s{sJ}, 8\ns_cmp_lt_u32 s{sJ}, {NCH}\ns_cbranch_scc1 L_O_LOOP\ns_waitcnt lgkmcnt(0)")
    tick_store(); stamp()
    def xst(i):
        if opt.get("xstamps"):
            g.e(f"s_mov_b32 s101, s{sSEGN}\ns_mov_b32 s{sSEGN}, {i}"); stamp(); g.e(f"s_mov_b32 s{sSEGN}, s101")
    g.e("s_nop 7")
    for rt in range(2):
        if rt==1: g.e(f"s_add_u32 s{sEXW}, s{sEXW}, 4096")
        for m in range(4):
            d=OACC+(rt*8+4+m)*4
            g.e(f"buffer_store_dwordx4 {ar(d)}, v{vOS}, {sr(S_O)}, s{sEXW} offen offset:{m*1024} sc1")
    for rt in range(2):
        for m in range(4):
            for q in range(4): g.e(f"v_accvgpr_read_b32 v{128+(rt*4+m)*4+q}, a{OACC+(rt*8+m)*4+q}")
    g.e(f"""
    v_lshrrev_b32 v3, 4, v0
    v_and_b32 v4, 15, v0
    v_lshlrev_b32 v5, 3, v3
    v_lshl_add_u32 v52, v4, 12, v5
    s_lshl_b32 s{sCNT}, s{sW}, 2
    s_add_u32 s{sCNT}, s{sCNT}, 16
    s_waitcnt vmcnt(0)
    """)
    xst(11)
    flag_store(f"s{sCNT}")
    g.e(f"""
    s_xor_b32 s{sT0}, s2, 128
    s_lshl_b32 s{sT0}, s{sT0}, 7
    s_add_u32 s{sT0}, s{sT0}, {FLAG_OFF}
    s_add_u32 s{sT0}, s{sT0}, s{sCNT}
    v_mov_b32 v1, s{sT0}
    s_mov_b32 s{sCNT}, 0
    s_mov_b64 exec, 1
    L_X_POLL:
    global_load_dword v3, v1, s[{sWS}:{sWS+1}] sc1
    s_add_u32 s{sCNT}, s{sCNT}, 1
    s_waitcnt vmcnt(0)
    v_readfirstlane_b32 s{sT0}, v3
    s_cmp_gt_u32 s{sCNT}, 0x40000
    s_cbranch_scc1 L_X_POLLX
    s_cmp_lg_u32 s{sT0}, s{sNONCE}
    s_cbranch_scc1 L_X_POLL
    L_X_POLLX:
    s_mov_b64 exec, -1
    """)
    xst(12)
    for rt in range(2):
        if rt==1: g.e(f"s_add_u32 s{sEXR}, s{sEXR}, 4096")
        for m in range(4):
            r=192+(rt*4+m)*4
            g.e(f"buffer_load_dwordx4 {vr(r)}, v{vOS}, {sr(S_O)}, s{sEXR} offen offset:{m*1024} sc1")
    for rt in range(2):
        if rt==1: g.e(f"s_add_u32 s{sOUTB}, s{sOUTB}, 0x10000")
        for m in range(4):
            d=128+(rt*4+m)*4; r=192+(rt*4+m)*4
            if rt==0 and m==0:
                g.e("s_waitcnt vmcnt(0)"); xst(13)
            for q in range(4): g.e(f"v_add_f32 v{d+q}, v{d+q}, v{r+q}")
            g.e(f"""v_cvt_pk_bf16_f32 v{d}, v{d}, v{d+1}
            v_cvt_pk_bf16_f32 v{d+1}, v{d+2}, v{d+3}
            buffer_store_dwordx2 v[{d}:{d+1}], v52, {sr(S_OUT)}, s{sOUTB} offen offset:{m*32}{opt.get("st_out","")}""")
    stamp()
    if opt.get("stamps"):
        g.e("s_waitcnt vmcnt(0)")
        g.e(f"s_mov_b32 s{sSEGN}, 10")
        stamp()
    g.label("L_END")
    g.e("s_endpgm")
    return g.text()

def build(opt):
    s="; @launch grid=(256,1,1) block=(256,1,1) lds=163840\n"
    s+='.amdgcn_target "amdgcn-amd-amdhsa--gfx950"\n'
    s+=f".text\n.globl {KN}\n.p2align 8\n.type {KN},@function\n{KN}:\n"
    s+=gen(opt)
    s+=f""".section .rodata,"a"
.p2align 6
.amdhsa_kernel {KN}
  .amdhsa_next_free_vgpr 512
  .amdhsa_next_free_sgpr 102
  .amdhsa_accum_offset 256
  .amdhsa_group_segment_fixed_size 0
  .amdhsa_kernarg_size 104
  .amdhsa_user_sgpr_count 2
  .amdhsa_user_sgpr_kernarg_segment_ptr 1
  .amdhsa_system_sgpr_workgroup_id_x 1
.end_amdhsa_kernel
"""
    return s
if __name__=="__main__":
    opt=json.loads(sys.argv[2]) if len(sys.argv)>2 else {}
    open(sys.argv[1],"w").write(build(opt))
```

```python
import sys, struct, math, json
from gl import *
KN="concat_heads__mha_block_cached__mha_block_cached__near_ridge_kernel"
C_SCALE=struct.unpack("<I",struct.pack("<f",math.log2(math.e)/math.sqrt(128.0)))[0]
K1=1024; MB=K1*K1
EXCH_OFF=16*MB; FLAG_OFF=24*MB+512*K1; STAMP_OFF=32*MB
SLOT=16384; LA=7; NPRE=3
WQBASE=48*K1; XBASE=96*K1
WO_AREA=[128*K1,144*K1,96*K1,112*K1]; WO_RB=96*K1

def gen(opt):
    opt=dict(opt); opt.setdefault('thra',4); opt.setdefault('thra_skip',3); opt.setdefault('late',1)
    g=G()
    S=lambda txt: (lambda: g.e(txt))
    NT=opt.get('nt_kv',' nt')
    NTX=opt.get("nt_x",""); NTW=opt.get("nt_wq"," nt"); NTO=opt.get("nt_wo",""); NTOO=opt.get("nt_o"," sc1"); STO=opt.get("st_o"," sc1")
    FULL=opt.get("fullrot",0); KM=15 if FULL else 7
    NWOP=opt.get("nwop",7)
    KREG={int(k):v for k,v in opt.get("kreg",{}).items()}
    KRI={c:n for n,c in enumerate(sorted(KREG.values()))}
    KPRE={int(k):v for k,v in opt.get("kpre",{10:0,12:1,14:2}).items()}
    sPA=7;sKRG=7;sSIG=3;sKRO=100;sJ=4;sLAST=5;sCNT=6
    S_X=8;S_WQ=12;S_K=16;S_V=20;S_KN=24;S_O=28;S_WO=32;S_OUT=36;S_WON=40
    sW=44;sBR=45;sH=46;sBG=47;sRB=48;sCB=49;sKH=50;sPHI=51;sPHO=52
    sWQB=53;sKX=54;sKW=55;sXT=56;sWT=57;sT0=58;sT1=59
    sCUR=60;sNXT=61;sITEM=62;sOB=63;sC=64;sWOFF=65;sXL=66;sWL=67
    sMASK=68
    sXB=70
    sNONCE=74;sWOB=75;sOOB=76;sKWO=77;sKO=78;sWLO=79;sOLO=80;sOUTB=81;sEXW=82;sEXR=83
    S_ON=84
    sSEGN=89; sWS=90; sDBG=92; sSTB=94
    vKD=8; vVD=12; vKR=14; vVR=22; vOS=38; vOS1=39; vWOD=40; vPA=44; vTCH=45; sTCH=88
    vXD=46; vXR=48; vWD=50; vWR=54
    TA=52; vWOR=46
    QF=64; ACC=128
    OA=128; LAcc=160; ONES=168; QCUR=172; OACC=192
    def stamp():
        if not opt.get("stamps"): return
        g.e(f"""
        s_memrealtime s[96:97]
        s_memtime s[98:99]
        s_waitcnt lgkmcnt(0)
        v_mov_b32 v2, s96
        v_mov_b32 v3, s98
        s_lshl_b32 s96, s2, 7
        s_lshl_b32 s97, s{sSEGN}, 3
        s_add_u32 s96, s96, s97
        v_mov_b32 v1, s96
        global_store_dwordx2 v1, v[2:3], s[{sSTB}:{sSTB+1}]
        s_add_u32 s{sSEGN}, s{sSEGN}, 1
        """)
        g.lg=[]
        g.vm.append('stamp') if False else None
    def tick(k):
        if opt.get("steps"):
            g.e(f"s_memtime s[96:97]\ns_waitcnt lgkmcnt(0)\nv_writelane_b32 v62, s96, {k}"); g.lg=[]
    def tick_store():
        if opt.get("steps"):
            g.e(f"s_lshl_b32 s96, s2, 12\ns_lshl_b32 s97, s{sSEGN}, 8\ns_add_u32 s96, s96, s97\ns_add_u32 s96, s96, {MB}\nv_lshlrev_b32 v1, 2, v0\nv_add_u32 v1, s96, v1\nglobal_store_dword v1, v62, s[{sSTB}:{sSTB+1}]")
    if opt.get("stamps"): g.e("s_memrealtime s[88:89]\ns_waitcnt lgkmcnt(0)\ns_mov_b32 s101, s88")
    g.e(f"""
    s_cmp_ge_u32 s2, 256
    s_cbranch_scc1 L_END
    s_load_dwordx4 s[96:99], s[0:1], 80
    s_load_dwordx2 s[{sWS}:{sWS+1}], s[0:1], 96
    s_and_b32 s3, s2, 7                          ; xcd
    s_lshr_b32 s4, s2, 3                         ; idx
    s_lshr_b32 s{sBR}, s3, 2
    s_and_b32 s5, s3, 3
    s_lshl_b32 s5, s5, 3
    s_and_b32 s6, s4, 7
    s_add_u32 s{sH}, s5, s6
    s_lshr_b32 s{sBG}, s4, 3
    s_lshl_b32 s7, s{sBG}, 1
    s_add_u32 s7, s7, s6
    s_and_b32 s{sPHI}, s7, 7
    {"s_lshl_b32 s"+str(sPHI)+", s"+str(sPHI)+", 1" if FULL else ""}
    ; O mapping
    s_lshr_b32 s5, s3, 1
    s_and_b32 s5, s5, 1
    s_lshl_b32 s5, s5, 2
    s_and_b32 s6, s4, 3
    s_add_u32 s{sRB}, s5, s6
    s_and_b32 s5, s3, 1
    s_lshl_b32 s5, s5, 2
    s_lshr_b32 s7, s4, 2
    s_and_b32 s7, s7, 3
    s_add_u32 s{sCB}, s5, s7
    s_lshr_b32 s{sKH}, s4, 4
    s_add_u32 s{sPHO}, s6, s7
    s_and_b32 s{sPHO}, s{sPHO}, 3
    s_lshl_b32 s{sPHO}, s{sPHO}, 1
    s_mul_i32 s5, s{sBR}, 40
    s_add_u32 s4, s0, s5
    s_addc_u32 s5, s1, 0
    s_load_dwordx4 s[8:11], s[4:5], 0            ; x, k
    s_load_dwordx4 s[12:15], s[4:5], 16          ; v, wq
    s_load_dwordx2 s[16:17], s[4:5], 32          ; wo
    v_lshrrev_b32 v1, 6, v0
    v_and_b32 v0, 63, v0
    s_nop 0
    v_readfirstlane_b32 s{sW}, v1
    """)
    g.e(f"""
    v_lshrrev_b32 v1, 3, v0              ; r8
    v_and_b32 v2, 7, v0                  ; p8
    v_lshrrev_b32 v3, 4, v0              ; rr / g
    v_and_b32 v4, 15, v0                 ; p16 / q / key
    v_xor_b32 v5, v2, v3
    v_lshlrev_b32 v5, 4, v5
    v_lshl_add_u32 v{vXD}, v1, 11, v5
    v_xor_b32 v5, 64, v5
    v_lshl_add_u32 v5, v1, 11, v5
    v_add_u32 v{vXD+1}, {8*2048-1024}, v5
    v_lshrrev_b32 v5, 1, v4
    v_xor_b32 v5, v5, v3
    v_lshlrev_b32 v5, 4, v5
    v_lshl_add_u32 v5, v4, 7, v5
    s_lshl_b32 s{sXL}, s{sW}, 14
    s_add_u32 s{sXL}, s{sXL}, {XBASE}
    v_add_u32 v{vXR}, s{sXL}, v5
    v_xor_b32 v{vXR+1}, 64, v{vXR}
    v_and_b32 v5, 1, v3
    v_and_b32 v6, 2, v3
    v_lshl_or_b32 v5, v6, 1, v5          ; f0
    v_xor_b32 v5, v5, v4                 ; p ^ f0
    """)
    for j in range(4):
        g.e(f"""
        v_xor_b32 v6, {8*(j>>1)}, v5
        v_lshlrev_b32 v6, 4, v6
        v_lshl_add_u32 v6, v3, 13, v6
        v_add_u32 v{vWD+j}, {4*j*8192-1024*j}, v6
        """)
    g.e(f"""
    v_lshrrev_b32 v5, 2, v4              ; rp
    v_and_b32 v6, 3, v0                  ; c
    v_and_b32 v7, 1, v5
    v_and_b32 v1, 2, v5
    v_lshl_or_b32 v7, v1, 1, v7
    v_and_b32 v1, 1, v3
    v_lshl_or_b32 v7, v1, 3, v7          ; f
    v_xor_b32 v7, v7, v6                 ; c ^ f
    v_lshlrev_b32 v7, 4, v7
    v_and_b32 v1, 1, v6
    v_lshl_or_b32 v7, v1, 3, v7          ; + 8*(c&1)
    v_lshl_add_u32 v1, v3, 3, v5         ; 8kg+rp
    v_lshl_add_u32 v7, v1, 8, v7
    v_add_u32 v7, {WQBASE}, v7
    """)
    for dt in range(8):
        t,u=dt>>1,dt&1
        g.e(f"v_xor_b32 v{vWR+dt}, {(t<<6)^(u<<3)}, v7")
    for j in range(4):
        g.e(f"""
        v_add_u32 v5, {4*(j&1)}, v3
        v_lshlrev_b32 v5, 1, v5
        v_xor_b32 v5, v5, v4
        v_lshlrev_b32 v5, 4, v5
        v_lshl_add_u32 v5, v3, 11, v5
        v_add_u32 v{vWOD+j}, {4*j*2048-1024*j}, v5
        """)
    g.e(f"""
    s_lshl_b32 s{sT0}, s{sKH}, 4
    v_add_u32 v5, s{sT0}, v4             ; h = 16kh + t
    v_lshrrev_b32 v6, 3, v5              ; h>>3
    s_lshl_b32 s{sT0}, s{sBR}, 2
    v_add_u32 v6, s{sT0}, v6             ; xcd'
    v_and_b32 v5, 7, v5
    s_lshr_b32 s{sT0}, s{sRB}, 1
    s_lshl_b32 s{sT0}, s{sT0}, 3
    v_add_u32 v5, s{sT0}, v5             ; idx'
    v_lshl_add_u32 v5, v5, 3, v6         ; wg'
    v_lshlrev_b32 v5, 7, v5
    s_mov_b32 s{sT0}, {FLAG_OFF}
    v_add_u32 v{vPA}, s{sT0}, v5
    """)
    for j in range(4):
        g.e(f"""
        v_add_u32 v5, {4*j}, v3
        v_xor_b32 v5, v5, v4
        v_lshlrev_b32 v5, 4, v5
        v_lshl_add_u32 v{vKD+j}, v3, 8, v5
        """)
    g.e(f"""
    v_xor_b32 v5, v3, v4
    v_lshlrev_b32 v5, 4, v5
    v_lshl_add_u32 v5, v4, 8, v5
    """)
    for t in range(4): g.e(f"v_xor_b32 v{vKR+t}, {t<<6}, v5\nv_add_u32 v{vKR+4+t}, 0x10000, v{vKR+t}")
    for jp in range(2):
        g.e(f"""
        v_add_u32 v5, {4*jp}, v3
        v_lshlrev_b32 v5, 1, v5
        v_xor_b32 v5, v5, v4
        v_lshlrev_b32 v5, 4, v5
        v_lshl_add_u32 v{vVD+jp}, v3, 8, v5
        """)
    g.e(f"""
    v_lshrrev_b32 v5, 2, v4              ; rp
    v_and_b32 v6, 3, v0                  ; c
    v_and_b32 v7, 1, v3
    v_lshl_add_u32 v7, v7, 2, v5         ; 4(g&1)+rp
    v_lshlrev_b32 v7, 1, v7
    v_lshrrev_b32 v1, 1, v6
    v_xor_b32 v7, v7, v1
    v_lshlrev_b32 v7, 4, v7
    v_and_b32 v1, 1, v6
    v_lshl_or_b32 v7, v1, 3, v7
    v_lshl_add_u32 v1, v3, 2, v5         ; 4g+rp
    v_lshl_add_u32 v7, v1, 8, v7
    """)
    for dt in range(8): g.e(f"v_xor_b32 v{vVR+dt}, {dt<<5}, v7\nv_add_u32 v{vVR+8+dt}, 0x10000, v{vVR+dt}")
    g.e(f"v_lshlrev_b32 v{vTCH}, 7, v0")
    g.e(f"s_and_b32 s{sT0}, s2, 3\ns_lshl_b32 s{sT0}, s{sT0}, 5\ns_lshr_b32 s{sT1}, s2, 3\ns_add_u32 s{sT0}, s{sT0}, s{sT1}\ns_lshl_b32 s{sTCH}, s{sT0}, 16\ns_lshl_b32 s{sT0}, s{sW}, 14\ns_add_u32 s{sTCH}, s{sTCH}, s{sT0}")
    g.e(f"v_lshlrev_b32 v{vOS}, 4, v0\nv_add_u32 v{vOS1}, 0x20000, v{vOS}\nv_mov_b32 v1, 0x3f803f80")
    for r in range(4): g.e(f"v_accvgpr_write_b32 a{ONES+r}, v1")
    g.e("s_waitcnt lgkmcnt(0)")
    def mk(s,lo,hi,size): g.e(f"s_mov_b32 s{s}, s{lo}\ns_and_b32 s{s+1}, s{hi}, 0xffff\ns_mov_b32 s{s+2}, {size}\ns_mov_b32 s{s+3}, 0x20000")
    g.e(f"s_mov_b32 s{sDBG}, s98\ns_mov_b32 s{sDBG+1}, s99")
    mk(S_OUT,96,97,4*MB); mk(S_WO,16,17,8*MB); mk(S_WON,16,17,8*MB); mk(S_V,12,13,64*MB)
    mk(S_K,10,11,64*MB); mk(S_KN,10,11,64*MB)
    g.e(f"s_mov_b32 s4, s14\ns_mov_b32 s5, s15\ns_and_b32 s{S_X+1}, s9, 0xffff\ns_mov_b32 s{S_X+2}, {2*MB}\ns_mov_b32 s{S_X+3}, 0x20000")
    mk(S_WQ,4,5,8*MB); mk(S_O,sWS,sWS+1,32*MB); mk(S_ON,sWS,sWS+1,32*MB)
    g.e(f"""
    s_add_u32 s{sSTB}, s{sWS}, {STAMP_OFF}
    s_addc_u32 s{sSTB+1}, s{sWS+1}, 0
    s_mov_b32 s{sSEGN}, 0
    s_lshl_b32 s{sWOFF}, s{sW}, 12
    s_add_u32 s{sWL}, s{sWOFF}, {WQBASE}
    s_lshl_b32 s{sT0}, s{sBG}, 19
    s_lshl_b32 s{sT1}, s{sW}, 15
    s_add_u32 s{sXB}, s{sT0}, s{sT1}
    s_add_u32 s{sXB+1}, s{sXB}, 0x20000
    s_add_u32 s{sXB+2}, s{sXB}, 0x40000
    s_add_u32 s{sXB+3}, s{sXB}, 0x60000
    s_lshl_b32 s{sT0}, s{sW}, 17
    s_lshl_b32 s{sT1}, s{sH}, 8
    s_add_u32 s{sWQB}, s{sT0}, s{sT1}
    """)
    if opt.get("stamps"):
        g.e(f"v_mov_b32 v2, s101\nv_mov_b32 v3, 0\ns_lshl_b32 s96, s2, 7\ns_add_u32 s96, s96, 120\nv_mov_b32 v1, s96\nglobal_store_dwordx2 v1, v[2:3], s[{sSTB}:{sSTB+1}]")
    stamp()
    def late_setup():
        g.e(f"""
        s_mov_b32 s{sC}, {C_SCALE}
        s_mov_b32 s{sMASK}, 0xffff0000
        s_mov_b32 s{sMASK+1}, 0xffff0000
        s_lshl_b32 s{sT0}, s{sBG}, 24
        s_lshl_b32 s{sT1}, s{sH}, 17
        s_add_u32 s{sCUR}, s{sT0}, s{sT1}
        s_add_u32 s{sCUR}, s{sCUR}, s{sWOFF}
        s_add_u32 s{sNXT}, s{sCUR}, 0x400000
        s_lshl_b32 s{sT0}, s{sBR}, 23
        s_lshl_b32 s{sT1}, s{sBG}, 21
        s_add_u32 s{sOB}, s{sT0}, s{sT1}
        s_lshl_b32 s{sT0}, s{sW}, 17
        s_add_u32 s{sOB}, s{sOB}, s{sT0}
        s_lshl_b32 s{sT0}, s{sH}, 12
        s_add_u32 s{sOB}, s{sOB}, s{sT0}
        s_lshl_b32 s{sT0}, s{sKH}, 22
        s_lshl_b32 s{sT1}, s{sW}, 15
        s_add_u32 s{sWOB}, s{sT0}, s{sT1}
        s_lshl_b32 s{sT0}, s{sCB}, 8
        s_add_u32 s{sWOB}, s{sWOB}, s{sT0}
        s_lshl_b32 s{sT0}, s{sRB}, 3
        s_lshl_b32 s{sT1}, s{sW}, 1
        s_add_u32 s{sT0}, s{sT0}, s{sT1}            ; 8rb+2w
        s_lshl_b32 s{sOUTB}, s{sT0}, 16
        s_lshl_b32 s{sOOB}, s{sT0}, 17
        s_lshl_b32 s{sT1}, s{sBR}, 23
        s_add_u32 s{sOOB}, s{sOOB}, s{sT1}
        s_lshl_b32 s{sT1}, s{sKH}, 16
        s_add_u32 s{sOOB}, s{sOOB}, s{sT1}
        s_lshl_b32 s{sT1}, s{sBR}, 11
        s_add_u32 s{sOUTB}, s{sOUTB}, s{sT1}
        s_lshl_b32 s{sT1}, s{sCB}, 8
        s_add_u32 s{sOUTB}, s{sOUTB}, s{sT1}
        s_lshl_b32 s{sT1}, s{sKH}, 7
        s_add_u32 s{sOUTB}, s{sOUTB}, s{sT1}
        s_lshl_b32 s{sT1}, s{sW}, 13
        s_lshl_b32 s{sEXW}, s2, 15
        s_add_u32 s{sEXW}, s{sEXW}, s{sT1}
        s_add_u32 s{sEXW}, s{sEXW}, {EXCH_OFF}
        s_xor_b32 s{sEXR}, s2, 128
        s_lshl_b32 s{sEXR}, s{sEXR}, 15
        s_add_u32 s{sEXR}, s{sEXR}, s{sT1}
        s_add_u32 s{sEXR}, s{sEXR}, {EXCH_OFF}
        s_lshr_b32 s{sT0}, s2, {opt.get("krot_sh",3)}
        s_and_b32 s{sT0}, s{sT0}, 7
        s_lshl_b32 s{sKRO}, s{sT0}, 14
        s_mov_b32 s{sITEM}, 0
        s_mov_b32 s{sNONCE}, 0
        s_mov_b32 s{sPA}, 0
        s_mov_b32 s{sSIG}, 0
        s_cmp_lg_u32 s{sW}, 0
        s_cbranch_scc1 L_NONCE_DONE
        s_memrealtime s[96:97]
        s_waitcnt lgkmcnt(0)
        s_or_b32 s96, s96, 1
        v_mov_b32 v4, s96
        v_mov_b32 v5, 0
        v_accvgpr_write_b32 a164, v4
        v_accvgpr_write_b32 a165, v5
        s_mov_b64 exec, 1
        global_atomic_cmpswap a166, v5, a[164:165], s[{sDBG}:{sDBG+1}] sc0
        s_mov_b64 exec, -1
        L_NONCE_DONE:
        """)
    def flag_store(off):
        g.e(f"""
        s_lshl_b32 s{sT0}, s2, 7
        s_add_u32 s{sT0}, s{sT0}, {FLAG_OFF}
        s_add_u32 s{sT0}, s{sT0}, {off}
        v_mov_b32 v1, s{sT0}
        v_mov_b32 v3, s{sNONCE}
        s_mov_b64 exec, 1
        global_store_dword v1, v3, s[{sWS}:{sWS+1}] sc1
        s_mov_b64 exec, -1
        """)
    nsig=[0]
    def pending_signal():
        nsig[0]+=1; n=nsig[0]
        g.e(f"""
        s_cmp_eq_u32 s{sSIG}, 0
        s_cbranch_scc1 L_SG{n}
        s_cmp_lg_u32 s{sW}, 0
        s_cbranch_scc1 L_SGX{n}
        s_sub_u32 s{sCNT}, s{sSIG}, 1
        s_lshl_b32 s{sCNT}, s{sCNT}, 2
        """)
        flag_store(f"s{sCNT}")
        g.e(f"L_SGX{n}:\ns_mov_b32 s{sSIG}, 0\nL_SG{n}:")
    def kv_soff(dst,base,ch):
        if opt.get("krot"):
            return f"s_add_u32 s{dst}, s{sKRO}, {ch*16384}\ns_and_b32 s{dst}, s{dst}, 0x1ffff\ns_add_u32 s{dst}, s{dst}, s{base}"
        return f"s_add_u32 s{dst}, s{base}, {ch*16384}"
    def kv_group(cc):
        if cc<8: srdn,base,vo,ch=S_K,sCUR,[vKD+j for j in range(4)],cc
        elif cc<16: srdn,base,vo,ch=S_V,sCUR,[vVD+(j&1) for j in range(4)],cc-8
        else: srdn,base,vo,ch=S_KN,sNXT,[vKD+j for j in range(4)],cc-16
        return (f"s_add_u32 m0, s{sWOFF}, {(cc&7)*SLOT}\n"+kv_soff(sT1,base,ch),
                [f"buffer_load_dwordx4 v{vo[j]}, {sr(srdn)}, s{sT1} offen offset:{1024*j}{NT} lds" for j in range(4)])
    def wo_group(c,track,srdn=S_WO):
        g.e(f"s_add_u32 s{sT1}, s{sPHO}, {c}\ns_and_b32 s{sT1}, s{sT1}, 7\ns_lshl_b32 s{sT1}, s{sT1}, 17\ns_add_u32 m0, s{sWOFF}, {(c&7)*SLOT}\ns_add_u32 s{sT1}, s{sT1}, s{sWOB}")
        for j in range(4):
            t=f"buffer_load_dwordx4 v{vWOD+j}, {sr(srdn)}, s{sT1} offen offset:{1024*j}{NTO} lds"
            g.vmop(t,('wo',c)) if track else g.e(t)
    def kidx(s,dst,shift):
        g.e(f"s_add_u32 s{sT0}, s{sPHI}, {s}\ns_and_b32 s{sT0}, s{sT0}, {KM}\ns_or_b32 s{sT0}, s{sT0}, {0 if FULL else s&8}\ns_lshl_b32 s{dst}, s{sT0}, {shift}")
    def x_dma(s,i):
        slot=(s&1)*4+i
        g.e(f"s_add_u32 m0, s{sXL}, {slot*2048}\ns_add_u32 s{sT1}, s{sXB+i}, s{sKX}")
        for j in range(2): g.vmop(f"buffer_load_dwordx4 v{vXD+j}, {sr(S_X)}, s{sT1} offen offset:{1024*j}{NTX} lds",('x',s,i))
    def wq_dma(s):
        g.e(f"s_add_u32 m0, s{sWL}, {(s%3)*16384}\ns_add_u32 s{sT1}, s{sWQB}, s{sKW}")
        for j in range(4): g.vmop(f"buffer_load_dwordx4 v{vWD+j}, {sr(S_WQ)}, s{sT1} offen offset:{1024*j}{NTW} lds",('wq',s))
    def a_read(s,ks,dt,hf):
        r=64*(s&1)+(ks*8+dt)*4+2*hf
        g.lgop(f"ds_read_b64_tr_b16 a[{r}:{r+1}], v{vWR+dt} offset:{(s%3)*16384+ks*8192+hf*1024}",('A',s))
    def b_read(s,i,ks):
        n=s*4+i
        r=128+(n&1)*8+ks*4
        g.lgop(f"ds_read_b128 a[{r}:{r+3}], v{vXR+ks} offset:{((s&1)*4+i)*2048}",('B',s,i))
    tick(40)
    kidx(0,sKW,19); wq_dma(0)
    if opt.get("tlb"):
        late_setup()
        g.e(f"""
        v_lshlrev_b32 v1, 22, v0
        v_lshlrev_b32 v2, 20, v0
        v_mov_b32 v3, s{sOB}
        v_writelane_b32 v3, s{sOOB}, 1
        v_writelane_b32 v3, s{sEXW}, 2
        s_lshl_b32 s{sT0}, s2, 7
        s_add_u32 s{sT0}, s{sT0}, {FLAG_OFF}
        v_writelane_b32 v3, s{sT0}, 3
        s_mov_b32 m0, s{sWOFF}
        s_mov_b64 exec, 0xf
        """)
        g.vmop(f"buffer_load_dword v1, {sr(S_K)}, s{sCUR} offen{NT} lds",('tlb',))
        g.vmop(f"buffer_load_dword v1, {sr(S_V)}, s{sCUR} offen{NT} lds",('tlb',))
        g.vmop(f"buffer_load_dword v2, {sr(S_WO)}, s{sWOB} offen{NT} lds",('tlb',))
        g.vmop(f"buffer_load_dword v3, {sr(S_O)}, 0 offen{NT} lds",('tlb',))
        g.e("s_mov_b64 exec, 1")
        g.vmop(f"buffer_load_dword v1, {sr(S_OUT)}, s{sOUTB} offen{NT} lds",('tlb',))
        g.e("s_mov_b64 exec, -1")
    kidx(0,sKX,7)
    for i in range(4): x_dma(0,i)
    kidx(1,sKW,19); wq_dma(1)
    if not opt.get("qpro",0):
        kidx(1,sKX,7)
        for i in range(4): x_dma(1,i)
        kidx(2,sKW,19); wq_dma(2)
    if not opt.get("tlb"): late_setup()
    g.vmwait(('wq',0))
    g.e("s_barrier")
    AR=[(ks,dt,hf) for ks in range(2) for dt in range(8) for hf in range(2)]
    for (ks,dt,hf) in AR: a_read(0,ks,dt,hf)
    g.vmwait(('x',0,0))
    b_read(0,0,0); b_read(0,0,1)
    if opt.get("qpro",0):
        kidx(1,sKX,7)
        for i in range(4): x_dma(1,i)
        kidx(2,sKW,19); wq_dma(2)
    g.e(f"""s_add_u32 s{sT0}, s{sPHI}, 2
    s_and_b32 s{sT0}, s{sT0}, {KM}
    s_lshl_b32 s{sKX}, s{sT0}, 7
    s_add_u32 s{sT0}, s{sPHI}, 3
    s_and_b32 s{sT0}, s{sT0}, {KM}
    s_lshl_b32 s{sKW}, s{sT0}, 19""")
    for s in range(16):
        if s+1<16: g.vmwait(('wq',s+1))
        g.lgwait(('A',s))
        g.e("s_barrier")
        tick(s)
        G_=Gaps(64)
        dpos=opt.get("dpos",[2,7,12,17,23,28,34,39,45,50,56,61])
        if s+3<16:
            if (s+3)==8 and not FULL: G_.put_post(0,S(f"s_add_u32 s{sWQB}, s{sWQB}, {8<<19}"))
            G_.put_post(dpos[0]-2,S(f"s_add_u32 s{sWT}, s{sWQB}, s{sKW}"))
            G_.put_post(dpos[0]-1,S(f"s_add_u32 m0, s{sWL}, {((s+3)%3)*16384}"))
            for j in range(4):
                G_.mem[dpos[j]]=(lambda j=j,s=s: g.vmop(f"buffer_load_dwordx4 v{vWD+j}, {sr(S_WQ)}, s{sWT} offen offset:{1024*j}{NTW} lds",('wq',s+3)))
            G_.put_post(dpos[3],S(f"s_add_u32 s{sKW}, s{sKW}, {1<<19}"))
            G_.put_post(dpos[3]+1,S(f"s_and_b32 s{sKW}, s{sKW}, {KM<<19}"))
        if s+2<16:
            for i in range(4):
                p=dpos[4+2*i]
                if (s+2)==8 and not FULL: G_.put_post(p-3,S(f"s_add_u32 s{sXB+i}, s{sXB+i}, 1024"))
                G_.put_post(p-2,S(f"s_add_u32 s{sXT}, s{sXB+i}, s{sKX}"))
                G_.put_post(p-1,S(f"s_add_u32 m0, s{sXL}, {((s&1)*4+i)*2048}"))
                for j in range(2):
                    G_.mem[dpos[4+2*i+j]]=(lambda j=j,s=s,i=i: g.vmop(f"buffer_load_dwordx4 v{vXD+j}, {sr(S_X)}, s{sXT} offen offset:{1024*j}{NTX} lds",('x',s+2,i)))
            G_.put_post(dpos[11],S(f"s_add_u32 s{sKX}, s{sKX}, 128"))
            G_.put_post(dpos[11]+1,S(f"s_and_b32 s{sKX}, s{sKX}, {KM<<7}"))
        if s in KPRE:
            c=KPRE[s]
            for j,p in enumerate(opt.get("kpos",[19,30,41,52])):
                G_.put_post(p-2,S(kv_soff(sT1,sCUR,c)))
                G_.put_post(p-1,S(f"s_add_u32 m0, s{sWOFF}, {c*SLOT}"))
                assert G_.mem[p] is None
                G_.mem[p]=(lambda j=j,c=c: g.vmop(f"buffer_load_dwordx4 v{vKD+j}, {sr(S_K)}, s{sT1} offen offset:{1024*j}{NT} lds",('kv',c)))
        if s in KREG:
            c=KREG[s]
            for j,p in enumerate(opt.get("kpos",[19,30,41,52])):
                if j==0: G_.put_post(p-2,S(f"s_add_u32 s{sKRG}, s{sCUR}, {c*16384}"))
                assert G_.mem[p] is None
                r=OACC+16*KRI[c]+4*j
                G_.mem[p]=(lambda j=j,r=r: g.e(f"buffer_load_dwordx4 {ar(r)}, v{vKD+j}, {sr(S_K)}, s{sKRG} offen offset:{1024*j}{NT}"))
        WT={int(k):v for k,v in opt.get("wotouch",{}).items()}
        if s in WT:
            n_=WT[s]; p=20
            assert G_.mem[p] is None
            G_.put_post(p-2,S(f"s_add_u32 s{sT1}, s{sTCH}, {n_*8192}"))
            G_.put_post(p-1,S(f"s_add_u32 m0, s{sWOFF}, {2*SLOT}"))
            G_.mem[p]=(lambda: g.vmop(f"buffer_load_dword v{vTCH}, {sr(S_WO)}, s{sT1} offen lds",('tch',)))
        for i in range(4):
            nxt=(s,i+1) if i<3 else ((s+1,0) if s+1<16 else None)
            if nxt:
                q=G_.put_mem(16*i+opt.get("bpos",4),lambda nxt=nxt: b_read(nxt[0],nxt[1],0),lo=16*i,hi=16*i+16)
                G_.put_pre(q,lambda nxt=nxt: g.vmwait(('x',)+nxt))
                G_.put_mem(q+1,lambda nxt=nxt: b_read(nxt[0],nxt[1],1),lo=q+1,hi=16*i+16)
        if s+1<16:
            aend=opt.get("aend",56)
            for n_,(ks,dt,hf) in enumerate(AR):
                G_.put_mem(n_*aend/32.0,lambda ks=ks,dt=dt,hf=hf,s=s: a_read(s+1,ks,dt,hf),hi=62)
        M=[]
        for i in range(4):
            n=s*4+i
            for ks in range(2):
                for dt in range(8):
                    d=ACC+(i*8+dt)*4
                    txt=f"v_mfma_f32_16x16x32_bf16 {vr(d)}, {ar(64*(s&1)+(ks*8+dt)*4)}, {ar(128+(n&1)*8+ks*4)}, {'0' if (s==0 and ks==0) else vr(d)}"
                    if ks==0 and dt==0: M.append(lambda txt=txt,s=s,i=i: (g.lgwait(('B',s,i)), g.e(txt)))
                    else: M.append(txt)
        G_.emit(g,M)
    tick(16)
    if KREG: g.e("s_waitcnt vmcnt(0)")
    g.e("s_barrier")
    if KREG:
        g.e(f"v_add_u32 v1, s{sWOFF}, v{vOS}\nv_add_u32 v3, 0x10000, v1")
        for c in sorted(KREG.values()):
            for j in range(4):
                r=OACC+16*KRI[c]+4*j
                off=c*SLOT+j*1024
                if off<65536: g.e(f"ds_write_b128 v1, {ar(r)} offset:{off}")
                else: g.e(f"ds_write_b128 v3, {ar(r)} offset:{off-65536}")
            if c==3: pass
    rest=[cc for cc in range(LA) if cc not in KPRE.values() and cc not in KREG.values()]
    late=rest[-opt.get("late",0):] if opt.get("late",0) else []
    for cc in rest:
        if cc in late: continue
        h,dm=kv_group(cc); g.e(h)
        for l in dm: g.e(l)
    for i in range(4):
        for t in range(4):
            bx=ACC+(i*8+2*t)*4; by=bx+4; F=QF+16*i+4*t
            g.e(f"""
            v_cvt_pk_bf16_f32 v56, v{bx}, v{bx+1}
            v_cvt_pk_bf16_f32 v57, v{bx+2}, v{bx+3}
            v_cvt_pk_bf16_f32 v58, v{by}, v{by+1}
            v_cvt_pk_bf16_f32 v59, v{by+2}, v{by+3}
            v_cndmask_b32 v{F}, v56, v58, s[{sMASK}:{sMASK+1}]
            v_cndmask_b32 v{F+1}, v57, v59, s[{sMASK}:{sMASK+1}]
            v_cndmask_b32 v{F+2}, v58, v56, s[{sMASK}:{sMASK+1}]
            v_cndmask_b32 v{F+3}, v59, v57, s[{sMASK}:{sMASK+1}]
            """)
    for cc in late:
        h,dm=kv_group(cc); g.e(h)
        for l in dm: g.e(l)
    if KREG: g.e("s_waitcnt lgkmcnt(0)")
    tick(17); tick_store(); stamp()
    g.label("L_ITEM")
    g.vm=[]; g.lg=[]
    tick(40)
    g.e(f"s_cmp_lt_u32 s{sITEM}, 3\ns_cselect_b32 s{S_KN+2}, {64*MB}, 0\ns_cselect_b32 s{sLAST}, 0, 1")
    for n in range(4):
        g.e(f"s_cmp_eq_u32 s{sITEM}, {n}\ns_cbranch_scc0 L_QC{n}")
        for r in range(16): g.e(f"v_accvgpr_write_b32 a{QCUR+r}, v{QF+16*n+r}")
        g.label(f"L_QC{n}")
    MX=4
    def pcalc(J):
        b=ACC+8*J
        L=[f"v_fma_f32 v{TA+r}, v{b+r}, s{sC}, -v4" for r in range(8)]
        L+=[f"v_exp_f32 v{TA+r}, v{TA+r}" for r in range(8)]
        L+=[f"v_cvt_pk_bf16_f32 v{ACC+4*J+r}, v{TA+2*r}, v{TA+2*r+1}" for r in range(4)]
        return L
    def reads(c):
        st=c&1; sl=c&7; hi=sl>=4; so=(sl&3)*SLOT; R=[]
        if c<8:
            for kt in range(4):
                for t in range(4):
                    R.append(lambda kt=kt,t=t: g.lgop(f"ds_read_b128 {ar(64*st+(kt*4+t)*4)}, v{vKR+(4 if hi else 0)+t} offset:{so+kt*4096}",('F',c,kt)))
        else:
            for js in range(2):
                for dt in range(8):
                    for hf in range(2):
                        r=64*st+(js*8+dt)*4+2*hf
                        R.append(lambda r=r,js=js,dt=dt,hf=hf: g.lgop(f"ds_read_b64_tr_b16 a[{r}:{r+1}], v{vVR+(8 if hi else 0)+dt} offset:{so+js*8192+hf*4096}",('F',c,js*8+dt)))
        return R
    g.e(f"s_waitcnt vmcnt({4*(LA-1)})\ns_barrier")
    for f in reads(0): f()
    for c in range(16):
        cc=c+LA
        if c<15: g.e(f"s_waitcnt vmcnt({4*(LA-2)})")
        if opt.get("thra") is not None and c<15:
            if c<opt.get("thra_skip",0):
                g.e(f"s_cmp_eq_u32 s{sITEM}, 0\ns_cbranch_scc1 L_TS{c}\ns_waitcnt vmcnt({opt['thra']})\nL_TS{c}:")
            else: g.e(f"s_waitcnt vmcnt({opt['thra']})")
        if opt.get("thr") is not None and c<15:
            g.e(f"s_bitcmp1_b32 s2, 0\ns_cbranch_scc{opt.get('thr_par',1)} L_TH{c}\ns_waitcnt vmcnt({opt['thr']})\nL_TH{c}:")
        g.e("s_barrier")
        tick(c)
        dm=[]
        if cc<16 or cc>=16+NWOP:
            h,dl=kv_group(cc); g.e(h); dm=[(lambda l=l: g.e(l)) for l in dl]
        else:
            k=cc-16
            g.e(f"s_cmp_eq_u32 s{sLAST}, 1\ns_cbranch_scc1 L_HO{k}")
            h,dl=kv_group(cc); g.e(h)
            for l in dl: g.e(l)
            g.e(f"s_branch L_HJ{k}")
            g.label(f"L_HO{k}")
            wo_group(k,False)
            g.label(f"L_HJ{k}")
        R=reads(c+1) if c<15 else []
        st=c&1; M=[]; VL=[]
        if c<8:
            for kt in range(4):
                T=4*c+kt; d=ACC+4*T
                for t in range(4):
                    txt=f"v_mfma_f32_16x16x32_bf16 {vr(d)}, {ar(64*st+(kt*4+t)*4)}, {ar(QCUR+4*t)}, {'0' if t==0 else vr(d)}"
                    M.append((lambda txt=txt,kt=kt,c=c: (g.lgwait(('F',c,kt)), g.e(txt))) if t==0 else txt)
            if c>0:
                for kt in range(4):
                    b=ACC+16*(c-1)+4*kt
                    if c==1: VL+=[f"v_max3_f32 v{MX+kt}, v{b}, v{b+1}, v{b+2}",f"v_max_f32 v{MX+kt}, v{MX+kt}, v{b+3}"]
                    else: VL+=[f"v_max3_f32 v{MX+kt}, v{MX+kt}, v{b}, v{b+1}",f"v_max3_f32 v{MX+kt}, v{MX+kt}, v{b+2}, v{b+3}"]
        else:
            cv=c-8
            for js in range(2):
                J=2*cv+js; P=ACC+4*J
                for dt in range(8):
                    d=OA+4*dt
                    txt=f"v_mfma_f32_16x16x32_bf16 {ar(d)}, {ar(64*st+(js*8+dt)*4)}, {vr(P)}, {'0' if J==0 else ar(d)}"
                    M.append(lambda txt=txt,c=c,k=js*8+dt: (g.lgwait(('F',c,k)), g.e(txt)))
                M.append(f"v_mfma_f32_16x16x32_bf16 {ar(LAcc)}, {ar(ONES)}, {vr(P)}, {'0' if J==0 else ar(LAcc)}")
            if cv<7:
                for J in (2*cv+2,2*cv+3): VL+=pcalc(J)
        if c<7: pat=['tv','tv','tt','d']*4
        elif c==7: pat=['ttv','tt','ttv','dtt']*4
        else: pat=['ttv','ttv','ttv','dvvvv']*4+['ttttvv','ttttvv']
        ti=vi=di=0
        for m,p in zip(M,pat):
            m() if callable(m) else g.e(m)
            for ch in p:
                if ch=='t' and ti<len(R): R[ti](); ti+=1
                elif ch=='v' and vi<len(VL): g.e(VL[vi]); vi+=1
                elif ch=='d' and di<len(dm): dm[di](); di+=1
        while ti<len(R): R[ti](); ti+=1
        while di<len(dm): dm[di](); di+=1
        while vi<len(VL): g.e(VL[vi]); vi+=1
        if c==7:
            g.e("s_nop 7")
            for kt in range(4):
                b=ACC+16*7+4*kt
                g.e(f"v_max3_f32 v{MX+kt}, v{MX+kt}, v{b}, v{b+1}\nv_max3_f32 v{MX+kt}, v{MX+kt}, v{b+2}, v{b+3}")
            g.e(f"""
            v_max3_f32 v4, v4, v5, v6
            v_max_f32 v4, v4, v7
            v_mov_b32 v5, v4
            s_nop 1
            v_permlane16_swap_b32 v4, v5
            v_max_f32 v4, v4, v5
            v_mov_b32 v5, v4
            s_nop 1
            v_permlane32_swap_b32 v4, v5
            v_max_f32 v4, v4, v5
            v_mul_f32 v4, s{sC}, v4
            """)
            for J in (0,1):
                for l in pcalc(J): g.e(l)
    tick(16)
    g.e(f"s_nop 7\nv_accvgpr_read_b32 v4, a{LAcc}\ns_nop 0\nv_rcp_f32 v4, v4")
    for t in range(4):
        tb=128+16*t
        for r in range(8): g.e(f"v_accvgpr_read_b32 v{tb+r}, a{OA+8*t+r}")
        for r in range(8): g.e(f"v_mul_f32 v{tb+r}, v{tb+r}, v4")
        for r in range(4): g.e(f"v_cvt_pk_bf16_f32 v{tb+8+r}, v{tb+2*r}, v{tb+2*r+1}")
        if not opt.get("no_ostore"): g.e(f"buffer_store_dwordx4 {vr(tb+8)}, v{vOS}, {sr(S_O)}, s{sOB} offen offset:{t*1024}{STO}")
    g.e(f"""
    s_add_u32 s{sCUR}, s{sCUR}, 0x400000
    s_add_u32 s{sNXT}, s{sNXT}, 0x400000
    s_add_u32 s{sOB}, s{sOB}, 0x80000
    s_cmp_eq_u32 s{sLAST}, 1
    s_cbranch_scc0 L_A_DONE
    s_waitcnt vmcnt(0)
    s_barrier
    s_cmp_lg_u32 s{sW}, 0
    s_cbranch_scc1 L_A_DONE
    v_accvgpr_read_b32 v1, a166
    v_accvgpr_read_b32 v3, a164
    s_nop 0
    v_readfirstlane_b32 s{sT0}, v1
    v_readfirstlane_b32 s{sT1}, v3
    s_nop 3
    s_cmp_eq_u32 s{sT0}, 0
    s_cselect_b32 s{sNONCE}, s{sT1}, s{sT0}
    """)
    flag_store(0)
    g.e(f"L_A_DONE:\ns_add_u32 s{sITEM}, s{sITEM}, 1")
    tick(17); tick_store(); stamp()
    g.e(f"s_cmp_lt_u32 s{sITEM}, 4\ns_cbranch_scc1 L_ITEM")
    g.vm=[]; g.lg=[]
    tick(40)
    g.e(f"s_lshl_b32 s{sT0}, s{sKH}, 7")
    for dt in range(16): g.e(f"v_xor_b32 v{vWOR+dt}, s{sT0}, v{vVR+dt}")
    g.e("v_mov_b32 v1, 0")
    for r in range(64): g.e(f"v_accvgpr_write_b32 a{OACC+r}, v1")
    g.e(f"""
    s_cmp_lg_u32 s{sW}, 0
    s_cbranch_scc1 L_O_WAITB
    v_mov_b32 v1, {128*K1}
    v_mov_b32 v3, s{sNONCE}
    ds_write_b32 v1, v3
    s_mov_b32 s{sCNT}, 0
    s_mov_b64 exec, 0xffff
    L_O_POLL:
    global_load_dword v3, v{vPA}, s[{sWS}:{sWS+1}] sc1
    s_add_u32 s{sCNT}, s{sCNT}, 1
    s_waitcnt vmcnt(0)
    v_cmp_eq_u32 vcc, s{sNONCE}, v3
    s_cmp_gt_u32 s{sCNT}, 0x40000
    s_cbranch_scc1 L_O_POLLX
    s_nop 1
    s_cmp_lg_u32 vcc_lo, 0xffff
    s_cbranch_scc1 L_O_POLL
    L_O_POLLX:
    s_mov_b64 exec, -1
    s_waitcnt lgkmcnt(0)
    L_O_WAITB:
    s_barrier
    v_mov_b32 v1, {128*K1}
    ds_read_b32 v3, v1
    s_waitcnt lgkmcnt(0)
    v_readfirstlane_b32 s{sNONCE}, v3
    """)
    tick(41)
    if opt.get("stamps"):
        g.e(f"s_mov_b32 s101, s{sSEGN}\ns_mov_b32 s{sSEGN}, 9"); stamp(); g.e(f"s_mov_b32 s{sSEGN}, s101")
    OL=3; WL=NWOP; OF=128; NCH=32
    def o_1(st,k,srdn,tag=None):
        rt,js=k>>1,k&1
        r=OF+st*16+(rt*2+js)*4
        g.e(f"buffer_load_dwordx4 {vr(r)}, v{vOS if rt==0 else vOS1}, {sr(srdn)}, s{sKO} offen offset:{js*1024}{NTOO}")
    for c in range(OL):
        g.e(f"s_add_u32 s{sT0}, s{sPHO}, {c}\ns_and_b32 s{sT0}, s{sT0}, 7\ns_lshl_b32 s{sT0}, s{sT0}, 11\ns_add_u32 s{sKO}, s{sT0}, s{sOOB}")
        for k in range(4): o_1(c,k,S_O)
    RD=[(js,nt,hf) for js in range(2) for nt in range(8) for hf in range(2)]
    def a_read2(u,js,nt,hf):
        r=64*(u&1)+(js*8+nt)*4+2*hf
        sl=u&7
        g.lgop(f"ds_read_b64_tr_b16 a[{r}:{r+1}], v{vWOR+(8 if sl>=4 else 0)+nt} offset:{(sl&3)*SLOT+js*8192+hf*4096}",('A',u&1,js,nt))
    for (js,nt,hf) in RD: a_read2(0,js,nt,hf)
    g.e(f"""s_add_u32 s{sT0}, s{sPHO}, {WL}
    s_and_b32 s{sT0}, s{sT0}, 7
    s_lshl_b32 s{sWLO}, s{sT0}, 17
    s_add_u32 s{sT0}, s{sPHO}, {OL}
    s_and_b32 s{sT0}, s{sT0}, 7
    s_lshl_b32 s{sOLO}, s{sT0}, 11
    s_mov_b32 s{sJ}, 0""")
    def body(u):
        g.e(f"s_waitcnt vmcnt(8)")
        g.e("s_barrier")
        if opt.get("steps"): g.e(f"s_memtime s[96:97]\ns_waitcnt lgkmcnt(0)\ns_sub_u32 s99, s96, s98\ns_mov_b32 s98, s96\nv_readlane_b32 s97, v62, {u}\ns_nop 3\ns_add_u32 s97, s97, s99\ns_nop 0\nv_writelane_b32 v62, s97, {u}"); g.lg=[]
        G_=Gaps(32)
        vp=opt.get("o_vpos",[3,7,11,15,19,23,27,31])
        if u+WL==8:
            G_.put_post(0,S(f"s_add_u32 s{sWOB}, s{sWOB}, {8<<17}\ns_cmp_lt_u32 s{sJ}, {NCH-8}\ns_cselect_b32 s{S_WON+2}, {8*MB}, 0"))
        G_.put_post(1,S(f"s_add_u32 s{sKWO}, s{sWLO}, s{sWOB}"))
        G_.put_post(2,S(f"s_add_u32 m0, s{sWOFF}, {((u+WL)&7)*SLOT}"))
        if u+OL==8:
            G_.put_post(4,S(f"s_add_u32 s{sOOB}, s{sOOB}, {8<<11}\ns_cmp_lt_u32 s{sJ}, {NCH-8}\ns_cselect_b32 s{S_ON+2}, {32*MB}, 0"))
        G_.put_post(5,S(f"s_add_u32 s{sKO}, s{sOLO}, s{sOOB}"))
        G_.put_post(8,S(f"s_add_u32 s{sWLO}, s{sWLO}, {1<<17}"))
        G_.put_post(9,S(f"s_and_b32 s{sWLO}, s{sWLO}, {7<<17}"))
        G_.put_post(12,S(f"s_add_u32 s{sOLO}, s{sOLO}, {1<<11}"))
        G_.put_post(13,S(f"s_and_b32 s{sOLO}, s{sOLO}, {7<<11}"))
        for j in range(4):
            G_.mem[vp[2*j]]=(lambda j=j: g.e(f"buffer_load_dwordx4 v{vWOD+j}, {sr(S_WON)}, s{sKWO} offen offset:{1024*j}{NTO} lds"))
            G_.mem[vp[2*j+1]]=(lambda j=j,u=u: o_1((u+OL)&3,j,S_ON))
        rend=opt.get("o_rend",30)
        for n_,(js,nt,hf) in enumerate(RD):
            G_.put_mem(n_*rend/32.0,lambda js=js,nt=nt,hf=hf,u=u: a_read2(u+1,js,nt,hf))
        M=[]
        for js in range(2):
            for nt in range(8):
                for rt in range(2):
                    d=OACC+(rt*8+nt)*4
                    txt=f"v_mfma_f32_16x16x32_bf16 {ar(d)}, {ar(64*(u&1)+(js*8+nt)*4)}, {vr(OF+(u&3)*16+(rt*2+js)*4)}, {ar(d)}"
                    if rt==0: M.append(lambda txt=txt,u=u,js=js,nt=nt: (g.lgwait(('A',u&1,js,nt)), g.e(txt)))
                    else: M.append(txt)
        G_.emit(g,M)
    save=list(g.L)
    for u in range(8): body(u)
    lg_end=list(g.lg)
    g.L=save; g.lg=list(lg_end)
    g.e("s_waitcnt lgkmcnt(0)")
    if opt.get("steps"): g.e("v_mov_b32 v62, 0\ns_memtime s[98:99]\ns_waitcnt lgkmcnt(0)")
    g.label("L_O_LOOP")
    for u in range(8): body(u)
    assert g.lg==lg_end
    g.e(f"s_add_u32 s{sJ}, s{sJ}, 8\ns_cmp_lt_u32 s{sJ}, {NCH}\ns_cbranch_scc1 L_O_LOOP\ns_waitcnt lgkmcnt(0)")
    tick_store(); stamp()
    def xst(i):
        if opt.get("xstamps"):
            g.e(f"s_mov_b32 s101, s{sSEGN}\ns_mov_b32 s{sSEGN}, {i}"); stamp(); g.e(f"s_mov_b32 s{sSEGN}, s101")
    g.e("s_nop 7")
    for rt in range(2):
        if rt==1: g.e(f"s_add_u32 s{sEXW}, s{sEXW}, 4096")
        for m in range(4):
            d=OACC+(rt*8+4+m)*4
            g.e(f"buffer_store_dwordx4 {ar(d)}, v{vOS}, {sr(S_O)}, s{sEXW} offen offset:{m*1024} sc1")
    for rt in range(2):
        for m in range(4):
            for q in range(4): g.e(f"v_accvgpr_read_b32 v{128+(rt*4+m)*4+q}, a{OACC+(rt*8+m)*4+q}")
    g.e(f"""
    v_lshrrev_b32 v3, 4, v0
    v_and_b32 v4, 15, v0
    v_lshlrev_b32 v5, 3, v3
    v_lshl_add_u32 v52, v4, 12, v5
    s_lshl_b32 s{sCNT}, s{sW}, 2
    s_add_u32 s{sCNT}, s{sCNT}, 16
    s_waitcnt vmcnt(0)
    """)
    xst(11)
    flag_store(f"s{sCNT}")
    g.e(f"""
    s_xor_b32 s{sT0}, s2, 128
    s_lshl_b32 s{sT0}, s{sT0}, 7
    s_add_u32 s{sT0}, s{sT0}, {FLAG_OFF}
    s_add_u32 s{sT0}, s{sT0}, s{sCNT}
    v_mov_b32 v1, s{sT0}
    s_mov_b32 s{sCNT}, 0
    s_mov_b64 exec, 1
    L_X_POLL:
    global_load_dword v3, v1, s[{sWS}:{sWS+1}] sc1
    s_add_u32 s{sCNT}, s{sCNT}, 1
    s_waitcnt vmcnt(0)
    v_readfirstlane_b32 s{sT0}, v3
    s_cmp_gt_u32 s{sCNT}, 0x40000
    s_cbranch_scc1 L_X_POLLX
    s_cmp_lg_u32 s{sT0}, s{sNONCE}
    s_cbranch_scc1 L_X_POLL
    L_X_POLLX:
    s_mov_b64 exec, -1
    """)
    xst(12)
    for rt in range(2):
        if rt==1: g.e(f"s_add_u32 s{sEXR}, s{sEXR}, 4096")
        for m in range(4):
            r=192+(rt*4+m)*4
            g.e(f"buffer_load_dwordx4 {vr(r)}, v{vOS}, {sr(S_O)}, s{sEXR} offen offset:{m*1024} sc1")
    for rt in range(2):
        if rt==1: g.e(f"s_add_u32 s{sOUTB}, s{sOUTB}, 0x10000")
        for m in range(4):
            d=128+(rt*4+m)*4; r=192+(rt*4+m)*4
            if rt==0 and m==0:
                g.e("s_waitcnt vmcnt(0)"); xst(13)
            for q in range(4): g.e(f"v_add_f32 v{d+q}, v{d+q}, v{r+q}")
            g.e(f"""v_cvt_pk_bf16_f32 v{d}, v{d}, v{d+1}
            v_cvt_pk_bf16_f32 v{d+1}, v{d+2}, v{d+3}
            buffer_store_dwordx2 v[{d}:{d+1}], v52, {sr(S_OUT)}, s{sOUTB} offen offset:{m*32}{opt.get("st_out","")}""")
    stamp()
    if opt.get("stamps"):
        g.e("s_waitcnt vmcnt(0)")
        g.e(f"s_mov_b32 s{sSEGN}, 10")
        stamp()
    g.label("L_END")
    g.e("s_endpgm")
    return g.text()

def build(opt):
    s="; @launch grid=(256,1,1) block=(256,1,1) lds=163840\n"
    s+='.amdgcn_target "amdgcn-amd-amdhsa--gfx950"\n'
    s+=f".text\n.globl {KN}\n.p2align 8\n.type {KN},@function\n{KN}:\n"
    s+=gen(opt)
    s+=f""".section .rodata,"a"
.p2align 6
.amdhsa_kernel {KN}
  .amdhsa_next_free_vgpr 512
  .amdhsa_next_free_sgpr 102
  .amdhsa_accum_offset 256
  .amdhsa_group_segment_fixed_size 0
  .amdhsa_kernarg_size 104
  .amdhsa_user_sgpr_count 2
  .amdhsa_user_sgpr_kernarg_segment_ptr 1
  .amdhsa_system_sgpr_workgroup_id_x 1
.end_amdhsa_kernel
"""
    return s
if __name__=="__main__":
    opt=json.loads(sys.argv[2]) if len(sys.argv)>2 else {}
    open(sys.argv[1],"w").write(build(opt))
```

```python
import sys, struct, math, json
from gl import *
KN="concat_heads__mha_block_cached__mha_block_cached__near_ridge_kernel"
C_SCALE=struct.unpack("<I",struct.pack("<f",math.log2(math.e)/math.sqrt(128.0)))[0]
K1=1024; MB=K1*K1
EXCH_OFF=16*MB; FLAG_OFF=24*MB+512*K1; STAMP_OFF=32*MB
SLOT=16384; LA=7; NPRE=3
WQBASE=48*K1; XBASE=96*K1
WO_AREA=[128*K1,144*K1,96*K1,112*K1]; WO_RB=96*K1

def gen(opt):
    opt=dict(opt); opt.setdefault('thra',4); opt.setdefault('thra_skip',3); opt.setdefault('late',1)
    g=G()
    S=lambda txt: (lambda: g.e(txt))
    NT=opt.get('nt_kv',' nt')
    NTX=opt.get("nt_x",""); NTW=opt.get("nt_wq"," nt"); NTO=opt.get("nt_wo",""); NTOO=opt.get("nt_o"," sc1"); STO=opt.get("st_o"," sc1")
    FULL=opt.get("fullrot",0); KM=15 if FULL else 7
    NWOP=opt.get("nwop",7)
    KREG={int(k):v for k,v in opt.get("kreg",{}).items()}
    KRI={c:n for n,c in enumerate(sorted(KREG.values()))}
    KPRE={int(k):v for k,v in opt.get("kpre",{10:0,12:1,14:2}).items()}
    sPA=7;sKRG=7;sSIG=3;sKRO=100;sJ=4;sLAST=5;sCNT=6
    S_X=8;S_WQ=12;S_K=16;S_V=20;S_KN=24;S_O=28;S_WO=32;S_OUT=36;S_WON=40
    sW=44;sBR=45;sH=46;sBG=47;sRB=48;sCB=49;sKH=50;sPHI=51;sPHO=52
    sWQB=53;sKX=54;sKW=55;sXT=56;sWT=57;sT0=58;sT1=59
    sCUR=60;sNXT=61;sITEM=62;sOB=63;sC=64;sWOFF=65;sXL=66;sWL=67
    sMASK=68
    sXB=70
    sNONCE=74;sWOB=75;sOOB=76;sKWO=77;sKO=78;sWLO=79;sOLO=80;sOUTB=81;sEXW=82;sEXR=83
    S_ON=84
    sSEGN=89; sWS=90; sDBG=92; sSTB=94
    vKD=8; vVD=12; vKR=14; vVR=22; vOS=38; vOS1=39; vWOD=40; vPA=44; vTCH=45; sTCH=88
    vXD=46; vXR=48; vWD=50; vWR=54
    TA=52; vWOR=46
    QF=64; ACC=128
    OA=128; LAcc=160; ONES=168; QCUR=172; OACC=192
    def stamp():
        if not opt.get("stamps"): return
        g.e(f"""
        s_memrealtime s[96:97]
        s_memtime s[98:99]
        s_waitcnt lgkmcnt(0)
        v_mov_b32 v2, s96
        v_mov_b32 v3, s98
        s_lshl_b32 s96, s2, 7
        s_lshl_b32 s97, s{sSEGN}, 3
        s_add_u32 s96, s96, s97
        v_mov_b32 v1, s96
        global_store_dwordx2 v1, v[2:3], s[{sSTB}:{sSTB+1}]
        s_add_u32 s{sSEGN}, s{sSEGN}, 1
        """)
        g.lg=[]
        g.vm.append('stamp') if False else None
    def dstamp(word,neg=False):
        if not opt.get("dstamps"): return
        n=f"L_DS{word}"
        g.e(f"""
        s_cmp_lg_u32 s{sW}, 0
        s_cbranch_scc1 {n}
        s_memrealtime s[96:97]
        s_waitcnt lgkmcnt(0)
        {"s_not_b32 s96, s96" if neg else ""}
        v_mov_b32 v2, s96
        v_mov_b32 v1, {word*4}
        s_mov_b64 exec, 1
        global_atomic_umax v1, v2, s[{sDBG}:{sDBG+1}]
        s_mov_b64 exec, -1
        {n}:
        """)
        g.lg=[]
    def tick(k):
        if opt.get("steps"):
            g.e(f"s_memtime s[96:97]\ns_waitcnt lgkmcnt(0)\nv_writelane_b32 v62, s96, {k}"); g.lg=[]
    def tick_store():
        if opt.get("steps"):
            g.e(f"s_lshl_b32 s96, s2, 12\ns_lshl_b32 s97, s{sSEGN}, 8\ns_add_u32 s96, s96, s97\ns_add_u32 s96, s96, {MB}\nv_lshlrev_b32 v1, 2, v0\nv_add_u32 v1, s96, v1\nglobal_store_dword v1, v62, s[{sSTB}:{sSTB+1}]")
    if opt.get("stamps"): g.e("s_memrealtime s[88:89]\ns_waitcnt lgkmcnt(0)\ns_mov_b32 s101, s88")
    g.e(f"""
    s_cmp_ge_u32 s2, 256
    s_cbranch_scc1 L_END
    s_load_dwordx4 s[96:99], s[0:1], 80
    s_load_dwordx2 s[{sWS}:{sWS+1}], s[0:1], 96
    s_and_b32 s3, s2, 7                          ; xcd
    s_lshr_b32 s4, s2, 3                         ; idx
    s_lshr_b32 s{sBR}, s3, 2
    s_and_b32 s5, s3, 3
    s_lshl_b32 s5, s5, 3
    s_and_b32 s6, s4, 7
    s_add_u32 s{sH}, s5, s6
    s_lshr_b32 s{sBG}, s4, 3
    s_lshl_b32 s7, s{sBG}, 1
    s_add_u32 s7, s7, s6
    s_and_b32 s{sPHI}, s7, 7
    {"s_lshl_b32 s"+str(sPHI)+", s"+str(sPHI)+", 1" if FULL else ""}
    ; O mapping
    s_lshr_b32 s5, s3, 1
    s_and_b32 s5, s5, 1
    s_lshl_b32 s5, s5, 2
    s_and_b32 s6, s4, 3
    s_add_u32 s{sRB}, s5, s6
    s_and_b32 s5, s3, 1
    s_lshl_b32 s5, s5, 2
    s_lshr_b32 s7, s4, 2
    s_and_b32 s7, s7, 3
    s_add_u32 s{sCB}, s5, s7
    s_lshr_b32 s{sKH}, s4, 4
    s_add_u32 s{sPHO}, s6, s7
    s_and_b32 s{sPHO}, s{sPHO}, 3
    s_lshl_b32 s{sPHO}, s{sPHO}, 1
    s_mul_i32 s5, s{sBR}, 40
    s_add_u32 s4, s0, s5
    s_addc_u32 s5, s1, 0
    s_load_dwordx4 s[8:11], s[4:5], 0            ; x, k
    s_load_dwordx4 s[12:15], s[4:5], 16          ; v, wq
    s_load_dwordx2 s[16:17], s[4:5], 32          ; wo
    v_lshrrev_b32 v1, 6, v0
    v_and_b32 v0, 63, v0
    s_nop 0
    v_readfirstlane_b32 s{sW}, v1
    """)
    g.e(f"""
    v_lshrrev_b32 v1, 3, v0              ; r8
    v_and_b32 v2, 7, v0                  ; p8
    v_lshrrev_b32 v3, 4, v0              ; rr / g
    v_and_b32 v4, 15, v0                 ; p16 / q / key
    v_xor_b32 v5, v2, v3
    v_lshlrev_b32 v5, 4, v5
    v_lshl_add_u32 v{vXD}, v1, 11, v5
    v_xor_b32 v5, 64, v5
    v_lshl_add_u32 v5, v1, 11, v5
    v_add_u32 v{vXD+1}, {8*2048-1024}, v5
    v_lshrrev_b32 v5, 1, v4
    v_xor_b32 v5, v5, v3
    v_lshlrev_b32 v5, 4, v5
    v_lshl_add_u32 v5, v4, 7, v5
    s_lshl_b32 s{sXL}, s{sW}, 14
    s_add_u32 s{sXL}, s{sXL}, {XBASE}
    v_add_u32 v{vXR}, s{sXL}, v5
    v_xor_b32 v{vXR+1}, 64, v{vXR}
    v_and_b32 v5, 1, v3
    v_and_b32 v6, 2, v3
    v_lshl_or_b32 v5, v6, 1, v5          ; f0
    v_xor_b32 v5, v5, v4                 ; p ^ f0
    """)
    for j in range(4):
        g.e(f"""
        v_xor_b32 v6, {8*(j>>1)}, v5
        v_lshlrev_b32 v6, 4, v6
        v_lshl_add_u32 v6, v3, 13, v6
        v_add_u32 v{vWD+j}, {4*j*8192-1024*j}, v6
        """)
    g.e(f"""
    v_lshrrev_b32 v5, 2, v4              ; rp
    v_and_b32 v6, 3, v0                  ; c
    v_and_b32 v7, 1, v5
    v_and_b32 v1, 2, v5
    v_lshl_or_b32 v7, v1, 1, v7
    v_and_b32 v1, 1, v3
    v_lshl_or_b32 v7, v1, 3, v7          ; f
    v_xor_b32 v7, v7, v6                 ; c ^ f
    v_lshlrev_b32 v7, 4, v7
    v_and_b32 v1, 1, v6
    v_lshl_or_b32 v7, v1, 3, v7          ; + 8*(c&1)
    v_lshl_add_u32 v1, v3, 3, v5         ; 8kg+rp
    v_lshl_add_u32 v7, v1, 8, v7
    v_add_u32 v7, {WQBASE}, v7
    """)
    for dt in range(8):
        t,u=dt>>1,dt&1
        g.e(f"v_xor_b32 v{vWR+dt}, {(t<<6)^(u<<3)}, v7")
    for j in range(4):
        g.e(f"""
        v_add_u32 v5, {4*(j&1)}, v3
        v_lshlrev_b32 v5, 1, v5
        v_xor_b32 v5, v5, v4
        v_lshlrev_b32 v5, 4, v5
        v_lshl_add_u32 v5, v3, 11, v5
        v_add_u32 v{vWOD+j}, {4*j*2048-1024*j}, v5
        """)
    g.e(f"""
    s_lshl_b32 s{sT0}, s{sKH}, 4
    v_add_u32 v5, s{sT0}, v4             ; h = 16kh + t
    v_lshrrev_b32 v6, 3, v5              ; h>>3
    s_lshl_b32 s{sT0}, s{sBR}, 2
    v_add_u32 v6, s{sT0}, v6             ; xcd'
    v_and_b32 v5, 7, v5
    s_lshr_b32 s{sT0}, s{sRB}, 1
    s_lshl_b32 s{sT0}, s{sT0}, 3
    v_add_u32 v5, s{sT0}, v5             ; idx'
    v_lshl_add_u32 v5, v5, 3, v6         ; wg'
    v_lshlrev_b32 v5, 7, v5
    s_mov_b32 s{sT0}, {FLAG_OFF}
    v_add_u32 v{vPA}, s{sT0}, v5
    """)
    for j in range(4):
        g.e(f"""
        v_add_u32 v5, {4*j}, v3
        v_xor_b32 v5, v5, v4
        v_lshlrev_b32 v5, 4, v5
        v_lshl_add_u32 v{vKD+j}, v3, 8, v5
        """)
    g.e(f"""
    v_xor_b32 v5, v3, v4
    v_lshlrev_b32 v5, 4, v5
    v_lshl_add_u32 v5, v4, 8, v5
    """)
    for t in range(4): g.e(f"v_xor_b32 v{vKR+t}, {t<<6}, v5\nv_add_u32 v{vKR+4+t}, 0x10000, v{vKR+t}")
    for jp in range(2):
        g.e(f"""
        v_add_u32 v5, {4*jp}, v3
        v_lshlrev_b32 v5, 1, v5
        v_xor_b32 v5, v5, v4
        v_lshlrev_b32 v5, 4, v5
        v_lshl_add_u32 v{vVD+jp}, v3, 8, v5
        """)
    g.e(f"""
    v_lshrrev_b32 v5, 2, v4              ; rp
    v_and_b32 v6, 3, v0                  ; c
    v_and_b32 v7, 1, v3
    v_lshl_add_u32 v7, v7, 2, v5         ; 4(g&1)+rp
    v_lshlrev_b32 v7, 1, v7
    v_lshrrev_b32 v1, 1, v6
    v_xor_b32 v7, v7, v1
    v_lshlrev_b32 v7, 4, v7
    v_and_b32 v1, 1, v6
    v_lshl_or_b32 v7, v1, 3, v7
    v_lshl_add_u32 v1, v3, 2, v5         ; 4g+rp
    v_lshl_add_u32 v7, v1, 8, v7
    """)
    for dt in range(8): g.e(f"v_xor_b32 v{vVR+dt}, {dt<<5}, v7\nv_add_u32 v{vVR+8+dt}, 0x10000, v{vVR+dt}")
    g.e(f"v_lshlrev_b32 v{vTCH}, 7, v0")
    g.e(f"s_and_b32 s{sT0}, s2, 3\ns_lshl_b32 s{sT0}, s{sT0}, 5\ns_lshr_b32 s{sT1}, s2, 3\ns_add_u32 s{sT0}, s{sT0}, s{sT1}\ns_lshl_b32 s{sTCH}, s{sT0}, 16\ns_lshl_b32 s{sT0}, s{sW}, 14\ns_add_u32 s{sTCH}, s{sTCH}, s{sT0}")
    g.e(f"v_lshlrev_b32 v{vOS}, 4, v0\nv_add_u32 v{vOS1}, 0x20000, v{vOS}\nv_mov_b32 v1, 0x3f803f80")
    for r in range(4): g.e(f"v_accvgpr_write_b32 a{ONES+r}, v1")
    g.e("s_waitcnt lgkmcnt(0)")
    def mk(s,lo,hi,size): g.e(f"s_mov_b32 s{s}, s{lo}\ns_and_b32 s{s+1}, s{hi}, 0xffff\ns_mov_b32 s{s+2}, {size}\ns_mov_b32 s{s+3}, 0x20000")
    g.e(f"s_mov_b32 s{sDBG}, s98\ns_mov_b32 s{sDBG+1}, s99")
    mk(S_OUT,96,97,4*MB); mk(S_WO,16,17,8*MB); mk(S_WON,16,17,8*MB); mk(S_V,12,13,64*MB)
    mk(S_K,10,11,64*MB); mk(S_KN,10,11,64*MB)
    g.e(f"s_mov_b32 s4, s14\ns_mov_b32 s5, s15\ns_and_b32 s{S_X+1}, s9, 0xffff\ns_mov_b32 s{S_X+2}, {2*MB}\ns_mov_b32 s{S_X+3}, 0x20000")
    mk(S_WQ,4,5,8*MB); mk(S_O,sWS,sWS+1,32*MB); mk(S_ON,sWS,sWS+1,32*MB)
    g.e(f"""
    s_add_u32 s{sSTB}, s{sWS}, {STAMP_OFF}
    s_addc_u32 s{sSTB+1}, s{sWS+1}, 0
    s_mov_b32 s{sSEGN}, 0
    s_lshl_b32 s{sWOFF}, s{sW}, 12
    s_add_u32 s{sWL}, s{sWOFF}, {WQBASE}
    s_lshl_b32 s{sT0}, s{sBG}, 19
    s_lshl_b32 s{sT1}, s{sW}, 15
    s_add_u32 s{sXB}, s{sT0}, s{sT1}
    s_add_u32 s{sXB+1}, s{sXB}, 0x20000
    s_add_u32 s{sXB+2}, s{sXB}, 0x40000
    s_add_u32 s{sXB+3}, s{sXB}, 0x60000
    s_lshl_b32 s{sT0}, s{sW}, 17
    s_lshl_b32 s{sT1}, s{sH}, 8
    s_add_u32 s{sWQB}, s{sT0}, s{sT1}
    """)
    if opt.get("stamps"):
        g.e(f"v_mov_b32 v2, s101\nv_mov_b32 v3, 0\ns_lshl_b32 s96, s2, 7\ns_add_u32 s96, s96, 120\nv_mov_b32 v1, s96\nglobal_store_dwordx2 v1, v[2:3], s[{sSTB}:{sSTB+1}]")
    stamp()
    dstamp(2,True)
    def late_setup():
        g.e(f"""
        s_mov_b32 s{sC}, {C_SCALE}
        s_mov_b32 s{sMASK}, 0xffff0000
        s_mov_b32 s{sMASK+1}, 0xffff0000
        s_lshl_b32 s{sT0}, s{sBG}, 24
        s_lshl_b32 s{sT1}, s{sH}, 17
        s_add_u32 s{sCUR}, s{sT0}, s{sT1}
        s_add_u32 s{sCUR}, s{sCUR}, s{sWOFF}
        s_add_u32 s{sNXT}, s{sCUR}, 0x400000
        s_lshl_b32 s{sT0}, s{sBR}, 23
        s_lshl_b32 s{sT1}, s{sBG}, 21
        s_add_u32 s{sOB}, s{sT0}, s{sT1}
        s_lshl_b32 s{sT0}, s{sW}, 17
        s_add_u32 s{sOB}, s{sOB}, s{sT0}
        s_lshl_b32 s{sT0}, s{sH}, 12
        s_add_u32 s{sOB}, s{sOB}, s{sT0}
        s_lshl_b32 s{sT0}, s{sKH}, 22
        s_lshl_b32 s{sT1}, s{sW}, 15
        s_add_u32 s{sWOB}, s{sT0}, s{sT1}
        s_lshl_b32 s{sT0}, s{sCB}, 8
        s_add_u32 s{sWOB}, s{sWOB}, s{sT0}
        s_lshl_b32 s{sT0}, s{sRB}, 3
        s_lshl_b32 s{sT1}, s{sW}, 1
        s_add_u32 s{sT0}, s{sT0}, s{sT1}            ; 8rb+2w
        s_lshl_b32 s{sOUTB}, s{sT0}, 16
        s_lshl_b32 s{sOOB}, s{sT0}, 17
        s_lshl_b32 s{sT1}, s{sBR}, 23
        s_add_u32 s{sOOB}, s{sOOB}, s{sT1}
        s_lshl_b32 s{sT1}, s{sKH}, 16
        s_add_u32 s{sOOB}, s{sOOB}, s{sT1}
        s_lshl_b32 s{sT1}, s{sBR}, 11
        s_add_u32 s{sOUTB}, s{sOUTB}, s{sT1}
        s_lshl_b32 s{sT1}, s{sCB}, 8
        s_add_u32 s{sOUTB}, s{sOUTB}, s{sT1}
        s_lshl_b32 s{sT1}, s{sKH}, 7
        s_add_u32 s{sOUTB}, s{sOUTB}, s{sT1}
        s_lshl_b32 s{sT1}, s{sW}, 13
        s_lshl_b32 s{sEXW}, s2, 15
        s_add_u32 s{sEXW}, s{sEXW}, s{sT1}
        s_add_u32 s{sEXW}, s{sEXW}, {EXCH_OFF}
        s_xor_b32 s{sEXR}, s2, 128
        s_lshl_b32 s{sEXR}, s{sEXR}, 15
        s_add_u32 s{sEXR}, s{sEXR}, s{sT1}
        s_add_u32 s{sEXR}, s{sEXR}, {EXCH_OFF}
        s_lshr_b32 s{sT0}, s2, {opt.get("krot_sh",3)}
        s_and_b32 s{sT0}, s{sT0}, 7
        s_lshl_b32 s{sKRO}, s{sT0}, 14
        s_mov_b32 s{sITEM}, 0
        s_mov_b32 s{sNONCE}, 0
        s_mov_b32 s{sPA}, 0
        s_mov_b32 s{sSIG}, 0
        s_cmp_lg_u32 s{sW}, 0
        s_cbranch_scc1 L_NONCE_DONE
        s_memrealtime s[96:97]
        s_waitcnt lgkmcnt(0)
        s_or_b32 s96, s96, 1
        v_mov_b32 v4, s96
        v_mov_b32 v5, 0
        v_accvgpr_write_b32 a164, v4
        v_accvgpr_write_b32 a165, v5
        s_mov_b64 exec, 1
        global_atomic_cmpswap a166, v5, a[164:165], s[{sDBG}:{sDBG+1}] sc0
        s_mov_b64 exec, -1
        L_NONCE_DONE:
        """)
    def flag_store(off):
        g.e(f"""
        s_lshl_b32 s{sT0}, s2, 7
        s_add_u32 s{sT0}, s{sT0}, {FLAG_OFF}
        s_add_u32 s{sT0}, s{sT0}, {off}
        v_mov_b32 v1, s{sT0}
        v_mov_b32 v3, s{sNONCE}
        s_mov_b64 exec, 1
        global_store_dword v1, v3, s[{sWS}:{sWS+1}] sc1
        s_mov_b64 exec, -1
        """)
    nsig=[0]
    def pending_signal():
        nsig[0]+=1; n=nsig[0]
        g.e(f"""
        s_cmp_eq_u32 s{sSIG}, 0
        s_cbranch_scc1 L_SG{n}
        s_cmp_lg_u32 s{sW}, 0
        s_cbranch_scc1 L_SGX{n}
        s_sub_u32 s{sCNT}, s{sSIG}, 1
        s_lshl_b32 s{sCNT}, s{sCNT}, 2
        """)
        flag_store(f"s{sCNT}")
        g.e(f"L_SGX{n}:\ns_mov_b32 s{sSIG}, 0\nL_SG{n}:")
    def kv_soff(dst,base,ch):
        if opt.get("krot"):
            return f"s_add_u32 s{dst}, s{sKRO}, {ch*16384}\ns_and_b32 s{dst}, s{dst}, 0x1ffff\ns_add_u32 s{dst}, s{dst}, s{base}"
        return f"s_add_u32 s{dst}, s{base}, {ch*16384}"
    def kv_group(cc):
        if cc<8: srdn,base,vo,ch=S_K,sCUR,[vKD+j for j in range(4)],cc
        elif cc<16: srdn,base,vo,ch=S_V,sCUR,[vVD+(j&1) for j in range(4)],cc-8
        else: srdn,base,vo,ch=S_KN,sNXT,[vKD+j for j in range(4)],cc-16
        return (f"s_add_u32 m0, s{sWOFF}, {(cc&7)*SLOT}\n"+kv_soff(sT1,base,ch),
                [f"buffer_load_dwordx4 v{vo[j]}, {sr(srdn)}, s{sT1} offen offset:{1024*j}{NT} lds" for j in range(4)])
    def wo_group(c,track,srdn=S_WO):
        g.e(f"s_add_u32 s{sT1}, s{sPHO}, {c}\ns_and_b32 s{sT1}, s{sT1}, 7\ns_lshl_b32 s{sT1}, s{sT1}, 17\ns_add_u32 m0, s{sWOFF}, {(c&7)*SLOT}\ns_add_u32 s{sT1}, s{sT1}, s{sWOB}")
        for j in range(4):
            t=f"buffer_load_dwordx4 v{vWOD+j}, {sr(srdn)}, s{sT1} offen offset:{1024*j}{NTO} lds"
            g.vmop(t,('wo',c)) if track else g.e(t)
    def kidx(s,dst,shift):
        g.e(f"s_add_u32 s{sT0}, s{sPHI}, {s}\ns_and_b32 s{sT0}, s{sT0}, {KM}\ns_or_b32 s{sT0}, s{sT0}, {0 if FULL else s&8}\ns_lshl_b32 s{dst}, s{sT0}, {shift}")
    def x_dma(s,i):
        slot=(s&1)*4+i
        g.e(f"s_add_u32 m0, s{sXL}, {slot*2048}\ns_add_u32 s{sT1}, s{sXB+i}, s{sKX}")
        for j in range(2): g.vmop(f"buffer_load_dwordx4 v{vXD+j}, {sr(S_X)}, s{sT1} offen offset:{1024*j}{NTX} lds",('x',s,i))
    def wq_dma(s):
        g.e(f"s_add_u32 m0, s{sWL}, {(s%3)*16384}\ns_add_u32 s{sT1}, s{sWQB}, s{sKW}")
        for j in range(4): g.vmop(f"buffer_load_dwordx4 v{vWD+j}, {sr(S_WQ)}, s{sT1} offen offset:{1024*j}{NTW} lds",('wq',s))
    def a_read(s,ks,dt,hf):
        r=64*(s&1)+(ks*8+dt)*4+2*hf
        g.lgop(f"ds_read_b64_tr_b16 a[{r}:{r+1}], v{vWR+dt} offset:{(s%3)*16384+ks*8192+hf*1024}",('A',s))
    def b_read(s,i,ks):
        n=s*4+i
        r=128+(n&1)*8+ks*4
        g.lgop(f"ds_read_b128 a[{r}:{r+3}], v{vXR+ks} offset:{((s&1)*4+i)*2048}",('B',s,i))
    tick(40)
    kidx(0,sKW,19); wq_dma(0)
    if opt.get("tlb"):
        late_setup()
        g.e(f"""
        v_lshlrev_b32 v1, 22, v0
        v_lshlrev_b32 v2, 20, v0
        v_mov_b32 v3, s{sOB}
        v_writelane_b32 v3, s{sOOB}, 1
        v_writelane_b32 v3, s{sEXW}, 2
        s_lshl_b32 s{sT0}, s2, 7
        s_add_u32 s{sT0}, s{sT0}, {FLAG_OFF}
        v_writelane_b32 v3, s{sT0}, 3
        s_mov_b32 m0, s{sWOFF}
        s_mov_b64 exec, 0xf
        """)
        g.vmop(f"buffer_load_dword v1, {sr(S_K)}, s{sCUR} offen{NT} lds",('tlb',))
        g.vmop(f"buffer_load_dword v1, {sr(S_V)}, s{sCUR} offen{NT} lds",('tlb',))
        g.vmop(f"buffer_load_dword v2, {sr(S_WO)}, s{sWOB} offen{NT} lds",('tlb',))
        g.vmop(f"buffer_load_dword v3, {sr(S_O)}, 0 offen{NT} lds",('tlb',))
        g.e("s_mov_b64 exec, 1")
        g.vmop(f"buffer_load_dword v1, {sr(S_OUT)}, s{sOUTB} offen{NT} lds",('tlb',))
        g.e("s_mov_b64 exec, -1")
    kidx(0,sKX,7)
    for i in range(4): x_dma(0,i)
    kidx(1,sKW,19); wq_dma(1)
    if not opt.get("qpro",0):
        kidx(1,sKX,7)
        for i in range(4): x_dma(1,i)
        kidx(2,sKW,19); wq_dma(2)
    if not opt.get("tlb"): late_setup()
    g.vmwait(('wq',0))
    g.e("s_barrier")
    AR=[(ks,dt,hf) for ks in range(2) for dt in range(8) for hf in range(2)]
    for (ks,dt,hf) in AR: a_read(0,ks,dt,hf)
    g.vmwait(('x',0,0))
    b_read(0,0,0); b_read(0,0,1)
    if opt.get("qpro",0):
        kidx(1,sKX,7)
        for i in range(4): x_dma(1,i)
        kidx(2,sKW,19); wq_dma(2)
    g.e(f"""s_add_u32 s{sT0}, s{sPHI}, 2
    s_and_b32 s{sT0}, s{sT0}, {KM}
    s_lshl_b32 s{sKX}, s{sT0}, 7
    s_add_u32 s{sT0}, s{sPHI}, 3
    s_and_b32 s{sT0}, s{sT0}, {KM}
    s_lshl_b32 s{sKW}, s{sT0}, 19""")
    for s in range(16):
        if s+1<16: g.vmwait(('wq',s+1))
        g.lgwait(('A',s))
        g.e("s_barrier")
        tick(s)
        G_=Gaps(64)
        dpos=opt.get("dpos",[2,7,12,17,23,28,34,39,45,50,56,61])
        if s+3<16:
            if (s+3)==8 and not FULL: G_.put_post(0,S(f"s_add_u32 s{sWQB}, s{sWQB}, {8<<19}"))
            G_.put_post(dpos[0]-2,S(f"s_add_u32 s{sWT}, s{sWQB}, s{sKW}"))
            G_.put_post(dpos[0]-1,S(f"s_add_u32 m0, s{sWL}, {((s+3)%3)*16384}"))
            for j in range(4):
                G_.mem[dpos[j]]=(lambda j=j,s=s: g.vmop(f"buffer_load_dwordx4 v{vWD+j}, {sr(S_WQ)}, s{sWT} offen offset:{1024*j}{NTW} lds",('wq',s+3)))
            G_.put_post(dpos[3],S(f"s_add_u32 s{sKW}, s{sKW}, {1<<19}"))
            G_.put_post(dpos[3]+1,S(f"s_and_b32 s{sKW}, s{sKW}, {KM<<19}"))
        if s+2<16:
            for i in range(4):
                p=dpos[4+2*i]
                if (s+2)==8 and not FULL: G_.put_post(p-3,S(f"s_add_u32 s{sXB+i}, s{sXB+i}, 1024"))
                G_.put_post(p-2,S(f"s_add_u32 s{sXT}, s{sXB+i}, s{sKX}"))
                G_.put_post(p-1,S(f"s_add_u32 m0, s{sXL}, {((s&1)*4+i)*2048}"))
                for j in range(2):
                    G_.mem[dpos[4+2*i+j]]=(lambda j=j,s=s,i=i: g.vmop(f"buffer_load_dwordx4 v{vXD+j}, {sr(S_X)}, s{sXT} offen offset:{1024*j}{NTX} lds",('x',s+2,i)))
            G_.put_post(dpos[11],S(f"s_add_u32 s{sKX}, s{sKX}, 128"))
            G_.put_post(dpos[11]+1,S(f"s_and_b32 s{sKX}, s{sKX}, {KM<<7}"))
        if s in KPRE:
            c=KPRE[s]
            for j,p in enumerate(opt.get("kpos",[19,30,41,52])):
                G_.put_post(p-2,S(kv_soff(sT1,sCUR,c)))
                G_.put_post(p-1,S(f"s_add_u32 m0, s{sWOFF}, {c*SLOT}"))
                assert G_.mem[p] is None
                G_.mem[p]=(lambda j=j,c=c: g.vmop(f"buffer_load_dwordx4 v{vKD+j}, {sr(S_K)}, s{sT1} offen offset:{1024*j}{NT} lds",('kv',c)))
        if s in KREG:
            c=KREG[s]
            for j,p in enumerate(opt.get("kpos",[19,30,41,52])):
                if j==0: G_.put_post(p-2,S(f"s_add_u32 s{sKRG}, s{sCUR}, {c*16384}"))
                assert G_.mem[p] is None
                r=OACC+16*KRI[c]+4*j
                G_.mem[p]=(lambda j=j,r=r: g.e(f"buffer_load_dwordx4 {ar(r)}, v{vKD+j}, {sr(S_K)}, s{sKRG} offen offset:{1024*j}{NT}"))
        WT={int(k):v for k,v in opt.get("wotouch",{}).items()}
        if s in WT:
            n_=WT[s]; p=20
            assert G_.mem[p] is None
            G_.put_post(p-2,S(f"s_add_u32 s{sT1}, s{sTCH}, {n_*8192}"))
            G_.put_post(p-1,S(f"s_add_u32 m0, s{sWOFF}, {2*SLOT}"))
            G_.mem[p]=(lambda: g.vmop(f"buffer_load_dword v{vTCH}, {sr(S_WO)}, s{sT1} offen lds",('tch',)))
        for i in range(4):
            nxt=(s,i+1) if i<3 else ((s+1,0) if s+1<16 else None)
            if nxt:
                q=G_.put_mem(16*i+opt.get("bpos",4),lambda nxt=nxt: b_read(nxt[0],nxt[1],0),lo=16*i,hi=16*i+16)
                G_.put_pre(q,lambda nxt=nxt: g.vmwait(('x',)+nxt))
                G_.put_mem(q+1,lambda nxt=nxt: b_read(nxt[0],nxt[1],1),lo=q+1,hi=16*i+16)
        if s+1<16:
            aend=opt.get("aend",56)
            for n_,(ks,dt,hf) in enumerate(AR):
                G_.put_mem(n_*aend/32.0,lambda ks=ks,dt=dt,hf=hf,s=s: a_read(s+1,ks,dt,hf),hi=62)
        M=[]
        for i in range(4):
            n=s*4+i
            for ks in range(2):
                for dt in range(8):
                    d=ACC+(i*8+dt)*4
                    txt=f"v_mfma_f32_16x16x32_bf16 {vr(d)}, {ar(64*(s&1)+(ks*8+dt)*4)}, {ar(128+(n&1)*8+ks*4)}, {'0' if (s==0 and ks==0) else vr(d)}"
                    if ks==0 and dt==0: M.append(lambda txt=txt,s=s,i=i: (g.lgwait(('B',s,i)), g.e(txt)))
                    else: M.append(txt)
        G_.emit(g,M)
    tick(16)
    if KREG: g.e("s_waitcnt vmcnt(0)")
    g.e("s_barrier")
    if KREG:
        g.e(f"v_add_u32 v1, s{sWOFF}, v{vOS}\nv_add_u32 v3, 0x10000, v1")
        for c in sorted(KREG.values()):
            for j in range(4):
                r=OACC+16*KRI[c]+4*j
                off=c*SLOT+j*1024
                if off<65536: g.e(f"ds_write_b128 v1, {ar(r)} offset:{off}")
                else: g.e(f"ds_write_b128 v3, {ar(r)} offset:{off-65536}")
            if c==3: pass
    rest=[cc for cc in range(LA) if cc not in KPRE.values() and cc not in KREG.values()]
    late=rest[-opt.get("late",0):] if opt.get("late",0) else []
    for cc in rest:
        if cc in late: continue
        h,dm=kv_group(cc); g.e(h)
        for l in dm: g.e(l)
    for i in range(4):
        for t in range(4):
            bx=ACC+(i*8+2*t)*4; by=bx+4; F=QF+16*i+4*t
            g.e(f"""
            v_cvt_pk_bf16_f32 v56, v{bx}, v{bx+1}
            v_cvt_pk_bf16_f32 v57, v{bx+2}, v{bx+3}
            v_cvt_pk_bf16_f32 v58, v{by}, v{by+1}
            v_cvt_pk_bf16_f32 v59, v{by+2}, v{by+3}
            v_cndmask_b32 v{F}, v56, v58, s[{sMASK}:{sMASK+1}]
            v_cndmask_b32 v{F+1}, v57, v59, s[{sMASK}:{sMASK+1}]
            v_cndmask_b32 v{F+2}, v58, v56, s[{sMASK}:{sMASK+1}]
            v_cndmask_b32 v{F+3}, v59, v57, s[{sMASK}:{sMASK+1}]
            """)
    for cc in late:
        h,dm=kv_group(cc); g.e(h)
        for l in dm: g.e(l)
    if KREG: g.e("s_waitcnt lgkmcnt(0)")
    tick(17); tick_store(); stamp(); dstamp(3)
    g.label("L_ITEM")
    g.vm=[]; g.lg=[]
    tick(40)
    g.e(f"s_cmp_lt_u32 s{sITEM}, 3\ns_cselect_b32 s{S_KN+2}, {64*MB}, 0\ns_cselect_b32 s{sLAST}, 0, 1")
    for n in range(4):
        g.e(f"s_cmp_eq_u32 s{sITEM}, {n}\ns_cbranch_scc0 L_QC{n}")
        for r in range(16): g.e(f"v_accvgpr_write_b32 a{QCUR+r}, v{QF+16*n+r}")
        g.label(f"L_QC{n}")
    MX=4
    def pcalc(J):
        b=ACC+8*J
        L=[f"v_fma_f32 v{TA+r}, v{b+r}, s{sC}, -v4" for r in range(8)]
        L+=[f"v_exp_f32 v{TA+r}, v{TA+r}" for r in range(8)]
        L+=[f"v_cvt_pk_bf16_f32 v{ACC+4*J+r}, v{TA+2*r}, v{TA+2*r+1}" for r in range(4)]
        return L
    def reads(c):
        st=c&1; sl=c&7; hi=sl>=4; so=(sl&3)*SLOT; R=[]
        if c<8:
            for kt in range(4):
                for t in range(4):
                    R.append(lambda kt=kt,t=t: g.lgop(f"ds_read_b128 {ar(64*st+(kt*4+t)*4)}, v{vKR+(4 if hi else 0)+t} offset:{so+kt*4096}",('F',c,kt)))
        else:
            for js in range(2):
                for dt in range(8):
                    for hf in range(2):
                        r=64*st+(js*8+dt)*4+2*hf
                        R.append(lambda r=r,js=js,dt=dt,hf=hf: g.lgop(f"ds_read_b64_tr_b16 a[{r}:{r+1}], v{vVR+(8 if hi else 0)+dt} offset:{so+js*8192+hf*4096}",('F',c,js*8+dt)))
        return R
    g.e(f"s_waitcnt vmcnt({4*(LA-1)})\ns_barrier")
    for f in reads(0): f()
    for c in range(16):
        cc=c+LA
        if c<15: g.e(f"s_waitcnt vmcnt({4*(LA-2)})")
        if opt.get("thra") is not None and c<15:
            if c<opt.get("thra_skip",0):
                g.e(f"s_cmp_eq_u32 s{sITEM}, 0\ns_cbranch_scc1 L_TS{c}\ns_waitcnt vmcnt({opt['thra']})\nL_TS{c}:")
            else: g.e(f"s_waitcnt vmcnt({opt['thra']})")
        if opt.get("thr") is not None and c<15:
            g.e(f"s_bitcmp1_b32 s2, 0\ns_cbranch_scc{opt.get('thr_par',1)} L_TH{c}\ns_waitcnt vmcnt({opt['thr']})\nL_TH{c}:")
        g.e("s_barrier")
        tick(c)
        dm=[]
        if cc<16 or cc>=16+NWOP:
            h,dl=kv_group(cc); g.e(h); dm=[(lambda l=l: g.e(l)) for l in dl]
        else:
            k=cc-16
            g.e(f"s_cmp_eq_u32 s{sLAST}, 1\ns_cbranch_scc1 L_HO{k}")
            h,dl=kv_group(cc); g.e(h)
            for l in dl: g.e(l)
            g.e(f"s_branch L_HJ{k}")
            g.label(f"L_HO{k}")
            wo_group(k,False)
            g.label(f"L_HJ{k}")
        R=reads(c+1) if c<15 else []
        st=c&1; M=[]; VL=[]
        if c<8:
            for kt in range(4):
                T=4*c+kt; d=ACC+4*T
                for t in range(4):
                    txt=f"v_mfma_f32_16x16x32_bf16 {vr(d)}, {ar(64*st+(kt*4+t)*4)}, {ar(QCUR+4*t)}, {'0' if t==0 else vr(d)}"
                    M.append((lambda txt=txt,kt=kt,c=c: (g.lgwait(('F',c,kt)), g.e(txt))) if t==0 else txt)
            if c>0:
                for kt in range(4):
                    b=ACC+16*(c-1)+4*kt
                    if c==1: VL+=[f"v_max3_f32 v{MX+kt}, v{b}, v{b+1}, v{b+2}",f"v_max_f32 v{MX+kt}, v{MX+kt}, v{b+3}"]
                    else: VL+=[f"v_max3_f32 v{MX+kt}, v{MX+kt}, v{b}, v{b+1}",f"v_max3_f32 v{MX+kt}, v{MX+kt}, v{b+2}, v{b+3}"]
        else:
            cv=c-8
            for js in range(2):
                J=2*cv+js; P=ACC+4*J
                for dt in range(8):
                    d=OA+4*dt
                    txt=f"v_mfma_f32_16x16x32_bf16 {ar(d)}, {ar(64*st+(js*8+dt)*4)}, {vr(P)}, {'0' if J==0 else ar(d)}"
                    M.append(lambda txt=txt,c=c,k=js*8+dt: (g.lgwait(('F',c,k)), g.e(txt)))
                M.append(f"v_mfma_f32_16x16x32_bf16 {ar(LAcc)}, {ar(ONES)}, {vr(P)}, {'0' if J==0 else ar(LAcc)}")
            if cv<7:
                for J in (2*cv+2,2*cv+3): VL+=pcalc(J)
        if c<7: pat=['tv','tv','tt','d']*4
        elif c==7: pat=['ttv','tt','ttv','dtt']*4
        else: pat=['ttv','ttv','ttv','dvvvv']*4+['ttttvv','ttttvv']
        ti=vi=di=0
        for m,p in zip(M,pat):
            m() if callable(m) else g.e(m)
            for ch in p:
                if ch=='t' and ti<len(R): R[ti](); ti+=1
                elif ch=='v' and vi<len(VL): g.e(VL[vi]); vi+=1
                elif ch=='d' and di<len(dm): dm[di](); di+=1
        while ti<len(R): R[ti](); ti+=1
        while di<len(dm): dm[di](); di+=1
        while vi<len(VL): g.e(VL[vi]); vi+=1
        if c==7:
            g.e("s_nop 7")
            for kt in range(4):
                b=ACC+16*7+4*kt
                g.e(f"v_max3_f32 v{MX+kt}, v{MX+kt}, v{b}, v{b+1}\nv_max3_f32 v{MX+kt}, v{MX+kt}, v{b+2}, v{b+3}")
            g.e(f"""
            v_max3_f32 v4, v4, v5, v6
            v_max_f32 v4, v4, v7
            v_mov_b32 v5, v4
            s_nop 1
            v_permlane16_swap_b32 v4, v5
            v_max_f32 v4, v4, v5
            v_mov_b32 v5, v4
            s_nop 1
            v_permlane32_swap_b32 v4, v5
            v_max_f32 v4, v4, v5
            v_mul_f32 v4, s{sC}, v4
            """)
            for J in (0,1):
                for l in pcalc(J): g.e(l)
    tick(16)
    g.e(f"s_nop 7\nv_accvgpr_read_b32 v4, a{LAcc}\ns_nop 0\nv_rcp_f32 v4, v4")
    for t in range(4):
        tb=128+16*t
        for r in range(8): g.e(f"v_accvgpr_read_b32 v{tb+r}, a{OA+8*t+r}")
        for r in range(8): g.e(f"v_mul_f32 v{tb+r}, v{tb+r}, v4")
        for r in range(4): g.e(f"v_cvt_pk_bf16_f32 v{tb+8+r}, v{tb+2*r}, v{tb+2*r+1}")
        if not opt.get("no_ostore"): g.e(f"buffer_store_dwordx4 {vr(tb+8)}, v{vOS}, {sr(S_O)}, s{sOB} offen offset:{t*1024}{STO}")
    g.e(f"""
    s_add_u32 s{sCUR}, s{sCUR}, 0x400000
    s_add_u32 s{sNXT}, s{sNXT}, 0x400000
    s_add_u32 s{sOB}, s{sOB}, 0x80000
    s_cmp_eq_u32 s{sLAST}, 1
    s_cbranch_scc0 L_A_DONE
    s_waitcnt vmcnt(0)
    s_barrier
    s_cmp_lg_u32 s{sW}, 0
    s_cbranch_scc1 L_A_DONE
    v_accvgpr_read_b32 v1, a166
    v_accvgpr_read_b32 v3, a164
    s_nop 0
    v_readfirstlane_b32 s{sT0}, v1
    v_readfirstlane_b32 s{sT1}, v3
    s_nop 3
    s_cmp_eq_u32 s{sT0}, 0
    s_cselect_b32 s{sNONCE}, s{sT1}, s{sT0}
    """)
    flag_store(0)
    g.e(f"L_A_DONE:\ns_add_u32 s{sITEM}, s{sITEM}, 1")
    tick(17); tick_store(); stamp()
    g.e(f"s_cmp_lt_u32 s{sITEM}, 4\ns_cbranch_scc1 L_ITEM")
    dstamp(4)
    g.vm=[]; g.lg=[]
    tick(40)
    g.e(f"s_lshl_b32 s{sT0}, s{sKH}, 7")
    for dt in range(16): g.e(f"v_xor_b32 v{vWOR+dt}, s{sT0}, v{vVR+dt}")
    g.e("v_mov_b32 v1, 0")
    for r in range(64): g.e(f"v_accvgpr_write_b32 a{OACC+r}, v1")
    g.e(f"""
    s_cmp_lg_u32 s{sW}, 0
    s_cbranch_scc1 L_O_WAITB
    v_mov_b32 v1, {128*K1}
    v_mov_b32 v3, s{sNONCE}
    ds_write_b32 v1, v3
    s_mov_b32 s{sCNT}, 0
    s_mov_b64 exec, 0xffff
    L_O_POLL:
    global_load_dword v3, v{vPA}, s[{sWS}:{sWS+1}] sc1
    s_add_u32 s{sCNT}, s{sCNT}, 1
    s_waitcnt vmcnt(0)
    v_cmp_eq_u32 vcc, s{sNONCE}, v3
    s_cmp_gt_u32 s{sCNT}, 0x40000
    s_cbranch_scc1 L_O_POLLX
    s_nop 1
    s_cmp_lg_u32 vcc_lo, 0xffff
    s_cbranch_scc1 L_O_POLL
    L_O_POLLX:
    s_mov_b64 exec, -1
    s_waitcnt lgkmcnt(0)
    L_O_WAITB:
    s_barrier
    v_mov_b32 v1, {128*K1}
    ds_read_b32 v3, v1
    s_waitcnt lgkmcnt(0)
    v_readfirstlane_b32 s{sNONCE}, v3
    """)
    tick(41); dstamp(5)
    if opt.get("stamps"):
        g.e(f"s_mov_b32 s101, s{sSEGN}\ns_mov_b32 s{sSEGN}, 9"); stamp(); g.e(f"s_mov_b32 s{sSEGN}, s101")
    OL=3; WL=NWOP; OF=128; NCH=32
    def o_1(st,k,srdn,tag=None):
        rt,js=k>>1,k&1
        r=OF+st*16+(rt*2+js)*4
        g.e(f"buffer_load_dwordx4 {vr(r)}, v{vOS if rt==0 else vOS1}, {sr(srdn)}, s{sKO} offen offset:{js*1024}{NTOO}")
    for c in range(OL):
        g.e(f"s_add_u32 s{sT0}, s{sPHO}, {c}\ns_and_b32 s{sT0}, s{sT0}, 7\ns_lshl_b32 s{sT0}, s{sT0}, 11\ns_add_u32 s{sKO}, s{sT0}, s{sOOB}")
        for k in range(4): o_1(c,k,S_O)
    RD=[(js,nt,hf) for js in range(2) for nt in range(8) for hf in range(2)]
    def a_read2(u,js,nt,hf):
        r=64*(u&1)+(js*8+nt)*4+2*hf
        sl=u&7
        g.lgop(f"ds_read_b64_tr_b16 a[{r}:{r+1}], v{vWOR+(8 if sl>=4 else 0)+nt} offset:{(sl&3)*SLOT+js*8192+hf*4096}",('A',u&1,js,nt))
    for (js,nt,hf) in RD: a_read2(0,js,nt,hf)
    g.e(f"""s_add_u32 s{sT0}, s{sPHO}, {WL}
    s_and_b32 s{sT0}, s{sT0}, 7
    s_lshl_b32 s{sWLO}, s{sT0}, 17
    s_add_u32 s{sT0}, s{sPHO}, {OL}
    s_and_b32 s{sT0}, s{sT0}, 7
    s_lshl_b32 s{sOLO}, s{sT0}, 11
    s_mov_b32 s{sJ}, 0""")
    def body(u):
        g.e(f"s_waitcnt vmcnt(8)")
        g.e("s_barrier")
        if opt.get("steps"): g.e(f"s_memtime s[96:97]\ns_waitcnt lgkmcnt(0)\ns_sub_u32 s99, s96, s98\ns_mov_b32 s98, s96\nv_readlane_b32 s97, v62, {u}\ns_nop 3\ns_add_u32 s97, s97, s99\ns_nop 0\nv_writelane_b32 v62, s97, {u}"); g.lg=[]
        G_=Gaps(32)
        vp=opt.get("o_vpos",[3,7,11,15,19,23,27,31])
        if u+WL==8:
            G_.put_post(0,S(f"s_add_u32 s{sWOB}, s{sWOB}, {8<<17}\ns_cmp_lt_u32 s{sJ}, {NCH-8}\ns_cselect_b32 s{S_WON+2}, {8*MB}, 0"))
        G_.put_post(1,S(f"s_add_u32 s{sKWO}, s{sWLO}, s{sWOB}"))
        G_.put_post(2,S(f"s_add_u32 m0, s{sWOFF}, {((u+WL)&7)*SLOT}"))
        if u+OL==8:
            G_.put_post(4,S(f"s_add_u32 s{sOOB}, s{sOOB}, {8<<11}\ns_cmp_lt_u32 s{sJ}, {NCH-8}\ns_cselect_b32 s{S_ON+2}, {32*MB}, 0"))
        G_.put_post(5,S(f"s_add_u32 s{sKO}, s{sOLO}, s{sOOB}"))
        G_.put_post(8,S(f"s_add_u32 s{sWLO}, s{sWLO}, {1<<17}"))
        G_.put_post(9,S(f"s_and_b32 s{sWLO}, s{sWLO}, {7<<17}"))
        G_.put_post(12,S(f"s_add_u32 s{sOLO}, s{sOLO}, {1<<11}"))
        G_.put_post(13,S(f"s_and_b32 s{sOLO}, s{sOLO}, {7<<11}"))
        for j in range(4):
            G_.mem[vp[2*j]]=(lambda j=j: g.e(f"buffer_load_dwordx4 v{vWOD+j}, {sr(S_WON)}, s{sKWO} offen offset:{1024*j}{NTO} lds"))
            G_.mem[vp[2*j+1]]=(lambda j=j,u=u: o_1((u+OL)&3,j,S_ON))
        rend=opt.get("o_rend",30)
        for n_,(js,nt,hf) in enumerate(RD):
            G_.put_mem(n_*rend/32.0,lambda js=js,nt=nt,hf=hf,u=u: a_read2(u+1,js,nt,hf))
        M=[]
        for js in range(2):
            for nt in range(8):
                for rt in range(2):
                    d=OACC+(rt*8+nt)*4
                    txt=f"v_mfma_f32_16x16x32_bf16 {ar(d)}, {ar(64*(u&1)+(js*8+nt)*4)}, {vr(OF+(u&3)*16+(rt*2+js)*4)}, {ar(d)}"
                    if rt==0: M.append(lambda txt=txt,u=u,js=js,nt=nt: (g.lgwait(('A',u&1,js,nt)), g.e(txt)))
                    else: M.append(txt)
        G_.emit(g,M)
    save=list(g.L)
    for u in range(8): body(u)
    lg_end=list(g.lg)
    g.L=save; g.lg=list(lg_end)
    g.e("s_waitcnt lgkmcnt(0)")
    if opt.get("steps"): g.e("v_mov_b32 v62, 0\ns_memtime s[98:99]\ns_waitcnt lgkmcnt(0)")
    g.label("L_O_LOOP")
    for u in range(8): body(u)
    assert g.lg==lg_end
    g.e(f"s_add_u32 s{sJ}, s{sJ}, 8\ns_cmp_lt_u32 s{sJ}, {NCH}\ns_cbranch_scc1 L_O_LOOP\ns_waitcnt lgkmcnt(0)")
    tick_store(); stamp(); dstamp(6)
    def xst(i):
        if opt.get("xstamps"):
            g.e(f"s_mov_b32 s101, s{sSEGN}\ns_mov_b32 s{sSEGN}, {i}"); stamp(); g.e(f"s_mov_b32 s{sSEGN}, s101")
    g.e("s_nop 7")
    for rt in range(2):
        if rt==1: g.e(f"s_add_u32 s{sEXW}, s{sEXW}, 4096")
        for m in range(4):
            d=OACC+(rt*8+4+m)*4
            g.e(f"buffer_store_dwordx4 {ar(d)}, v{vOS}, {sr(S_O)}, s{sEXW} offen offset:{m*1024} sc1")
    for rt in range(2):
        for m in range(4):
            for q in range(4): g.e(f"v_accvgpr_read_b32 v{128+(rt*4+m)*4+q}, a{OACC+(rt*8+m)*4+q}")
    g.e(f"""
    v_lshrrev_b32 v3, 4, v0
    v_and_b32 v4, 15, v0
    v_lshlrev_b32 v5, 3, v3
    v_lshl_add_u32 v52, v4, 12, v5
    s_lshl_b32 s{sCNT}, s{sW}, 2
    s_add_u32 s{sCNT}, s{sCNT}, 16
    s_waitcnt vmcnt(0)
    """)
    xst(11)
    flag_store(f"s{sCNT}")
    g.e(f"""
    s_xor_b32 s{sT0}, s2, 128
    s_lshl_b32 s{sT0}, s{sT0}, 7
    s_add_u32 s{sT0}, s{sT0}, {FLAG_OFF}
    s_add_u32 s{sT0}, s{sT0}, s{sCNT}
    v_mov_b32 v1, s{sT0}
    s_mov_b32 s{sCNT}, 0
    s_mov_b64 exec, 1
    L_X_POLL:
    global_load_dword v3, v1, s[{sWS}:{sWS+1}] sc1
    s_add_u32 s{sCNT}, s{sCNT}, 1
    s_waitcnt vmcnt(0)
    v_readfirstlane_b32 s{sT0}, v3
    s_cmp_gt_u32 s{sCNT}, 0x40000
    s_cbranch_scc1 L_X_POLLX
    s_cmp_lg_u32 s{sT0}, s{sNONCE}
    s_cbranch_scc1 L_X_POLL
    L_X_POLLX:
    s_mov_b64 exec, -1
    """)
    xst(12)
    for rt in range(2):
        if rt==1: g.e(f"s_add_u32 s{sEXR}, s{sEXR}, 4096")
        for m in range(4):
            r=192+(rt*4+m)*4
            g.e(f"buffer_load_dwordx4 {vr(r)}, v{vOS}, {sr(S_O)}, s{sEXR} offen offset:{m*1024} sc1")
    for rt in range(2):
        if rt==1: g.e(f"s_add_u32 s{sOUTB}, s{sOUTB}, 0x10000")
        for m in range(4):
            d=128+(rt*4+m)*4; r=192+(rt*4+m)*4
            if rt==0 and m==0:
                g.e("s_waitcnt vmcnt(0)"); xst(13)
            for q in range(4): g.e(f"v_add_f32 v{d+q}, v{d+q}, v{r+q}")
            g.e(f"""v_cvt_pk_bf16_f32 v{d}, v{d}, v{d+1}
            v_cvt_pk_bf16_f32 v{d+1}, v{d+2}, v{d+3}
            buffer_store_dwordx2 v[{d}:{d+1}], v52, {sr(S_OUT)}, s{sOUTB} offen offset:{m*32}{opt.get("st_out","")}""")
    stamp()
    if opt.get("dstamps"):
        g.e("s_waitcnt vmcnt(0)"); dstamp(7)
    if opt.get("stamps"):
        g.e("s_waitcnt vmcnt(0)")
        g.e(f"s_mov_b32 s{sSEGN}, 10")
        stamp()
    g.label("L_END")
    g.e("s_endpgm")
    return g.text()

def build(opt):
    s="; @launch grid=(256,1,1) block=(256,1,1) lds=163840\n"
    s+='.amdgcn_target "amdgcn-amd-amdhsa--gfx950"\n'
    s+=f".text\n.globl {KN}\n.p2align 8\n.type {KN},@function\n{KN}:\n"
    s+=gen(opt)
    s+=f""".section .rodata,"a"
.p2align 6
.amdhsa_kernel {KN}
  .amdhsa_next_free_vgpr 512
  .amdhsa_next_free_sgpr 102
  .amdhsa_accum_offset 256
  .amdhsa_group_segment_fixed_size 0
  .amdhsa_kernarg_size 104
  .amdhsa_user_sgpr_count 2
  .amdhsa_user_sgpr_kernarg_segment_ptr 1
  .amdhsa_system_sgpr_workgroup_id_x 1
.end_amdhsa_kernel
"""
    return s
if __name__=="__main__":
    opt=json.loads(sys.argv[2]) if len(sys.argv)>2 else {}
    open(sys.argv[1],"w").write(build(opt))
```

```python
import sys, struct, math, json
from gl import *
KN="concat_heads__mha_block_cached__mha_block_cached__near_ridge_kernel"
C_SCALE=struct.unpack("<I",struct.pack("<f",math.log2(math.e)/math.sqrt(128.0)))[0]
K1=1024; MB=K1*K1
EXCH_OFF=16*MB; FLAG_OFF=44*MB; STAMP_OFF=48*MB; WS_SRD=48*MB
SLOT=16384; LA=7; NPRE=3
WQBASE=48*K1; XBASE=96*K1
WO_AREA=[128*K1,144*K1,96*K1,112*K1]; WO_RB=96*K1

def gen(opt):
    opt=dict(opt); opt.setdefault('thra',4); opt.setdefault('thra_skip',3); opt.setdefault('late',1)
    g=G()
    S=lambda txt: (lambda: g.e(txt))
    NT=opt.get('nt_kv',' nt')
    NTX=opt.get("nt_x",""); NTW=opt.get("nt_wq"," nt"); NTO=opt.get("nt_wo",""); NTOO=opt.get("nt_o"," sc1"); STO=opt.get("st_o"," sc1")
    FULL=opt.get("fullrot",0); KM=15 if FULL else 7
    O4=opt.get("o4",0)
    NWOP=5 if O4 else opt.get("nwop",7)
    KREG={int(k):v for k,v in opt.get("kreg",{}).items()}
    KRI={c:n for n,c in enumerate(sorted(KREG.values()))}
    KPRE={int(k):v for k,v in opt.get("kpre",{10:0,12:1,14:2}).items()}
    sPA=7;sKRG=7;sSIG=3;sKRO=100;sQ1=5;sQ2=6;sQ3=4;sJ=4;sLAST=5;sCNT=6
    S_X=8;S_WQ=12;S_K=16;S_V=20;S_KN=24;S_O=28;S_WO=32;S_OUT=36;S_WON=40
    sW=44;sBR=45;sH=46;sBG=47;sRB=48;sCB=49;sKH=50;sPHI=51;sPHO=52
    sWQB=53;sKX=54;sKW=55;sXT=56;sWT=57;sT0=58;sT1=59
    sCUR=60;sNXT=61;sITEM=62;sOB=63;sC=64;sWOFF=65;sXL=66;sWL=67
    sMASK=68
    sXB=70
    sNONCE=74;sWOB=75;sOOB=76;sKWO=77;sKO=78;sWLO=79;sOLO=80;sOUTB=81;sEXW=82;sEXR=83
    S_ON=84
    sSEGN=89; sWS=90; sDBG=92; sSTB=94
    vKD=8; vVD=12; vKR=14; vVR=22; vOS=38; vOS1=39; vWOD=40; vPA=44; vTCH=45; sTCH=88; vOS2=45; vOS3=63
    vXD=46; vXR=48; vWD=50; vWR=54
    TA=52; vWOR=46
    QF=64; ACC=128
    OA=128; LAcc=160; ONES=168; QCUR=172; OACC=192
    def stamp():
        if not opt.get("stamps"): return
        g.e(f"""
        s_memrealtime s[96:97]
        s_memtime s[98:99]
        s_waitcnt lgkmcnt(0)
        v_mov_b32 v2, s96
        v_mov_b32 v3, s98
        s_lshl_b32 s96, s2, 7
        s_lshl_b32 s97, s{sSEGN}, 3
        s_add_u32 s96, s96, s97
        v_mov_b32 v1, s96
        global_store_dwordx2 v1, v[2:3], s[{sSTB}:{sSTB+1}]
        s_add_u32 s{sSEGN}, s{sSEGN}, 1
        """)
        g.lg=[]
        g.vm.append('stamp') if False else None
    def dstamp(word,neg=False):
        if not opt.get("dstamps"): return
        n=f"L_DS{word}"
        g.e(f"""
        s_cmp_lg_u32 s{sW}, 0
        s_cbranch_scc1 {n}
        s_memrealtime s[96:97]
        s_waitcnt lgkmcnt(0)
        {"s_not_b32 s96, s96" if neg else ""}
        v_mov_b32 v2, s96
        v_mov_b32 v1, {word*4}
        s_mov_b64 exec, 1
        global_atomic_umax v1, v2, s[{sDBG}:{sDBG+1}]
        s_mov_b64 exec, -1
        {n}:
        """)
        g.lg=[]
    def tick(k):
        if opt.get("steps"):
            g.e(f"s_memtime s[96:97]\ns_waitcnt lgkmcnt(0)\nv_writelane_b32 v62, s96, {k}"); g.lg=[]
    def tick_store():
        if opt.get("steps"):
            g.e(f"s_lshl_b32 s96, s2, 12\ns_lshl_b32 s97, s{sSEGN}, 8\ns_add_u32 s96, s96, s97\ns_add_u32 s96, s96, {MB}\nv_lshlrev_b32 v1, 2, v0\nv_add_u32 v1, s96, v1\nglobal_store_dword v1, v62, s[{sSTB}:{sSTB+1}]")
    if opt.get("stamps"): g.e("s_memrealtime s[88:89]\ns_waitcnt lgkmcnt(0)\ns_mov_b32 s101, s88")
    g.e(f"""
    s_cmp_ge_u32 s2, 256
    s_cbranch_scc1 L_END
    s_load_dwordx4 s[96:99], s[0:1], 80
    s_load_dwordx2 s[{sWS}:{sWS+1}], s[0:1], 96
    s_and_b32 s3, s2, 7                          ; xcd
    s_lshr_b32 s4, s2, 3                         ; idx
    s_lshr_b32 s{sBR}, s3, 2
    s_and_b32 s5, s3, 3
    s_lshl_b32 s5, s5, 3
    s_and_b32 s6, s4, 7
    s_add_u32 s{sH}, s5, s6
    s_lshr_b32 s{sBG}, s4, 3
    s_lshl_b32 s7, s{sBG}, 1
    s_add_u32 s7, s7, s6
    s_and_b32 s{sPHI}, s7, 7
    {"s_lshl_b32 s"+str(sPHI)+", s"+str(sPHI)+", 1" if FULL else ""}
    ; O mapping
    s_lshr_b32 s5, s3, 1
    s_and_b32 s5, s5, 1
    s_lshl_b32 s5, s5, 2
    s_and_b32 s6, s4, 3
    s_add_u32 s{sRB}, s5, s6
    s_and_b32 s5, s3, 1
    s_lshl_b32 s5, s5, 2
    s_lshr_b32 s7, s4, 2
    s_and_b32 s7, s7, 3
    s_add_u32 s{sCB}, s5, s7
    s_lshr_b32 s{sKH}, s4, 4
    s_add_u32 s{sPHO}, s6, s7
    s_and_b32 s{sPHO}, s{sPHO}, 3
    s_lshl_b32 s{sPHO}, s{sPHO}, 1
    s_mul_i32 s5, s{sBR}, 40
    s_add_u32 s4, s0, s5
    s_addc_u32 s5, s1, 0
    s_load_dwordx4 s[8:11], s[4:5], 0            ; x, k
    s_load_dwordx4 s[12:15], s[4:5], 16          ; v, wq
    s_load_dwordx2 s[16:17], s[4:5], 32          ; wo
    v_lshrrev_b32 v1, 6, v0
    v_and_b32 v0, 63, v0
    s_nop 0
    v_readfirstlane_b32 s{sW}, v1
    """)
    g.e(f"""
    v_lshrrev_b32 v1, 3, v0              ; r8
    v_and_b32 v2, 7, v0                  ; p8
    v_lshrrev_b32 v3, 4, v0              ; rr / g
    v_and_b32 v4, 15, v0                 ; p16 / q / key
    v_xor_b32 v5, v2, v3
    v_lshlrev_b32 v5, 4, v5
    v_lshl_add_u32 v{vXD}, v1, 11, v5
    v_xor_b32 v5, 64, v5
    v_lshl_add_u32 v5, v1, 11, v5
    v_add_u32 v{vXD+1}, {8*2048-1024}, v5
    v_lshrrev_b32 v5, 1, v4
    v_xor_b32 v5, v5, v3
    v_lshlrev_b32 v5, 4, v5
    v_lshl_add_u32 v5, v4, 7, v5
    s_lshl_b32 s{sXL}, s{sW}, 14
    s_add_u32 s{sXL}, s{sXL}, {XBASE}
    v_add_u32 v{vXR}, s{sXL}, v5
    v_xor_b32 v{vXR+1}, 64, v{vXR}
    v_and_b32 v5, 1, v3
    v_and_b32 v6, 2, v3
    v_lshl_or_b32 v5, v6, 1, v5          ; f0
    v_xor_b32 v5, v5, v4                 ; p ^ f0
    """)
    for j in range(4):
        g.e(f"""
        v_xor_b32 v6, {8*(j>>1)}, v5
        v_lshlrev_b32 v6, 4, v6
        v_lshl_add_u32 v6, v3, 13, v6
        v_add_u32 v{vWD+j}, {4*j*8192-1024*j}, v6
        """)
    g.e(f"""
    v_lshrrev_b32 v5, 2, v4              ; rp
    v_and_b32 v6, 3, v0                  ; c
    v_and_b32 v7, 1, v5
    v_and_b32 v1, 2, v5
    v_lshl_or_b32 v7, v1, 1, v7
    v_and_b32 v1, 1, v3
    v_lshl_or_b32 v7, v1, 3, v7          ; f
    v_xor_b32 v7, v7, v6                 ; c ^ f
    v_lshlrev_b32 v7, 4, v7
    v_and_b32 v1, 1, v6
    v_lshl_or_b32 v7, v1, 3, v7          ; + 8*(c&1)
    v_lshl_add_u32 v1, v3, 3, v5         ; 8kg+rp
    v_lshl_add_u32 v7, v1, 8, v7
    v_add_u32 v7, {WQBASE}, v7
    """)
    for dt in range(8):
        t,u=dt>>1,dt&1
        g.e(f"v_xor_b32 v{vWR+dt}, {(t<<6)^(u<<3)}, v7")
    for j in range(4):
        g.e(f"""
        v_add_u32 v5, {4*(j&1)}, v3
        v_lshlrev_b32 v5, 1, v5
        v_xor_b32 v5, v5, v4
        v_lshlrev_b32 v5, 4, v5
        v_lshl_add_u32 v5, v3, 11, v5
        v_add_u32 v{vWOD+j}, {4*j*2048-1024*j}, v5
        """)
    if O4:
        g.e(f"""
        v_and_b32 v5, 7, v0
        s_lshl_b32 s{sT0}, s{sBG}, 3
        v_add_u32 v5, s{sT0}, v5
        s_and_b32 s{sT0}, s2, 7
        v_lshlrev_b32 v5, 3, v5
        v_add_u32 v5, s{sT0}, v5
        v_lshlrev_b32 v5, 7, v5
        v_add_u32 v{vPA}, {FLAG_OFF}, v5
        """)
    else:
        g.e(f"""
        s_lshl_b32 s{sT0}, s{sKH}, 4
        v_add_u32 v5, s{sT0}, v4             ; h = 16kh + t
        v_lshrrev_b32 v6, 3, v5              ; h>>3
        s_lshl_b32 s{sT0}, s{sBR}, 2
        v_add_u32 v6, s{sT0}, v6             ; xcd'
        v_and_b32 v5, 7, v5
        s_lshr_b32 s{sT0}, s{sRB}, 1
        s_lshl_b32 s{sT0}, s{sT0}, 3
        v_add_u32 v5, s{sT0}, v5             ; idx'
        v_lshl_add_u32 v5, v5, 3, v6         ; wg'
        v_lshlrev_b32 v5, 7, v5
        s_mov_b32 s{sT0}, {FLAG_OFF}
        v_add_u32 v{vPA}, s{sT0}, v5
        """)
    for j in range(4):
        g.e(f"""
        v_add_u32 v5, {4*j}, v3
        v_xor_b32 v5, v5, v4
        v_lshlrev_b32 v5, 4, v5
        v_lshl_add_u32 v{vKD+j}, v3, 8, v5
        """)
    g.e(f"""
    v_xor_b32 v5, v3, v4
    v_lshlrev_b32 v5, 4, v5
    v_lshl_add_u32 v5, v4, 8, v5
    """)
    for t in range(4): g.e(f"v_xor_b32 v{vKR+t}, {t<<6}, v5\nv_add_u32 v{vKR+4+t}, 0x10000, v{vKR+t}")
    for jp in range(2):
        g.e(f"""
        v_add_u32 v5, {4*jp}, v3
        v_lshlrev_b32 v5, 1, v5
        v_xor_b32 v5, v5, v4
        v_lshlrev_b32 v5, 4, v5
        v_lshl_add_u32 v{vVD+jp}, v3, 8, v5
        """)
    g.e(f"""
    v_lshrrev_b32 v5, 2, v4              ; rp
    v_and_b32 v6, 3, v0                  ; c
    v_and_b32 v7, 1, v3
    v_lshl_add_u32 v7, v7, 2, v5         ; 4(g&1)+rp
    v_lshlrev_b32 v7, 1, v7
    v_lshrrev_b32 v1, 1, v6
    v_xor_b32 v7, v7, v1
    v_lshlrev_b32 v7, 4, v7
    v_and_b32 v1, 1, v6
    v_lshl_or_b32 v7, v1, 3, v7
    v_lshl_add_u32 v1, v3, 2, v5         ; 4g+rp
    v_lshl_add_u32 v7, v1, 8, v7
    """)
    for dt in range(8): g.e(f"v_xor_b32 v{vVR+dt}, {dt<<5}, v7\nv_add_u32 v{vVR+8+dt}, 0x10000, v{vVR+dt}")
    g.e(f"v_lshlrev_b32 v{vTCH}, 7, v0")
    g.e(f"s_and_b32 s{sT0}, s2, 3\ns_lshl_b32 s{sT0}, s{sT0}, 5\ns_lshr_b32 s{sT1}, s2, 3\ns_add_u32 s{sT0}, s{sT0}, s{sT1}\ns_lshl_b32 s{sTCH}, s{sT0}, 16\ns_lshl_b32 s{sT0}, s{sW}, 14\ns_add_u32 s{sTCH}, s{sTCH}, s{sT0}")
    g.e(f"v_lshlrev_b32 v{vOS}, 4, v0\nv_add_u32 v{vOS1}, 0x20000, v{vOS}\nv_mov_b32 v1, 0x3f803f80")
    for r in range(4): g.e(f"v_accvgpr_write_b32 a{ONES+r}, v1")
    g.e("s_waitcnt lgkmcnt(0)")
    def mk(s,lo,hi,size): g.e(f"s_mov_b32 s{s}, s{lo}\ns_and_b32 s{s+1}, s{hi}, 0xffff\ns_mov_b32 s{s+2}, {size}\ns_mov_b32 s{s+3}, 0x20000")
    g.e(f"s_mov_b32 s{sDBG}, s98\ns_mov_b32 s{sDBG+1}, s99")
    mk(S_OUT,96,97,4*MB); mk(S_WO,16,17,8*MB); mk(S_WON,16,17,8*MB); mk(S_V,12,13,64*MB)
    mk(S_K,10,11,64*MB); mk(S_KN,10,11,64*MB)
    g.e(f"s_mov_b32 s4, s14\ns_mov_b32 s5, s15\ns_and_b32 s{S_X+1}, s9, 0xffff\ns_mov_b32 s{S_X+2}, {2*MB}\ns_mov_b32 s{S_X+3}, 0x20000")
    mk(S_WQ,4,5,8*MB); mk(S_O,sWS,sWS+1,WS_SRD); mk(S_ON,sWS,sWS+1,WS_SRD)
    g.e(f"""
    s_add_u32 s{sSTB}, s{sWS}, {STAMP_OFF}
    s_addc_u32 s{sSTB+1}, s{sWS+1}, 0
    s_mov_b32 s{sSEGN}, 0
    s_lshl_b32 s{sWOFF}, s{sW}, 12
    s_add_u32 s{sWL}, s{sWOFF}, {WQBASE}
    s_lshl_b32 s{sT0}, s{sBG}, 19
    s_lshl_b32 s{sT1}, s{sW}, 15
    s_add_u32 s{sXB}, s{sT0}, s{sT1}
    s_add_u32 s{sXB+1}, s{sXB}, 0x20000
    s_add_u32 s{sXB+2}, s{sXB}, 0x40000
    s_add_u32 s{sXB+3}, s{sXB}, 0x60000
    s_lshl_b32 s{sT0}, s{sW}, 17
    s_lshl_b32 s{sT1}, s{sH}, 8
    s_add_u32 s{sWQB}, s{sT0}, s{sT1}
    """)
    if opt.get("stamps"):
        g.e(f"v_mov_b32 v2, s101\nv_mov_b32 v3, 0\ns_lshl_b32 s96, s2, 7\ns_add_u32 s96, s96, 120\nv_mov_b32 v1, s96\nglobal_store_dwordx2 v1, v[2:3], s[{sSTB}:{sSTB+1}]")
    stamp()
    dstamp(2,True)
    O4B=f"""
        s_and_b32 s{sKH}, s2, 3                      ; kq
        s_lshr_b32 s{sT0}, s2, 3
        s_and_b32 s{sCB}, s{sT0}, 7                  ; cb
        s_lshl_b32 s{sT0}, s{sBG}, 1
        s_add_u32 s{sPHO}, s{sT0}, s{sCB}
        s_and_b32 s{sPHO}, s{sPHO}, 7
        s_lshl_b32 s{sWOB}, s{sKH}, 21
        s_lshl_b32 s{sT0}, s{sW}, 15
        s_add_u32 s{sWOB}, s{sWOB}, s{sT0}
        s_lshl_b32 s{sT0}, s{sCB}, 8
        s_add_u32 s{sWOB}, s{sWOB}, s{sT0}
        s_lshl_b32 s{sT0}, s{sBG}, 2
        s_add_u32 s{sT0}, s{sT0}, s{sW}
        s_lshl_b32 s{sOOB}, s{sT0}, 19
        s_lshl_b32 s{sOUTB}, s{sT0}, 18
        s_lshl_b32 s{sT0}, s{sBR}, 23
        s_add_u32 s{sOOB}, s{sOOB}, s{sT0}
        s_lshl_b32 s{sT0}, s{sKH}, 15
        s_add_u32 s{sOOB}, s{sOOB}, s{sT0}
        s_lshl_b32 s{sT0}, s{sBR}, 11
        s_add_u32 s{sOUTB}, s{sOUTB}, s{sT0}
        s_lshl_b32 s{sT0}, s{sCB}, 8
        s_add_u32 s{sOUTB}, s{sOUTB}, s{sT0}
        s_lshl_b32 s{sT0}, s{sKH}, 6
        s_add_u32 s{sOUTB}, s{sOUTB}, s{sT0}
        s_mul_i32 s{sEXW}, s2, 98304
        s_mul_i32 s{sT0}, s{sW}, 24576
        s_add_u32 s{sEXW}, s{sEXW}, s{sT0}
        s_add_u32 s{sEXW}, s{sEXW}, {EXCH_OFF}
    """
    def late_setup():
        g.e(f"""
        s_mov_b32 s{sC}, {C_SCALE}
        s_mov_b32 s{sMASK}, 0xffff0000
        s_mov_b32 s{sMASK+1}, 0xffff0000
        s_lshl_b32 s{sT0}, s{sBG}, 24
        s_lshl_b32 s{sT1}, s{sH}, 17
        s_add_u32 s{sCUR}, s{sT0}, s{sT1}
        s_add_u32 s{sCUR}, s{sCUR}, s{sWOFF}
        s_add_u32 s{sNXT}, s{sCUR}, 0x400000
        s_lshl_b32 s{sT0}, s{sBR}, 23
        s_lshl_b32 s{sT1}, s{sBG}, 21
        s_add_u32 s{sOB}, s{sT0}, s{sT1}
        s_lshl_b32 s{sT0}, s{sW}, 17
        s_add_u32 s{sOB}, s{sOB}, s{sT0}
        s_lshl_b32 s{sT0}, s{sH}, 12
        s_add_u32 s{sOB}, s{sOB}, s{sT0}
        s_lshl_b32 s{sT0}, s{sKH}, 22
        s_lshl_b32 s{sT1}, s{sW}, 15
        s_add_u32 s{sWOB}, s{sT0}, s{sT1}
        s_lshl_b32 s{sT0}, s{sCB}, 8
        s_add_u32 s{sWOB}, s{sWOB}, s{sT0}
        s_lshl_b32 s{sT0}, s{sRB}, 3
        s_lshl_b32 s{sT1}, s{sW}, 1
        s_add_u32 s{sT0}, s{sT0}, s{sT1}            ; 8rb+2w
        s_lshl_b32 s{sOUTB}, s{sT0}, 16
        s_lshl_b32 s{sOOB}, s{sT0}, 17
        s_lshl_b32 s{sT1}, s{sBR}, 23
        s_add_u32 s{sOOB}, s{sOOB}, s{sT1}
        s_lshl_b32 s{sT1}, s{sKH}, 16
        s_add_u32 s{sOOB}, s{sOOB}, s{sT1}
        s_lshl_b32 s{sT1}, s{sBR}, 11
        s_add_u32 s{sOUTB}, s{sOUTB}, s{sT1}
        s_lshl_b32 s{sT1}, s{sCB}, 8
        s_add_u32 s{sOUTB}, s{sOUTB}, s{sT1}
        s_lshl_b32 s{sT1}, s{sKH}, 7
        s_add_u32 s{sOUTB}, s{sOUTB}, s{sT1}
        s_lshl_b32 s{sT1}, s{sW}, 13
        s_lshl_b32 s{sEXW}, s2, 15
        s_add_u32 s{sEXW}, s{sEXW}, s{sT1}
        s_add_u32 s{sEXW}, s{sEXW}, {EXCH_OFF}
        s_xor_b32 s{sEXR}, s2, 128
        s_lshl_b32 s{sEXR}, s{sEXR}, 15
        s_add_u32 s{sEXR}, s{sEXR}, s{sT1}
        s_add_u32 s{sEXR}, s{sEXR}, {EXCH_OFF}
        s_lshr_b32 s{sT0}, s2, {opt.get("krot_sh",3)}
        s_and_b32 s{sT0}, s{sT0}, 7
        s_lshl_b32 s{sKRO}, s{sT0}, 14
        {O4B if O4 else ""}
        s_mov_b32 s{sITEM}, 0
        s_mov_b32 s{sNONCE}, 0
        s_mov_b32 s{sPA}, 0
        s_mov_b32 s{sSIG}, 0
        s_cmp_lg_u32 s{sW}, 0
        s_cbranch_scc1 L_NONCE_DONE
        s_memrealtime s[96:97]
        s_waitcnt lgkmcnt(0)
        s_or_b32 s96, s96, 1
        v_mov_b32 v4, s96
        v_mov_b32 v5, 0
        v_accvgpr_write_b32 a164, v4
        v_accvgpr_write_b32 a165, v5
        s_mov_b64 exec, 1
        global_atomic_cmpswap a166, v5, a[164:165], s[{sDBG}:{sDBG+1}] sc0
        s_mov_b64 exec, -1
        L_NONCE_DONE:
        """)
    def flag_store(off):
        g.e(f"""
        s_lshl_b32 s{sT0}, s2, 7
        s_add_u32 s{sT0}, s{sT0}, {FLAG_OFF}
        s_add_u32 s{sT0}, s{sT0}, {off}
        v_mov_b32 v1, s{sT0}
        v_mov_b32 v3, s{sNONCE}
        s_mov_b64 exec, 1
        global_store_dword v1, v3, s[{sWS}:{sWS+1}] sc1
        s_mov_b64 exec, -1
        """)
    nsig=[0]
    def pending_signal():
        nsig[0]+=1; n=nsig[0]
        g.e(f"""
        s_cmp_eq_u32 s{sSIG}, 0
        s_cbranch_scc1 L_SG{n}
        s_cmp_lg_u32 s{sW}, 0
        s_cbranch_scc1 L_SGX{n}
        s_sub_u32 s{sCNT}, s{sSIG}, 1
        s_lshl_b32 s{sCNT}, s{sCNT}, 2
        """)
        flag_store(f"s{sCNT}")
        g.e(f"L_SGX{n}:\ns_mov_b32 s{sSIG}, 0\nL_SG{n}:")
    def kv_soff(dst,base,ch):
        if opt.get("krot"):
            return f"s_add_u32 s{dst}, s{sKRO}, {ch*16384}\ns_and_b32 s{dst}, s{dst}, 0x1ffff\ns_add_u32 s{dst}, s{dst}, s{base}"
        return f"s_add_u32 s{dst}, s{base}, {ch*16384}"
    def kv_group(cc):
        if cc<8: srdn,base,vo,ch=S_K,sCUR,[vKD+j for j in range(4)],cc
        elif cc<16: srdn,base,vo,ch=S_V,sCUR,[vVD+(j&1) for j in range(4)],cc-8
        else: srdn,base,vo,ch=S_KN,sNXT,[vKD+j for j in range(4)],cc-16
        return (f"s_add_u32 m0, s{sWOFF}, {(cc&7)*SLOT}\n"+kv_soff(sT1,base,ch),
                [f"buffer_load_dwordx4 v{vo[j]}, {sr(srdn)}, s{sT1} offen offset:{1024*j}{NT} lds" for j in range(4)])
    def wo_group(c,track,srdn=S_WO):
        g.e(f"s_add_u32 s{sT1}, s{sPHO}, {c}\ns_and_b32 s{sT1}, s{sT1}, 7\ns_lshl_b32 s{sT1}, s{sT1}, 17\ns_add_u32 m0, s{sWOFF}, {(c&7)*SLOT}\ns_add_u32 s{sT1}, s{sT1}, s{sWOB}")
        for j in range(4):
            t=f"buffer_load_dwordx4 v{vWOD+j}, {sr(srdn)}, s{sT1} offen offset:{1024*j}{NTO} lds"
            g.vmop(t,('wo',c)) if track else g.e(t)
    def kidx(s,dst,shift):
        g.e(f"s_add_u32 s{sT0}, s{sPHI}, {s}\ns_and_b32 s{sT0}, s{sT0}, {KM}\ns_or_b32 s{sT0}, s{sT0}, {0 if FULL else s&8}\ns_lshl_b32 s{dst}, s{sT0}, {shift}")
    def x_dma(s,i):
        slot=(s&1)*4+i
        g.e(f"s_add_u32 m0, s{sXL}, {slot*2048}\ns_add_u32 s{sT1}, s{sXB+i}, s{sKX}")
        for j in range(2): g.vmop(f"buffer_load_dwordx4 v{vXD+j}, {sr(S_X)}, s{sT1} offen offset:{1024*j}{NTX} lds",('x',s,i))
    def wq_dma(s):
        g.e(f"s_add_u32 m0, s{sWL}, {(s%3)*16384}\ns_add_u32 s{sT1}, s{sWQB}, s{sKW}")
        for j in range(4): g.vmop(f"buffer_load_dwordx4 v{vWD+j}, {sr(S_WQ)}, s{sT1} offen offset:{1024*j}{NTW} lds",('wq',s))
    def a_read(s,ks,dt,hf):
        r=64*(s&1)+(ks*8+dt)*4+2*hf
        g.lgop(f"ds_read_b64_tr_b16 a[{r}:{r+1}], v{vWR+dt} offset:{(s%3)*16384+ks*8192+hf*1024}",('A',s))
    def b_read(s,i,ks):
        n=s*4+i
        r=128+(n&1)*8+ks*4
        g.lgop(f"ds_read_b128 a[{r}:{r+3}], v{vXR+ks} offset:{((s&1)*4+i)*2048}",('B',s,i))
    tick(40)
    kidx(0,sKW,19); wq_dma(0)
    if opt.get("tlb"):
        late_setup()
        g.e(f"""
        v_lshlrev_b32 v1, 22, v0
        v_lshlrev_b32 v2, 20, v0
        v_mov_b32 v3, s{sOB}
        v_writelane_b32 v3, s{sOOB}, 1
        v_writelane_b32 v3, s{sEXW}, 2
        s_lshl_b32 s{sT0}, s2, 7
        s_add_u32 s{sT0}, s{sT0}, {FLAG_OFF}
        v_writelane_b32 v3, s{sT0}, 3
        s_mov_b32 m0, s{sWOFF}
        s_mov_b64 exec, 0xf
        """)
        g.vmop(f"buffer_load_dword v1, {sr(S_K)}, s{sCUR} offen{NT} lds",('tlb',))
        g.vmop(f"buffer_load_dword v1, {sr(S_V)}, s{sCUR} offen{NT} lds",('tlb',))
        g.vmop(f"buffer_load_dword v2, {sr(S_WO)}, s{sWOB} offen{NT} lds",('tlb',))
        g.vmop(f"buffer_load_dword v3, {sr(S_O)}, 0 offen{NT} lds",('tlb',))
        g.e("s_mov_b64 exec, 1")
        g.vmop(f"buffer_load_dword v1, {sr(S_OUT)}, s{sOUTB} offen{NT} lds",('tlb',))
        g.e("s_mov_b64 exec, -1")
    kidx(0,sKX,7)
    for i in range(4): x_dma(0,i)
    kidx(1,sKW,19); wq_dma(1)
    Q0=opt.get("q0fast",0)
    if not opt.get("qpro",0) and not Q0:
        kidx(1,sKX,7)
        for i in range(4): x_dma(1,i)
        kidx(2,sKW,19); wq_dma(2)
    tick(41)
    if not opt.get("tlb"): late_setup()
    tick(42)
    g.vmwait(('wq',0))
    tick(43)
    g.e("s_barrier")
    AR=[(ks,dt,hf) for ks in range(2) for dt in range(8) for hf in range(2)]
    for (ks,dt,hf) in AR: a_read(0,ks,dt,hf)
    g.vmwait(('x',0,0))
    tick(44)
    b_read(0,0,0); b_read(0,0,1)
    if opt.get("qpro",0) and not Q0:
        kidx(1,sKX,7)
        for i in range(4): x_dma(1,i)
        kidx(2,sKW,19); wq_dma(2)
    if Q0:
        g.e(f"s_add_u32 s{sT0}, s{sPHI}, 1\ns_and_b32 s{sT0}, s{sT0}, {KM}\ns_lshl_b32 s{sQ1}, s{sT0}, 7\ns_add_u32 s{sT0}, s{sPHI}, 2\ns_and_b32 s{sT0}, s{sT0}, {KM}\ns_lshl_b32 s{sQ2}, s{sT0}, 19\ns_add_u32 s{sQ2}, s{sQ2}, s{sWQB}")
    g.e(f"""s_add_u32 s{sT0}, s{sPHI}, 2
    s_and_b32 s{sT0}, s{sT0}, {KM}
    s_lshl_b32 s{sKX}, s{sT0}, 7
    s_add_u32 s{sT0}, s{sPHI}, 3
    s_and_b32 s{sT0}, s{sT0}, {KM}
    s_lshl_b32 s{sKW}, s{sT0}, 19""")
    for s in range(16):
        first=(Q0 and s==0)
        if s+1<16 and not first: g.vmwait(('wq',s+1))
        g.lgwait(('A',s))
        g.e("s_barrier")
        tick(s)
        G_=Gaps(64)
        dpos=opt.get("dpos",[2,7,12,17,23,28,34,39,45,50,56,61])
        if first:
            p=0
            for i in range(4):
                G_.put_post(p,S(f"s_add_u32 s{sQ3}, s{sXB+i}, s{sQ1}\ns_add_u32 m0, s{sXL}, {(4+i)*2048}"))
                for j in range(2):
                    G_.mem[p+1+j]=(lambda j=j,i=i: g.vmop(f"buffer_load_dwordx4 v{vXD+j}, {sr(S_X)}, s{sQ3} offen offset:{1024*j}{NTX} lds",('x',1,i)))
                p+=3
            G_.put_post(p,S(f"s_add_u32 m0, s{sWL}, {2*16384}"))
            for j in range(4):
                G_.mem[p+1+j]=(lambda j=j: g.vmop(f"buffer_load_dwordx4 v{vWD+j}, {sr(S_WQ)}, s{sQ2} offen offset:{1024*j}{NTW} lds",('wq',2)))
            dpos=[21,24,27,30,35,38,43,46,51,54,58,61]
        if s+3<16:
            if (s+3)==8 and not FULL: G_.put_post(0,S(f"s_add_u32 s{sWQB}, s{sWQB}, {8<<19}"))
            G_.put_post(dpos[0]-2,S(f"s_add_u32 s{sWT}, s{sWQB}, s{sKW}"))
            G_.put_post(dpos[0]-1,S(f"s_add_u32 m0, s{sWL}, {((s+3)%3)*16384}"))
            for j in range(4):
                G_.mem[dpos[j]]=(lambda j=j,s=s: g.vmop(f"buffer_load_dwordx4 v{vWD+j}, {sr(S_WQ)}, s{sWT} offen offset:{1024*j}{NTW} lds",('wq',s+3)))
            G_.put_post(dpos[3],S(f"s_add_u32 s{sKW}, s{sKW}, {1<<19}"))
            G_.put_post(dpos[3]+1,S(f"s_and_b32 s{sKW}, s{sKW}, {KM<<19}"))
        if s+2<16:
            for i in range(4):
                p=dpos[4+2*i]
                if (s+2)==8 and not FULL: G_.put_post(p-3,S(f"s_add_u32 s{sXB+i}, s{sXB+i}, 1024"))
                G_.put_post(p-2,S(f"s_add_u32 s{sXT}, s{sXB+i}, s{sKX}"))
                G_.put_post(p-1,S(f"s_add_u32 m0, s{sXL}, {((s&1)*4+i)*2048}"))
                for j in range(2):
                    G_.mem[dpos[4+2*i+j]]=(lambda j=j,s=s,i=i: g.vmop(f"buffer_load_dwordx4 v{vXD+j}, {sr(S_X)}, s{sXT} offen offset:{1024*j}{NTX} lds",('x',s+2,i)))
            G_.put_post(dpos[11],S(f"s_add_u32 s{sKX}, s{sKX}, 128"))
            G_.put_post(dpos[11]+1,S(f"s_and_b32 s{sKX}, s{sKX}, {KM<<7}"))
        if s in KPRE:
            c=KPRE[s]
            for j,p in enumerate(opt.get("kpos",[19,30,41,52])):
                G_.put_post(p-2,S(kv_soff(sT1,sCUR,c)))
                G_.put_post(p-1,S(f"s_add_u32 m0, s{sWOFF}, {c*SLOT}"))
                assert G_.mem[p] is None
                G_.mem[p]=(lambda j=j,c=c: g.vmop(f"buffer_load_dwordx4 v{vKD+j}, {sr(S_K)}, s{sT1} offen offset:{1024*j}{NT} lds",('kv',c)))
        if s in KREG:
            c=KREG[s]
            for j,p in enumerate(opt.get("kpos",[19,30,41,52])):
                if j==0: G_.put_post(p-2,S(f"s_add_u32 s{sKRG}, s{sCUR}, {c*16384}"))
                assert G_.mem[p] is None
                r=OACC+16*KRI[c]+4*j
                G_.mem[p]=(lambda j=j,r=r: g.e(f"buffer_load_dwordx4 {ar(r)}, v{vKD+j}, {sr(S_K)}, s{sKRG} offen offset:{1024*j}{NT}"))
        WT={int(k):v for k,v in opt.get("wotouch",{}).items()}
        if s in WT:
            n_=WT[s]; p=20
            assert G_.mem[p] is None
            G_.put_post(p-2,S(f"s_add_u32 s{sT1}, s{sTCH}, {n_*8192}"))
            G_.put_post(p-1,S(f"s_add_u32 m0, s{sWOFF}, {2*SLOT}"))
            G_.mem[p]=(lambda: g.vmop(f"buffer_load_dword v{vTCH}, {sr(S_WO)}, s{sT1} offen lds",('tch',)))
        for i in range(4):
            nxt=(s,i+1) if i<3 else ((s+1,0) if s+1<16 else None)
            if nxt:
                q=G_.put_mem(16*i+opt.get("bpos",4),lambda nxt=nxt: b_read(nxt[0],nxt[1],0),lo=16*i,hi=16*i+16)
                G_.put_pre(q,lambda nxt=nxt: g.vmwait(('x',)+nxt))
                G_.put_mem(q+1,lambda nxt=nxt: b_read(nxt[0],nxt[1],1),lo=q+1,hi=16*i+16)
        if first:
            G_.put_pre(31,lambda: (g.vmwait(('wq',1)), g.e("s_barrier")))
            for n_,(ks,dt,hf) in enumerate(AR):
                G_.put_mem(32+n_*28/32.0,lambda ks=ks,dt=dt,hf=hf,s=s: a_read(s+1,ks,dt,hf),lo=32,hi=64)
        elif s+1<16:
            aend=opt.get("aend",56)
            for n_,(ks,dt,hf) in enumerate(AR):
                G_.put_mem(n_*aend/32.0,lambda ks=ks,dt=dt,hf=hf,s=s: a_read(s+1,ks,dt,hf),hi=62)
        M=[]
        for i in range(4):
            n=s*4+i
            for ks in range(2):
                for dt in range(8):
                    d=ACC+(i*8+dt)*4
                    txt=f"v_mfma_f32_16x16x32_bf16 {vr(d)}, {ar(64*(s&1)+(ks*8+dt)*4)}, {ar(128+(n&1)*8+ks*4)}, {'0' if (s==0 and ks==0) else vr(d)}"
                    if ks==0 and dt==0: M.append(lambda txt=txt,s=s,i=i: (g.lgwait(('B',s,i)), g.e(txt)))
                    else: M.append(txt)
        G_.emit(g,M)
    tick(16)
    if KREG: g.e("s_waitcnt vmcnt(0)")
    g.e("s_barrier")
    if KREG:
        g.e(f"v_add_u32 v1, s{sWOFF}, v{vOS}\nv_add_u32 v3, 0x10000, v1")
        for c in sorted(KREG.values()):
            for j in range(4):
                r=OACC+16*KRI[c]+4*j
                off=c*SLOT+j*1024
                if off<65536: g.e(f"ds_write_b128 v1, {ar(r)} offset:{off}")
                else: g.e(f"ds_write_b128 v3, {ar(r)} offset:{off-65536}")
            if c==3: pass
    rest=[cc for cc in range(LA) if cc not in KPRE.values() and cc not in KREG.values()]
    late=rest[-opt.get("late",0):] if opt.get("late",0) else []
    for cc in rest:
        if cc in late: continue
        h,dm=kv_group(cc); g.e(h)
        for l in dm: g.e(l)
    for i in range(4):
        for t in range(4):
            bx=ACC+(i*8+2*t)*4; by=bx+4; F=QF+16*i+4*t
            g.e(f"""
            v_cvt_pk_bf16_f32 v56, v{bx}, v{bx+1}
            v_cvt_pk_bf16_f32 v57, v{bx+2}, v{bx+3}
            v_cvt_pk_bf16_f32 v58, v{by}, v{by+1}
            v_cvt_pk_bf16_f32 v59, v{by+2}, v{by+3}
            v_cndmask_b32 v{F}, v56, v58, s[{sMASK}:{sMASK+1}]
            v_cndmask_b32 v{F+1}, v57, v59, s[{sMASK}:{sMASK+1}]
            v_cndmask_b32 v{F+2}, v58, v56, s[{sMASK}:{sMASK+1}]
            v_cndmask_b32 v{F+3}, v59, v57, s[{sMASK}:{sMASK+1}]
            """)
    for cc in late:
        h,dm=kv_group(cc); g.e(h)
        for l in dm: g.e(l)
    if KREG: g.e("s_waitcnt lgkmcnt(0)")
    tick(17); tick_store(); stamp(); dstamp(3)
    g.label("L_ITEM")
    g.vm=[]; g.lg=[]
    tick(40)
    g.e(f"s_cmp_lt_u32 s{sITEM}, 3\ns_cselect_b32 s{S_KN+2}, {64*MB}, 0\ns_cselect_b32 s{sLAST}, 0, 1")
    for n in range(4):
        g.e(f"s_cmp_eq_u32 s{sITEM}, {n}\ns_cbranch_scc0 L_QC{n}")
        for r in range(16): g.e(f"v_accvgpr_write_b32 a{QCUR+r}, v{QF+16*n+r}")
        g.label(f"L_QC{n}")
    MX=4
    def pcalc(J):
        b=ACC+8*J
        L=[f"v_fma_f32 v{TA+r}, v{b+r}, s{sC}, -v4" for r in range(8)]
        L+=[f"v_exp_f32 v{TA+r}, v{TA+r}" for r in range(8)]
        L+=[f"v_cvt_pk_bf16_f32 v{ACC+4*J+r}, v{TA+2*r}, v{TA+2*r+1}" for r in range(4)]
        return L
    def reads(c):
        st=c&1; sl=c&7; hi=sl>=4; so=(sl&3)*SLOT; R=[]
        if c<8:
            for kt in range(4):
                for t in range(4):
                    R.append(lambda kt=kt,t=t: g.lgop(f"ds_read_b128 {ar(64*st+(kt*4+t)*4)}, v{vKR+(4 if hi else 0)+t} offset:{so+kt*4096}",('F',c,kt)))
        else:
            for js in range(2):
                for dt in range(8):
                    for hf in range(2):
                        r=64*st+(js*8+dt)*4+2*hf
                        R.append(lambda r=r,js=js,dt=dt,hf=hf: g.lgop(f"ds_read_b64_tr_b16 a[{r}:{r+1}], v{vVR+(8 if hi else 0)+dt} offset:{so+js*8192+hf*4096}",('F',c,js*8+dt)))
        return R
    g.e(f"s_waitcnt vmcnt({4*(LA-1)})\ns_barrier")
    for f in reads(0): f()
    for c in range(16):
        cc=c+LA
        if c<15: g.e(f"s_waitcnt vmcnt({4*(LA-2)})")
        if opt.get("thra") is not None and c<15:
            if c<opt.get("thra_skip",0):
                g.e(f"s_cmp_eq_u32 s{sITEM}, 0\ns_cbranch_scc1 L_TS{c}\ns_waitcnt vmcnt({opt['thra']})\nL_TS{c}:")
            else: g.e(f"s_waitcnt vmcnt({opt['thra']})")
        if opt.get("thr") is not None and c<15:
            g.e(f"s_bitcmp1_b32 s2, 0\ns_cbranch_scc{opt.get('thr_par',1)} L_TH{c}\ns_waitcnt vmcnt({opt['thr']})\nL_TH{c}:")
        g.e("s_barrier")
        tick(c)
        dm=[]
        if cc<16 or cc>=16+NWOP:
            h,dl=kv_group(cc); g.e(h); dm=[(lambda l=l: g.e(l)) for l in dl]
        else:
            k=cc-16
            g.e(f"s_cmp_eq_u32 s{sLAST}, 1\ns_cbranch_scc1 L_HO{k}")
            h,dl=kv_group(cc); g.e(h)
            for l in dl: g.e(l)
            g.e(f"s_branch L_HJ{k}")
            g.label(f"L_HO{k}")
            wo_group(k,False)
            g.label(f"L_HJ{k}")
        R=reads(c+1) if c<15 else []
        st=c&1; M=[]; VL=[]
        if c<8:
            for kt in range(4):
                T=4*c+kt; d=ACC+4*T
                for t in range(4):
                    txt=f"v_mfma_f32_16x16x32_bf16 {vr(d)}, {ar(64*st+(kt*4+t)*4)}, {ar(QCUR+4*t)}, {'0' if t==0 else vr(d)}"
                    M.append((lambda txt=txt,kt=kt,c=c: (g.lgwait(('F',c,kt)), g.e(txt))) if t==0 else txt)
            if c>0:
                for kt in range(4):
                    b=ACC+16*(c-1)+4*kt
                    if c==1: VL+=[f"v_max3_f32 v{MX+kt}, v{b}, v{b+1}, v{b+2}",f"v_max_f32 v{MX+kt}, v{MX+kt}, v{b+3}"]
                    else: VL+=[f"v_max3_f32 v{MX+kt}, v{MX+kt}, v{b}, v{b+1}",f"v_max3_f32 v{MX+kt}, v{MX+kt}, v{b+2}, v{b+3}"]
        else:
            cv=c-8
            for js in range(2):
                J=2*cv+js; P=ACC+4*J
                for dt in range(8):
                    d=OA+4*dt
                    txt=f"v_mfma_f32_16x16x32_bf16 {ar(d)}, {ar(64*st+(js*8+dt)*4)}, {vr(P)}, {'0' if J==0 else ar(d)}"
                    M.append(lambda txt=txt,c=c,k=js*8+dt: (g.lgwait(('F',c,k)), g.e(txt)))
                M.append(f"v_mfma_f32_16x16x32_bf16 {ar(LAcc)}, {ar(ONES)}, {vr(P)}, {'0' if J==0 else ar(LAcc)}")
            if cv<7:
                for J in (2*cv+2,2*cv+3): VL+=pcalc(J)
        if c<7: pat=['tv','tv','tt','d']*4
        elif c==7: pat=['ttv','tt','ttv','dtt']*4
        else: pat=['ttv','ttv','ttv','dvvvv']*4+['ttttvv','ttttvv']
        if opt.get("dfront"):
            nd=opt["dfront"]
            pat=[p.replace('d','') for p in pat]
            for q in range(4): pat[min(q*nd,len(pat)-1)]='d'+pat[min(q*nd,len(pat)-1)]
        ti=vi=di=0
        for m,p in zip(M,pat):
            m() if callable(m) else g.e(m)
            for ch in p:
                if ch=='t' and ti<len(R): R[ti](); ti+=1
                elif ch=='v' and vi<len(VL): g.e(VL[vi]); vi+=1
                elif ch=='d' and di<len(dm): dm[di](); di+=1
        while ti<len(R): R[ti](); ti+=1
        while di<len(dm): dm[di](); di+=1
        while vi<len(VL): g.e(VL[vi]); vi+=1
        if c==7:
            g.e("s_nop 7")
            for kt in range(4):
                b=ACC+16*7+4*kt
                g.e(f"v_max3_f32 v{MX+kt}, v{MX+kt}, v{b}, v{b+1}\nv_max3_f32 v{MX+kt}, v{MX+kt}, v{b+2}, v{b+3}")
            g.e(f"""
            v_max3_f32 v4, v4, v5, v6
            v_max_f32 v4, v4, v7
            v_mov_b32 v5, v4
            s_nop 1
            v_permlane16_swap_b32 v4, v5
            v_max_f32 v4, v4, v5
            v_mov_b32 v5, v4
            s_nop 1
            v_permlane32_swap_b32 v4, v5
            v_max_f32 v4, v4, v5
            v_mul_f32 v4, s{sC}, v4
            """)
            for J in (0,1):
                for l in pcalc(J): g.e(l)
    tick(16)
    g.e(f"s_nop 7\nv_accvgpr_read_b32 v4, a{LAcc}\ns_nop 0\nv_rcp_f32 v4, v4")
    for t in range(4):
        tb=128+16*t
        for r in range(8): g.e(f"v_accvgpr_read_b32 v{tb+r}, a{OA+8*t+r}")
        for r in range(8): g.e(f"v_mul_f32 v{tb+r}, v{tb+r}, v4")
        for r in range(4): g.e(f"v_cvt_pk_bf16_f32 v{tb+8+r}, v{tb+2*r}, v{tb+2*r+1}")
        if not opt.get("no_ostore"): g.e(f"buffer_store_dwordx4 {vr(tb+8)}, v{vOS}, {sr(S_O)}, s{sOB} offen offset:{t*1024}{STO}")
    g.e(f"""
    s_add_u32 s{sCUR}, s{sCUR}, 0x400000
    s_add_u32 s{sNXT}, s{sNXT}, 0x400000
    s_add_u32 s{sOB}, s{sOB}, 0x80000
    s_cmp_eq_u32 s{sLAST}, 1
    s_cbranch_scc0 L_A_DONE
    s_waitcnt vmcnt(0)
    s_barrier
    s_cmp_lg_u32 s{sW}, 0
    s_cbranch_scc1 L_A_DONE
    v_accvgpr_read_b32 v1, a166
    v_accvgpr_read_b32 v3, a164
    s_nop 0
    v_readfirstlane_b32 s{sT0}, v1
    v_readfirstlane_b32 s{sT1}, v3
    s_nop 3
    s_cmp_eq_u32 s{sT0}, 0
    s_cselect_b32 s{sNONCE}, s{sT1}, s{sT0}
    """)
    flag_store(0)
    g.e(f"L_A_DONE:\ns_add_u32 s{sITEM}, s{sITEM}, 1")
    tick(17); tick_store(); stamp()
    g.e(f"s_cmp_lt_u32 s{sITEM}, 4\ns_cbranch_scc1 L_ITEM")
    def xst(i):
        if opt.get("xstamps"):
            g.e(f"s_mov_b32 s101, s{sSEGN}\ns_mov_b32 s{sSEGN}, {i}"); stamp(); g.e(f"s_mov_b32 s{sSEGN}, s101")
    def phase_o4():
        dstamp(4)
        g.vm=[]; g.lg=[]
        g.e(f"s_lshl_b32 s{sT0}, s{sKH}, 6")
        for dt in range(16): g.e(f"v_xor_b32 v{vWOR+dt}, s{sT0}, v{vVR+dt}")
        g.e(f"v_add_u32 v{vOS2}, 0x40000, v{vOS}\nv_add_u32 v{vOS3}, 0x60000, v{vOS}")
        g.e(f"""
        s_cmp_lg_u32 s{sW}, 0
        s_cbranch_scc1 L_O_WAITB
        v_mov_b32 v1, {128*K1}
        v_mov_b32 v3, s{sNONCE}
        ds_write_b32 v1, v3
        s_mov_b32 s{sCNT}, 0
        s_mov_b64 exec, 0xff
        L_O_POLL:
        global_load_dword v3, v{vPA}, s[{sWS}:{sWS+1}] sc1
        s_add_u32 s{sCNT}, s{sCNT}, 1
        s_waitcnt vmcnt(0)
        v_cmp_eq_u32 vcc, s{sNONCE}, v3
        s_cmp_gt_u32 s{sCNT}, 0x40000
        s_cbranch_scc1 L_O_POLLX
        s_nop 1
        s_cmp_lg_u32 vcc_lo, 0xff
        s_cbranch_scc1 L_O_POLL
        L_O_POLLX:
        s_mov_b64 exec, -1
        s_waitcnt lgkmcnt(0)
        L_O_WAITB:
        s_barrier
        v_mov_b32 v1, {128*K1}
        ds_read_b32 v3, v1
        s_waitcnt lgkmcnt(0)
        v_readfirstlane_b32 s{sNONCE}, v3
        """)
        dstamp(5)
        if opt.get("stamps"):
            g.e(f"s_mov_b32 s101, s{sSEGN}\ns_mov_b32 s{sSEGN}, 9"); stamp(); g.e(f"s_mov_b32 s{sSEGN}, s101")
        OL=3; WL=5; OF=128; NS=16; OA4=128
        vQ=[vOS,vOS1,vOS2,vOS3]
        def cid(j): return j&8
        def o_txt(s_,k):
            rt,js=k>>1,k&1
            r=OF+(s_&3)*32+(rt*2+js)*4
            return f"buffer_load_dwordx4 {vr(r)}, v{vQ[rt]}, {sr(S_O)}, s{sKO} offen offset:{js*1024}{NTOO}"
        for s_ in range(OL):
            g.e(f"s_add_u32 s{sT0}, s{sPHO}, {s_}\ns_and_b32 s{sT0}, s{sT0}, 7\ns_lshl_b32 s{sT0}, s{sT0}, 11\ns_add_u32 s{sKO}, s{sT0}, s{sOOB}")
            for k in range(8): g.e(o_txt(s_,k))
        RD=[(js,nt,hf) for js in range(2) for nt in range(8) for hf in range(2)]
        def rd(u,js,nt,hf):
            r=64*(u&1)+(js*8+nt)*4+2*hf; sl=u&7
            g.lgop(f"ds_read_b64_tr_b16 a[{r}:{r+1}], v{vWOR+(8 if sl>=4 else 0)+nt} offset:{(sl&3)*SLOT+js*8192+hf*4096}",('A',u,js,nt))
        for (js,nt,hf) in RD: rd(0,js,nt,hf)
        g.e(f"""s_add_u32 s{sT0}, s{sPHO}, {WL}
        s_and_b32 s{sT0}, s{sT0}, 7
        s_lshl_b32 s{sWLO}, s{sT0}, 17
        s_add_u32 s{sT0}, s{sPHO}, {OL}
        s_and_b32 s{sT0}, s{sT0}, 7
        s_lshl_b32 s{sOLO}, s{sT0}, 11""")
        for u in range(NS):
            yv=8*len([j for j in range(u+1,min(u+OL,NS))])
            n=min(12,yv)
            if u+1<NS and u+1>=NWOP:
                yd=4*len([j for j in range(u+2,min(u+WL,NS))])
                n=min(n,yd)
            g.e(f"s_waitcnt vmcnt({n})")
            g.e("s_barrier")
            tick(u)
            G_=Gaps(64)
            if u+WL<NS:
                if u+WL==8: G_.put_post(0,S(f"s_add_u32 s{sWOB}, s{sWOB}, {8<<17}"))
                G_.put_post(1,S(f"s_add_u32 s{sKWO}, s{sWLO}, s{sWOB}"))
                G_.put_post(2,S(f"s_add_u32 m0, s{sWOFF}, {((u+WL)&7)*SLOT}"))
                G_.put_post(20,S(f"s_add_u32 s{sWLO}, s{sWLO}, {1<<17}"))
                G_.put_post(21,S(f"s_and_b32 s{sWLO}, s{sWLO}, {7<<17}"))
                for j,p in enumerate([3,19,35,51]):
                    G_.mem[p]=(lambda j=j: g.e(f"buffer_load_dwordx4 v{vWOD+j}, {sr(S_WO)}, s{sKWO} offen offset:{1024*j}{NTO} lds"))
            if u+OL<NS:
                if u+OL==8: G_.put_post(4,S(f"s_add_u32 s{sOOB}, s{sOOB}, {8<<11}"))
                G_.put_post(5,S(f"s_add_u32 s{sKO}, s{sOLO}, s{sOOB}"))
                G_.put_post(61,S(f"s_add_u32 s{sOLO}, s{sOLO}, {1<<11}"))
                G_.put_post(62,S(f"s_and_b32 s{sOLO}, s{sOLO}, {7<<11}"))
                for k,p in enumerate([7,13,23,29,39,45,55,60]):
                    G_.mem[p]=(lambda k=k,u=u: g.e(o_txt(u+OL,k)))
            if u+1<NS:
                for n_,(js,nt,hf) in enumerate(RD):
                    G_.put_mem(n_*58/32.0,lambda js=js,nt=nt,hf=hf,u=u: rd(u+1,js,nt,hf),hi=62)
            M=[]
            for js in range(2):
                for nt in range(8):
                    for rt in range(4):
                        d=OA4+(rt*8+nt)*4
                        txt=f"v_mfma_f32_16x16x32_bf16 {ar(d)}, {ar(64*(u&1)+(js*8+nt)*4)}, {vr(OF+(u&3)*32+(rt*2+js)*4)}, {'0' if (u==0 and js==0) else ar(d)}"
                        if rt==0: M.append(lambda txt=txt,u=u,js=js,nt=nt: (g.lgwait(('A',u,js,nt)), g.e(txt)))
                        else: M.append(txt)
            G_.emit(g,M)
        tick(16); tick(17); tick_store(); stamp(); dstamp(6)
        g.e("s_nop 7")
        for d in range(1,4):
            for hb in range(2):
                g.e(f"s_add_u32 s{sT1}, s{sEXW}, {(d-1)*8192+hb*4096}")
                for rr in range(2):
                    rt=2*hb+rr
                    for m in range(2):
                        g.e(f"buffer_store_dwordx4 {ar(OA4+(rt*8+2*d+m)*4)}, v{vOS}, {sr(S_O)}, s{sT1} offen offset:{(rr*2+m)*1024} sc1")
        for rt in range(4):
            for m in range(2):
                for q in range(4): g.e(f"v_accvgpr_read_b32 v{224+(rt*2+m)*4+q}, a{OA4+(rt*8+m)*4+q}")
        g.e(f"""
        v_lshrrev_b32 v3, 4, v0
        v_and_b32 v4, 15, v0
        v_lshlrev_b32 v5, 3, v3
        v_lshl_add_u32 v52, v4, 12, v5
        s_lshl_b32 s{sCNT}, s{sW}, 2
        s_add_u32 s{sCNT}, s{sCNT}, 16
        v_add_u32 v5, 1, v0
        v_xor_b32 v5, s2, v5
        v_lshlrev_b32 v5, 7, v5
        s_add_u32 s{sT0}, s{sCNT}, {FLAG_OFF}
        v_add_u32 v53, s{sT0}, v5
        s_waitcnt vmcnt(0)
        """)
        xst(11)
        flag_store(f"s{sCNT}")
        g.e(f"""
        s_mov_b32 s{sCNT}, 0
        s_mov_b64 exec, 7
        L_X_POLL:
        global_load_dword v3, v53, s[{sWS}:{sWS+1}] sc1
        s_add_u32 s{sCNT}, s{sCNT}, 1
        s_waitcnt vmcnt(0)
        v_cmp_eq_u32 vcc, s{sNONCE}, v3
        s_cmp_gt_u32 s{sCNT}, 0x40000
        s_cbranch_scc1 L_X_POLLX
        s_nop 1
        s_cmp_lg_u32 vcc_lo, 7
        s_cbranch_scc1 L_X_POLL
        L_X_POLLX:
        s_mov_b64 exec, -1
        """)
        xst(12)
        for d in range(1,4):
            g.e(f"s_xor_b32 s{sT0}, s2, {d}\ns_mul_i32 s{sT0}, s{sT0}, 98304\ns_mul_i32 s{sT1}, s{sW}, 24576\ns_add_u32 s{sT0}, s{sT0}, s{sT1}\ns_add_u32 s{sEXR}, s{sT0}, {EXCH_OFF+(d-1)*8192}")
            for hb in range(2):
                if hb==1: g.e(f"s_add_u32 s{sEXR}, s{sEXR}, 4096")
                for k in range(4):
                    g.e(f"buffer_load_dwordx4 {vr(128+((d-1)*8+hb*4+k)*4)}, v{vOS}, {sr(S_O)}, s{sEXR} offen offset:{k*1024} sc1")
        g.e("s_waitcnt vmcnt(0)")
        xst(13)
        for rt in range(4):
            if rt>0: g.e(f"s_add_u32 s{sOUTB}, s{sOUTB}, 0x10000")
            for m in range(2):
                dd=224+(rt*2+m)*4
                for d in range(3):
                    r=128+(d*8+rt*2+m)*4
                    for q in range(4): g.e(f"v_add_f32 v{dd+q}, v{dd+q}, v{r+q}")
                g.e(f"""v_cvt_pk_bf16_f32 v{dd}, v{dd}, v{dd+1}
                v_cvt_pk_bf16_f32 v{dd+1}, v{dd+2}, v{dd+3}
                buffer_store_dwordx2 v[{dd}:{dd+1}], v52, {sr(S_OUT)}, s{sOUTB} offen offset:{m*32}{opt.get("st_out","")}""")
    def phase_o2():
        dstamp(4)
        g.vm=[]; g.lg=[]
        tick(40)
        g.e(f"s_lshl_b32 s{sT0}, s{sKH}, 7")
        for dt in range(16): g.e(f"v_xor_b32 v{vWOR+dt}, s{sT0}, v{vVR+dt}")
        g.e("v_mov_b32 v1, 0")
        for r in range(64): g.e(f"v_accvgpr_write_b32 a{OACC+r}, v1")
        g.e(f"""
        s_cmp_lg_u32 s{sW}, 0
        s_cbranch_scc1 L_O_WAITB
        v_mov_b32 v1, {128*K1}
        v_mov_b32 v3, s{sNONCE}
        ds_write_b32 v1, v3
        s_mov_b32 s{sCNT}, 0
        s_mov_b64 exec, 0xffff
        L_O_POLL:
        global_load_dword v3, v{vPA}, s[{sWS}:{sWS+1}] sc1
        s_add_u32 s{sCNT}, s{sCNT}, 1
        s_waitcnt vmcnt(0)
        v_cmp_eq_u32 vcc, s{sNONCE}, v3
        s_cmp_gt_u32 s{sCNT}, 0x40000
        s_cbranch_scc1 L_O_POLLX
        s_nop 1
        s_cmp_lg_u32 vcc_lo, 0xffff
        s_cbranch_scc1 L_O_POLL
        L_O_POLLX:
        s_mov_b64 exec, -1
        s_waitcnt lgkmcnt(0)
        L_O_WAITB:
        s_barrier
        v_mov_b32 v1, {128*K1}
        ds_read_b32 v3, v1
        s_waitcnt lgkmcnt(0)
        v_readfirstlane_b32 s{sNONCE}, v3
        """)
        tick(41); dstamp(5)
        if opt.get("stamps"):
            g.e(f"s_mov_b32 s101, s{sSEGN}\ns_mov_b32 s{sSEGN}, 9"); stamp(); g.e(f"s_mov_b32 s{sSEGN}, s101")
        OL=3; WL=NWOP; OF=128; NCH=32
        def o_1(st,k,srdn,tag=None):
            rt,js=k>>1,k&1
            r=OF+st*16+(rt*2+js)*4
            g.e(f"buffer_load_dwordx4 {vr(r)}, v{vOS if rt==0 else vOS1}, {sr(srdn)}, s{sKO} offen offset:{js*1024}{NTOO}")
        for c in range(OL):
            g.e(f"s_add_u32 s{sT0}, s{sPHO}, {c}\ns_and_b32 s{sT0}, s{sT0}, 7\ns_lshl_b32 s{sT0}, s{sT0}, 11\ns_add_u32 s{sKO}, s{sT0}, s{sOOB}")
            for k in range(4): o_1(c,k,S_O)
        RD=[(js,nt,hf) for js in range(2) for nt in range(8) for hf in range(2)]
        def a_read2(u,js,nt,hf):
            r=64*(u&1)+(js*8+nt)*4+2*hf
            sl=u&7
            g.lgop(f"ds_read_b64_tr_b16 a[{r}:{r+1}], v{vWOR+(8 if sl>=4 else 0)+nt} offset:{(sl&3)*SLOT+js*8192+hf*4096}",('A',u&1,js,nt))
        for (js,nt,hf) in RD: a_read2(0,js,nt,hf)
        g.e(f"""s_add_u32 s{sT0}, s{sPHO}, {WL}
        s_and_b32 s{sT0}, s{sT0}, 7
        s_lshl_b32 s{sWLO}, s{sT0}, 17
        s_add_u32 s{sT0}, s{sPHO}, {OL}
        s_and_b32 s{sT0}, s{sT0}, 7
        s_lshl_b32 s{sOLO}, s{sT0}, 11
        s_mov_b32 s{sJ}, 0""")
        def body(u):
            g.e(f"s_waitcnt vmcnt(8)")
            g.e("s_barrier")
            if opt.get("steps"): g.e(f"s_memtime s[96:97]\ns_waitcnt lgkmcnt(0)\ns_sub_u32 s99, s96, s98\ns_mov_b32 s98, s96\nv_readlane_b32 s97, v62, {u}\ns_nop 3\ns_add_u32 s97, s97, s99\ns_nop 0\nv_writelane_b32 v62, s97, {u}"); g.lg=[]
            G_=Gaps(32)
            vp=opt.get("o_vpos",[3,7,11,15,19,23,27,31])
            if u+WL==8:
                G_.put_post(0,S(f"s_add_u32 s{sWOB}, s{sWOB}, {8<<17}\ns_cmp_lt_u32 s{sJ}, {NCH-8}\ns_cselect_b32 s{S_WON+2}, {8*MB}, 0"))
            G_.put_post(1,S(f"s_add_u32 s{sKWO}, s{sWLO}, s{sWOB}"))
            G_.put_post(2,S(f"s_add_u32 m0, s{sWOFF}, {((u+WL)&7)*SLOT}"))
            if u+OL==8:
                G_.put_post(4,S(f"s_add_u32 s{sOOB}, s{sOOB}, {8<<11}\ns_cmp_lt_u32 s{sJ}, {NCH-8}\ns_cselect_b32 s{S_ON+2}, {WS_SRD}, 0"))
            G_.put_post(5,S(f"s_add_u32 s{sKO}, s{sOLO}, s{sOOB}"))
            G_.put_post(8,S(f"s_add_u32 s{sWLO}, s{sWLO}, {1<<17}"))
            G_.put_post(9,S(f"s_and_b32 s{sWLO}, s{sWLO}, {7<<17}"))
            G_.put_post(12,S(f"s_add_u32 s{sOLO}, s{sOLO}, {1<<11}"))
            G_.put_post(13,S(f"s_and_b32 s{sOLO}, s{sOLO}, {7<<11}"))
            for j in range(4):
                G_.mem[vp[2*j]]=(lambda j=j: g.e(f"buffer_load_dwordx4 v{vWOD+j}, {sr(S_WON)}, s{sKWO} offen offset:{1024*j}{NTO} lds"))
                G_.mem[vp[2*j+1]]=(lambda j=j,u=u: o_1((u+OL)&3,j,S_ON))
            rend=opt.get("o_rend",30)
            for n_,(js,nt,hf) in enumerate(RD):
                G_.put_mem(n_*rend/32.0,lambda js=js,nt=nt,hf=hf,u=u: a_read2(u+1,js,nt,hf))
            M=[]
            for js in range(2):
                for nt in range(8):
                    for rt in range(2):
                        d=OACC+(rt*8+nt)*4
                        txt=f"v_mfma_f32_16x16x32_bf16 {ar(d)}, {ar(64*(u&1)+(js*8+nt)*4)}, {vr(OF+(u&3)*16+(rt*2+js)*4)}, {ar(d)}"
                        if rt==0: M.append(lambda txt=txt,u=u,js=js,nt=nt: (g.lgwait(('A',u&1,js,nt)), g.e(txt)))
                        else: M.append(txt)
            G_.emit(g,M)
        save=list(g.L)
        for u in range(8): body(u)
        lg_end=list(g.lg)
        g.L=save; g.lg=list(lg_end)
        g.e("s_waitcnt lgkmcnt(0)")
        if opt.get("steps"): g.e("v_mov_b32 v62, 0\ns_memtime s[98:99]\ns_waitcnt lgkmcnt(0)")
        g.label("L_O_LOOP")
        for u in range(8): body(u)
        assert g.lg==lg_end
        g.e(f"s_add_u32 s{sJ}, s{sJ}, 8\ns_cmp_lt_u32 s{sJ}, {NCH}\ns_cbranch_scc1 L_O_LOOP\ns_waitcnt lgkmcnt(0)")
        tick_store(); stamp(); dstamp(6)
        g.e("s_nop 7")
        for rt in range(2):
            if rt==1: g.e(f"s_add_u32 s{sEXW}, s{sEXW}, 4096")
            for m in range(4):
                d=OACC+(rt*8+4+m)*4
                g.e(f"buffer_store_dwordx4 {ar(d)}, v{vOS}, {sr(S_O)}, s{sEXW} offen offset:{m*1024} sc1")
        for rt in range(2):
            for m in range(4):
                for q in range(4): g.e(f"v_accvgpr_read_b32 v{128+(rt*4+m)*4+q}, a{OACC+(rt*8+m)*4+q}")
        g.e(f"""
        v_lshrrev_b32 v3, 4, v0
        v_and_b32 v4, 15, v0
        v_lshlrev_b32 v5, 3, v3
        v_lshl_add_u32 v52, v4, 12, v5
        s_lshl_b32 s{sCNT}, s{sW}, 2
        s_add_u32 s{sCNT}, s{sCNT}, 16
        s_waitcnt vmcnt(0)
        """)
        xst(11)
        flag_store(f"s{sCNT}")
        g.e(f"""
        s_xor_b32 s{sT0}, s2, 128
        s_lshl_b32 s{sT0}, s{sT0}, 7
        s_add_u32 s{sT0}, s{sT0}, {FLAG_OFF}
        s_add_u32 s{sT0}, s{sT0}, s{sCNT}
        v_mov_b32 v1, s{sT0}
        s_mov_b32 s{sCNT}, 0
        s_mov_b64 exec, 1
        L_X_POLL:
        global_load_dword v3, v1, s[{sWS}:{sWS+1}] sc1
        s_add_u32 s{sCNT}, s{sCNT}, 1
        s_waitcnt vmcnt(0)
        v_readfirstlane_b32 s{sT0}, v3
        s_cmp_gt_u32 s{sCNT}, 0x40000
        s_cbranch_scc1 L_X_POLLX
        s_cmp_lg_u32 s{sT0}, s{sNONCE}
        s_cbranch_scc1 L_X_POLL
        L_X_POLLX:
        s_mov_b64 exec, -1
        """)
        xst(12)
        for rt in range(2):
            if rt==1: g.e(f"s_add_u32 s{sEXR}, s{sEXR}, 4096")
            for m in range(4):
                r=192+(rt*4+m)*4
                g.e(f"buffer_load_dwordx4 {vr(r)}, v{vOS}, {sr(S_O)}, s{sEXR} offen offset:{m*1024} sc1")
        for rt in range(2):
            if rt==1: g.e(f"s_add_u32 s{sOUTB}, s{sOUTB}, 0x10000")
            for m in range(4):
                d=128+(rt*4+m)*4; r=192+(rt*4+m)*4
                if rt==0 and m==0:
                    g.e("s_waitcnt vmcnt(0)"); xst(13)
                for q in range(4): g.e(f"v_add_f32 v{d+q}, v{d+q}, v{r+q}")
                g.e(f"""v_cvt_pk_bf16_f32 v{d}, v{d}, v{d+1}
                v_cvt_pk_bf16_f32 v{d+1}, v{d+2}, v{d+3}
                buffer_store_dwordx2 v[{d}:{d+1}], v52, {sr(S_OUT)}, s{sOUTB} offen offset:{m*32}{opt.get("st_out","")}""")
    phase_o4() if O4 else phase_o2()
    stamp()
    if opt.get("dstamps"):
        g.e("s_waitcnt vmcnt(0)"); dstamp(7)
    if opt.get("stamps"):
        g.e("s_waitcnt vmcnt(0)")
        g.e(f"s_mov_b32 s{sSEGN}, 10")
        stamp()
    g.label("L_END")
    g.e("s_endpgm")
    return g.text()

def build(opt):
    s="; @launch grid=(256,1,1) block=(256,1,1) lds=163840\n"
    s+='.amdgcn_target "amdgcn-amd-amdhsa--gfx950"\n'
    s+=f".text\n.globl {KN}\n.p2align 8\n.type {KN},@function\n{KN}:\n"
    s+=gen(opt)
    s+=f""".section .rodata,"a"
.p2align 6
.amdhsa_kernel {KN}
  .amdhsa_next_free_vgpr 512
  .amdhsa_next_free_sgpr 102
  .amdhsa_accum_offset 256
  .amdhsa_group_segment_fixed_size 0
  .amdhsa_kernarg_size 104
  .amdhsa_user_sgpr_count 2
  .amdhsa_user_sgpr_kernarg_segment_ptr 1
  .amdhsa_system_sgpr_workgroup_id_x 1
.end_amdhsa_kernel
"""
    return s
if __name__=="__main__":
    opt=json.loads(sys.argv[2]) if len(sys.argv)>2 else {}
    open(sys.argv[1],"w").write(build(opt))
```

```python
import sys, struct, math, json
from gl import *
KN="concat_heads__mha_block_cached__mha_block_cached__near_ridge_kernel"
C_SCALE=struct.unpack("<I",struct.pack("<f",math.log2(math.e)/math.sqrt(128.0)))[0]
K1=1024; MB=K1*K1
EXCH_OFF=16*MB; FLAG_OFF=44*MB; STAMP_OFF=48*MB; WS_SRD=48*MB
SLOT=16384; LA=7; NPRE=3
WQBASE=48*K1; XBASE=96*K1
WO_AREA=[128*K1,144*K1,96*K1,112*K1]; WO_RB=96*K1

def gen(opt):
    opt=dict(opt); opt.setdefault('thra',4); opt.setdefault('thra_skip',3); opt.setdefault('late',1); opt.setdefault('odefer',1)
    g=G()
    S=lambda txt: (lambda: g.e(txt))
    NT=opt.get('nt_kv',' nt')
    NTX=opt.get("nt_x",""); NTW=opt.get("nt_wq"," nt"); NTO=opt.get("nt_wo",""); NTOO=opt.get("nt_o"," sc1"); STO=opt.get("st_o"," sc1")
    FULL=opt.get("fullrot",0); KM=15 if FULL else 7
    O4=opt.get("o4",0)
    NWOP=5 if O4 else opt.get("nwop",7)
    KREG={int(k):v for k,v in opt.get("kreg",{}).items()}
    KRI={c:n for n,c in enumerate(sorted(KREG.values()))}
    KPRE={int(k):v for k,v in opt.get("kpre",{10:0,12:1,14:2}).items()}
    sPA=7;sKRG=7;sSIG=3;sKRO=100;sQ1=5;sQ2=6;sQ3=4;sJ=4;sLAST=5;sCNT=6
    S_X=8;S_WQ=12;S_K=16;S_V=20;S_KN=24;S_O=28;S_WO=32;S_OUT=36;S_WON=40
    sW=44;sBR=45;sH=46;sBG=47;sRB=48;sCB=49;sKH=50;sPHI=51;sPHO=52
    sWQB=53;sKX=54;sKW=55;sXT=56;sWT=57;sT0=58;sT1=59
    sCUR=60;sNXT=61;sITEM=62;sOB=63;sC=64;sWOFF=65;sXL=66;sWL=67
    sMASK=68
    sXB=70
    sNONCE=74;sWOB=75;sOOB=76;sKWO=77;sKO=78;sWLO=79;sOLO=80;sOUTB=81;sEXW=82;sEXR=83
    S_ON=84
    sSEGN=89; sWS=90; sDBG=92; sSTB=94
    vKD=8; vVD=12; vKR=14; vVR=22; vOS=38; vOS1=39; vWOD=40; vPA=44; vTCH=45; sTCH=88; vOS2=45; vOS3=63
    vXD=46; vXR=48; vWD=50; vWR=54
    TA=52; vWOR=46
    QF=64; ACC=128
    OA=128; LAcc=160; ONES=168; QCUR=172; OACC=192
    def stamp():
        if not opt.get("stamps"): return
        g.e(f"""
        s_memrealtime s[96:97]
        s_memtime s[98:99]
        s_waitcnt lgkmcnt(0)
        v_mov_b32 v2, s96
        v_mov_b32 v3, s98
        s_lshl_b32 s96, s2, 7
        s_lshl_b32 s97, s{sSEGN}, 3
        s_add_u32 s96, s96, s97
        v_mov_b32 v1, s96
        global_store_dwordx2 v1, v[2:3], s[{sSTB}:{sSTB+1}]
        s_add_u32 s{sSEGN}, s{sSEGN}, 1
        """)
        g.lg=[]
        g.vm.append('stamp') if False else None
    def dstamp(word,neg=False):
        if not opt.get("dstamps"): return
        n=f"L_DS{word}"
        g.e(f"""
        s_cmp_lg_u32 s{sW}, 0
        s_cbranch_scc1 {n}
        s_memrealtime s[96:97]
        s_waitcnt lgkmcnt(0)
        {"s_not_b32 s96, s96" if neg else ""}
        v_mov_b32 v2, s96
        v_mov_b32 v1, {word*4}
        s_mov_b64 exec, 1
        global_atomic_umax v1, v2, s[{sDBG}:{sDBG+1}]
        s_mov_b64 exec, -1
        {n}:
        """)
        g.lg=[]
    def tick(k):
        if opt.get("steps"):
            g.e(f"s_memtime s[96:97]\ns_waitcnt lgkmcnt(0)\nv_writelane_b32 v62, s96, {k}"); g.lg=[]
    def tick_store():
        if opt.get("steps"):
            g.e(f"s_lshl_b32 s96, s2, 12\ns_lshl_b32 s97, s{sSEGN}, 8\ns_add_u32 s96, s96, s97\ns_add_u32 s96, s96, {MB}\nv_lshlrev_b32 v1, 2, v0\nv_add_u32 v1, s96, v1\nglobal_store_dword v1, v62, s[{sSTB}:{sSTB+1}]")
    if opt.get("stamps"): g.e("s_memrealtime s[88:89]\ns_waitcnt lgkmcnt(0)\ns_mov_b32 s101, s88")
    g.e(f"""
    s_cmp_ge_u32 s2, 256
    s_cbranch_scc1 L_END
    s_load_dwordx4 s[96:99], s[0:1], 80
    s_load_dwordx2 s[{sWS}:{sWS+1}], s[0:1], 96
    s_and_b32 s3, s2, 7                          ; xcd
    s_lshr_b32 s4, s2, 3                         ; idx
    s_lshr_b32 s{sBR}, s3, 2
    s_and_b32 s5, s3, 3
    s_lshl_b32 s5, s5, 3
    s_and_b32 s6, s4, 7
    s_add_u32 s{sH}, s5, s6
    s_lshr_b32 s{sBG}, s4, 3
    s_lshl_b32 s7, s{sBG}, 1
    s_add_u32 s7, s7, s6
    s_and_b32 s{sPHI}, s7, 7
    {"s_lshl_b32 s"+str(sPHI)+", s"+str(sPHI)+", 1" if FULL else ""}
    ; O mapping
    s_lshr_b32 s5, s3, 1
    s_and_b32 s5, s5, 1
    s_lshl_b32 s5, s5, 2
    s_and_b32 s6, s4, 3
    s_add_u32 s{sRB}, s5, s6
    s_and_b32 s5, s3, 1
    s_lshl_b32 s5, s5, 2
    s_lshr_b32 s7, s4, 2
    s_and_b32 s7, s7, 3
    s_add_u32 s{sCB}, s5, s7
    s_lshr_b32 s{sKH}, s4, 4
    s_add_u32 s{sPHO}, s6, s7
    s_and_b32 s{sPHO}, s{sPHO}, 3
    s_lshl_b32 s{sPHO}, s{sPHO}, 1
    s_mul_i32 s5, s{sBR}, 40
    s_add_u32 s4, s0, s5
    s_addc_u32 s5, s1, 0
    s_load_dwordx4 s[8:11], s[4:5], 0            ; x, k
    s_load_dwordx4 s[12:15], s[4:5], 16          ; v, wq
    s_load_dwordx2 s[16:17], s[4:5], 32          ; wo
    v_lshrrev_b32 v1, 6, v0
    v_and_b32 v0, 63, v0
    s_nop 0
    v_readfirstlane_b32 s{sW}, v1
    """)
    g.e(f"""
    v_lshrrev_b32 v1, 3, v0              ; r8
    v_and_b32 v2, 7, v0                  ; p8
    v_lshrrev_b32 v3, 4, v0              ; rr / g
    v_and_b32 v4, 15, v0                 ; p16 / q / key
    v_xor_b32 v5, v2, v3
    v_lshlrev_b32 v5, 4, v5
    v_lshl_add_u32 v{vXD}, v1, 11, v5
    v_xor_b32 v5, 64, v5
    v_lshl_add_u32 v5, v1, 11, v5
    v_add_u32 v{vXD+1}, {8*2048-1024}, v5
    v_lshrrev_b32 v5, 1, v4
    v_xor_b32 v5, v5, v3
    v_lshlrev_b32 v5, 4, v5
    v_lshl_add_u32 v5, v4, 7, v5
    s_lshl_b32 s{sXL}, s{sW}, 14
    s_add_u32 s{sXL}, s{sXL}, {XBASE}
    v_add_u32 v{vXR}, s{sXL}, v5
    v_xor_b32 v{vXR+1}, 64, v{vXR}
    v_and_b32 v5, 1, v3
    v_and_b32 v6, 2, v3
    v_lshl_or_b32 v5, v6, 1, v5          ; f0
    v_xor_b32 v5, v5, v4                 ; p ^ f0
    """)
    for j in range(4):
        g.e(f"""
        v_xor_b32 v6, {8*(j>>1)}, v5
        v_lshlrev_b32 v6, 4, v6
        v_lshl_add_u32 v6, v3, 13, v6
        v_add_u32 v{vWD+j}, {4*j*8192-1024*j}, v6
        """)
    g.e(f"""
    v_lshrrev_b32 v5, 2, v4              ; rp
    v_and_b32 v6, 3, v0                  ; c
    v_and_b32 v7, 1, v5
    v_and_b32 v1, 2, v5
    v_lshl_or_b32 v7, v1, 1, v7
    v_and_b32 v1, 1, v3
    v_lshl_or_b32 v7, v1, 3, v7          ; f
    v_xor_b32 v7, v7, v6                 ; c ^ f
    v_lshlrev_b32 v7, 4, v7
    v_and_b32 v1, 1, v6
    v_lshl_or_b32 v7, v1, 3, v7          ; + 8*(c&1)
    v_lshl_add_u32 v1, v3, 3, v5         ; 8kg+rp
    v_lshl_add_u32 v7, v1, 8, v7
    v_add_u32 v7, {WQBASE}, v7
    """)
    for dt in range(8):
        t,u=dt>>1,dt&1
        g.e(f"v_xor_b32 v{vWR+dt}, {(t<<6)^(u<<3)}, v7")
    for j in range(4):
        g.e(f"""
        v_add_u32 v5, {4*(j&1)}, v3
        v_lshlrev_b32 v5, 1, v5
        v_xor_b32 v5, v5, v4
        v_lshlrev_b32 v5, 4, v5
        v_lshl_add_u32 v5, v3, 11, v5
        v_add_u32 v{vWOD+j}, {4*j*2048-1024*j}, v5
        """)
    if O4:
        g.e(f"""
        v_and_b32 v5, 7, v0
        s_lshl_b32 s{sT0}, s{sBG}, 3
        v_add_u32 v5, s{sT0}, v5
        s_and_b32 s{sT0}, s2, 7
        v_lshlrev_b32 v5, 3, v5
        v_add_u32 v5, s{sT0}, v5
        v_lshlrev_b32 v5, 7, v5
        v_add_u32 v{vPA}, {FLAG_OFF}, v5
        """)
    else:
        g.e(f"""
        s_lshl_b32 s{sT0}, s{sKH}, 4
        v_add_u32 v5, s{sT0}, v4             ; h = 16kh + t
        v_lshrrev_b32 v6, 3, v5              ; h>>3
        s_lshl_b32 s{sT0}, s{sBR}, 2
        v_add_u32 v6, s{sT0}, v6             ; xcd'
        v_and_b32 v5, 7, v5
        s_lshr_b32 s{sT0}, s{sRB}, 1
        s_lshl_b32 s{sT0}, s{sT0}, 3
        v_add_u32 v5, s{sT0}, v5             ; idx'
        v_lshl_add_u32 v5, v5, 3, v6         ; wg'
        v_lshlrev_b32 v5, 7, v5
        s_mov_b32 s{sT0}, {FLAG_OFF}
        v_add_u32 v{vPA}, s{sT0}, v5
        """)
    for j in range(4):
        g.e(f"""
        v_add_u32 v5, {4*j}, v3
        v_xor_b32 v5, v5, v4
        v_lshlrev_b32 v5, 4, v5
        v_lshl_add_u32 v{vKD+j}, v3, 8, v5
        """)
    g.e(f"""
    v_xor_b32 v5, v3, v4
    v_lshlrev_b32 v5, 4, v5
    v_lshl_add_u32 v5, v4, 8, v5
    """)
    for t in range(4): g.e(f"v_xor_b32 v{vKR+t}, {t<<6}, v5\nv_add_u32 v{vKR+4+t}, 0x10000, v{vKR+t}")
    for jp in range(2):
        g.e(f"""
        v_add_u32 v5, {4*jp}, v3
        v_lshlrev_b32 v5, 1, v5
        v_xor_b32 v5, v5, v4
        v_lshlrev_b32 v5, 4, v5
        v_lshl_add_u32 v{vVD+jp}, v3, 8, v5
        """)
    g.e(f"""
    v_lshrrev_b32 v5, 2, v4              ; rp
    v_and_b32 v6, 3, v0                  ; c
    v_and_b32 v7, 1, v3
    v_lshl_add_u32 v7, v7, 2, v5         ; 4(g&1)+rp
    v_lshlrev_b32 v7, 1, v7
    v_lshrrev_b32 v1, 1, v6
    v_xor_b32 v7, v7, v1
    v_lshlrev_b32 v7, 4, v7
    v_and_b32 v1, 1, v6
    v_lshl_or_b32 v7, v1, 3, v7
    v_lshl_add_u32 v1, v3, 2, v5         ; 4g+rp
    v_lshl_add_u32 v7, v1, 8, v7
    """)
    for dt in range(8): g.e(f"v_xor_b32 v{vVR+dt}, {dt<<5}, v7\nv_add_u32 v{vVR+8+dt}, 0x10000, v{vVR+dt}")
    g.e(f"v_lshlrev_b32 v{vTCH}, 7, v0")
    g.e(f"s_and_b32 s{sT0}, s2, 3\ns_lshl_b32 s{sT0}, s{sT0}, 5\ns_lshr_b32 s{sT1}, s2, 3\ns_add_u32 s{sT0}, s{sT0}, s{sT1}\ns_lshl_b32 s{sTCH}, s{sT0}, 16\ns_lshl_b32 s{sT0}, s{sW}, 14\ns_add_u32 s{sTCH}, s{sTCH}, s{sT0}")
    g.e(f"v_lshlrev_b32 v{vOS}, 4, v0\nv_add_u32 v{vOS1}, 0x20000, v{vOS}\nv_mov_b32 v1, 0x3f803f80")
    for r in range(4): g.e(f"v_accvgpr_write_b32 a{ONES+r}, v1")
    g.e("s_waitcnt lgkmcnt(0)")
    def mk(s,lo,hi,size): g.e(f"s_mov_b32 s{s}, s{lo}\ns_and_b32 s{s+1}, s{hi}, 0xffff\ns_mov_b32 s{s+2}, {size}\ns_mov_b32 s{s+3}, 0x20000")
    g.e(f"s_mov_b32 s{sDBG}, s98\ns_mov_b32 s{sDBG+1}, s99")
    mk(S_OUT,96,97,4*MB); mk(S_WO,16,17,8*MB); mk(S_WON,16,17,8*MB); mk(S_V,12,13,64*MB)
    mk(S_K,10,11,64*MB); mk(S_KN,10,11,64*MB)
    g.e(f"s_mov_b32 s4, s14\ns_mov_b32 s5, s15\ns_and_b32 s{S_X+1}, s9, 0xffff\ns_mov_b32 s{S_X+2}, {2*MB}\ns_mov_b32 s{S_X+3}, 0x20000")
    mk(S_WQ,4,5,8*MB); mk(S_O,sWS,sWS+1,WS_SRD); mk(S_ON,sWS,sWS+1,WS_SRD)
    g.e(f"""
    s_add_u32 s{sSTB}, s{sWS}, {STAMP_OFF}
    s_addc_u32 s{sSTB+1}, s{sWS+1}, 0
    s_mov_b32 s{sSEGN}, 0
    s_lshl_b32 s{sWOFF}, s{sW}, 12
    s_add_u32 s{sWL}, s{sWOFF}, {WQBASE}
    s_lshl_b32 s{sT0}, s{sBG}, 19
    s_lshl_b32 s{sT1}, s{sW}, 15
    s_add_u32 s{sXB}, s{sT0}, s{sT1}
    s_add_u32 s{sXB+1}, s{sXB}, 0x20000
    s_add_u32 s{sXB+2}, s{sXB}, 0x40000
    s_add_u32 s{sXB+3}, s{sXB}, 0x60000
    s_lshl_b32 s{sT0}, s{sW}, 17
    s_lshl_b32 s{sT1}, s{sH}, 8
    s_add_u32 s{sWQB}, s{sT0}, s{sT1}
    """)
    if opt.get("stamps"):
        g.e(f"v_mov_b32 v2, s101\nv_mov_b32 v3, 0\ns_lshl_b32 s96, s2, 7\ns_add_u32 s96, s96, 120\nv_mov_b32 v1, s96\nglobal_store_dwordx2 v1, v[2:3], s[{sSTB}:{sSTB+1}]")
    stamp()
    dstamp(2,True)
    O4B=f"""
        s_and_b32 s{sKH}, s2, 3                      ; kq
        s_lshr_b32 s{sT0}, s2, 3
        s_and_b32 s{sCB}, s{sT0}, 7                  ; cb
        s_lshl_b32 s{sT0}, s{sBG}, 1
        s_add_u32 s{sPHO}, s{sT0}, s{sCB}
        s_and_b32 s{sPHO}, s{sPHO}, 7
        s_lshl_b32 s{sWOB}, s{sKH}, 21
        s_lshl_b32 s{sT0}, s{sW}, 15
        s_add_u32 s{sWOB}, s{sWOB}, s{sT0}
        s_lshl_b32 s{sT0}, s{sCB}, 8
        s_add_u32 s{sWOB}, s{sWOB}, s{sT0}
        s_lshl_b32 s{sT0}, s{sBG}, 2
        s_add_u32 s{sT0}, s{sT0}, s{sW}
        s_lshl_b32 s{sOOB}, s{sT0}, 19
        s_lshl_b32 s{sOUTB}, s{sT0}, 18
        s_lshl_b32 s{sT0}, s{sBR}, 23
        s_add_u32 s{sOOB}, s{sOOB}, s{sT0}
        s_lshl_b32 s{sT0}, s{sKH}, 15
        s_add_u32 s{sOOB}, s{sOOB}, s{sT0}
        s_lshl_b32 s{sT0}, s{sBR}, 11
        s_add_u32 s{sOUTB}, s{sOUTB}, s{sT0}
        s_lshl_b32 s{sT0}, s{sCB}, 8
        s_add_u32 s{sOUTB}, s{sOUTB}, s{sT0}
        s_lshl_b32 s{sT0}, s{sKH}, 6
        s_add_u32 s{sOUTB}, s{sOUTB}, s{sT0}
        s_mul_i32 s{sEXW}, s2, 98304
        s_mul_i32 s{sT0}, s{sW}, 24576
        s_add_u32 s{sEXW}, s{sEXW}, s{sT0}
        s_add_u32 s{sEXW}, s{sEXW}, {EXCH_OFF}
    """
    def late_setup():
        g.e(f"""
        s_mov_b32 s{sC}, {C_SCALE}
        s_mov_b32 s{sMASK}, 0xffff0000
        s_mov_b32 s{sMASK+1}, 0xffff0000
        s_lshl_b32 s{sT0}, s{sBG}, 24
        s_lshl_b32 s{sT1}, s{sH}, 17
        s_add_u32 s{sCUR}, s{sT0}, s{sT1}
        s_add_u32 s{sCUR}, s{sCUR}, s{sWOFF}
        s_add_u32 s{sNXT}, s{sCUR}, 0x400000
        s_lshl_b32 s{sT0}, s{sBR}, 23
        s_lshl_b32 s{sT1}, s{sBG}, 21
        s_add_u32 s{sOB}, s{sT0}, s{sT1}
        s_lshl_b32 s{sT0}, s{sW}, 17
        s_add_u32 s{sOB}, s{sOB}, s{sT0}
        s_lshl_b32 s{sT0}, s{sH}, 12
        s_add_u32 s{sOB}, s{sOB}, s{sT0}
        s_lshl_b32 s{sT0}, s{sKH}, 22
        s_lshl_b32 s{sT1}, s{sW}, 15
        s_add_u32 s{sWOB}, s{sT0}, s{sT1}
        s_lshl_b32 s{sT0}, s{sCB}, 8
        s_add_u32 s{sWOB}, s{sWOB}, s{sT0}
        s_lshl_b32 s{sT0}, s{sRB}, 3
        s_lshl_b32 s{sT1}, s{sW}, 1
        s_add_u32 s{sT0}, s{sT0}, s{sT1}            ; 8rb+2w
        s_lshl_b32 s{sOUTB}, s{sT0}, 16
        s_lshl_b32 s{sOOB}, s{sT0}, 17
        s_lshl_b32 s{sT1}, s{sBR}, 23
        s_add_u32 s{sOOB}, s{sOOB}, s{sT1}
        s_lshl_b32 s{sT1}, s{sKH}, 16
        s_add_u32 s{sOOB}, s{sOOB}, s{sT1}
        s_lshl_b32 s{sT1}, s{sBR}, 11
        s_add_u32 s{sOUTB}, s{sOUTB}, s{sT1}
        s_lshl_b32 s{sT1}, s{sCB}, 8
        s_add_u32 s{sOUTB}, s{sOUTB}, s{sT1}
        s_lshl_b32 s{sT1}, s{sKH}, 7
        s_add_u32 s{sOUTB}, s{sOUTB}, s{sT1}
        s_lshl_b32 s{sT1}, s{sW}, 13
        s_lshl_b32 s{sEXW}, s2, 15
        s_add_u32 s{sEXW}, s{sEXW}, s{sT1}
        s_add_u32 s{sEXW}, s{sEXW}, {EXCH_OFF}
        s_xor_b32 s{sEXR}, s2, 128
        s_lshl_b32 s{sEXR}, s{sEXR}, 15
        s_add_u32 s{sEXR}, s{sEXR}, s{sT1}
        s_add_u32 s{sEXR}, s{sEXR}, {EXCH_OFF}
        s_lshr_b32 s{sT0}, s2, {opt.get("krot_sh",3)}
        s_and_b32 s{sT0}, s{sT0}, 7
        s_lshl_b32 s{sKRO}, s{sT0}, 14
        {O4B if O4 else ""}
        s_mov_b32 s{sITEM}, 0
        s_mov_b32 s{sNONCE}, 0
        s_mov_b32 s{sPA}, 0
        s_mov_b32 s{sSIG}, 0
        s_cmp_lg_u32 s{sW}, 0
        s_cbranch_scc1 L_NONCE_DONE
        s_memrealtime s[96:97]
        s_waitcnt lgkmcnt(0)
        s_or_b32 s96, s96, 1
        v_mov_b32 v4, s96
        v_mov_b32 v5, 0
        v_accvgpr_write_b32 a164, v4
        v_accvgpr_write_b32 a165, v5
        s_mov_b64 exec, 1
        global_atomic_cmpswap a166, v5, a[164:165], s[{sDBG}:{sDBG+1}] sc0
        s_mov_b64 exec, -1
        L_NONCE_DONE:
        """)
    def flag_store(off):
        g.e(f"""
        s_lshl_b32 s{sT0}, s2, 7
        s_add_u32 s{sT0}, s{sT0}, {FLAG_OFF}
        s_add_u32 s{sT0}, s{sT0}, {off}
        v_mov_b32 v1, s{sT0}
        v_mov_b32 v3, s{sNONCE}
        s_mov_b64 exec, 1
        global_store_dword v1, v3, s[{sWS}:{sWS+1}] sc1
        s_mov_b64 exec, -1
        """)
    nsig=[0]
    def pending_signal():
        nsig[0]+=1; n=nsig[0]
        g.e(f"""
        s_cmp_eq_u32 s{sSIG}, 0
        s_cbranch_scc1 L_SG{n}
        s_cmp_lg_u32 s{sW}, 0
        s_cbranch_scc1 L_SGX{n}
        s_sub_u32 s{sCNT}, s{sSIG}, 1
        s_lshl_b32 s{sCNT}, s{sCNT}, 2
        """)
        flag_store(f"s{sCNT}")
        g.e(f"L_SGX{n}:\ns_mov_b32 s{sSIG}, 0\nL_SG{n}:")
    def kv_soff(dst,base,ch):
        if opt.get("krot"):
            return f"s_add_u32 s{dst}, s{sKRO}, {ch*16384}\ns_and_b32 s{dst}, s{dst}, 0x1ffff\ns_add_u32 s{dst}, s{dst}, s{base}"
        return f"s_add_u32 s{dst}, s{base}, {ch*16384}"
    def kv_group(cc):
        if cc<8: srdn,base,vo,ch=S_K,sCUR,[vKD+j for j in range(4)],cc
        elif cc<16: srdn,base,vo,ch=S_V,sCUR,[vVD+(j&1) for j in range(4)],cc-8
        else: srdn,base,vo,ch=S_KN,sNXT,[vKD+j for j in range(4)],cc-16
        return (f"s_add_u32 m0, s{sWOFF}, {(cc&7)*SLOT}\n"+kv_soff(sT1,base,ch),
                [f"buffer_load_dwordx4 v{vo[j]}, {sr(srdn)}, s{sT1} offen offset:{1024*j}{NT} lds" for j in range(4)])
    def wo_group(c,track,srdn=S_WO):
        g.e(f"s_add_u32 s{sT1}, s{sPHO}, {c}\ns_and_b32 s{sT1}, s{sT1}, 7\ns_lshl_b32 s{sT1}, s{sT1}, 17\ns_add_u32 m0, s{sWOFF}, {(c&7)*SLOT}\ns_add_u32 s{sT1}, s{sT1}, s{sWOB}")
        for j in range(4):
            t=f"buffer_load_dwordx4 v{vWOD+j}, {sr(srdn)}, s{sT1} offen offset:{1024*j}{NTO} lds"
            g.vmop(t,('wo',c)) if track else g.e(t)
    def kidx(s,dst,shift):
        g.e(f"s_add_u32 s{sT0}, s{sPHI}, {s}\ns_and_b32 s{sT0}, s{sT0}, {KM}\ns_or_b32 s{sT0}, s{sT0}, {0 if FULL else s&8}\ns_lshl_b32 s{dst}, s{sT0}, {shift}")
    def x_dma(s,i):
        slot=(s&1)*4+i
        g.e(f"s_add_u32 m0, s{sXL}, {slot*2048}\ns_add_u32 s{sT1}, s{sXB+i}, s{sKX}")
        for j in range(2): g.vmop(f"buffer_load_dwordx4 v{vXD+j}, {sr(S_X)}, s{sT1} offen offset:{1024*j}{NTX} lds",('x',s,i))
    def wq_dma(s):
        g.e(f"s_add_u32 m0, s{sWL}, {(s%3)*16384}\ns_add_u32 s{sT1}, s{sWQB}, s{sKW}")
        for j in range(4): g.vmop(f"buffer_load_dwordx4 v{vWD+j}, {sr(S_WQ)}, s{sT1} offen offset:{1024*j}{NTW} lds",('wq',s))
    def a_read(s,ks,dt,hf):
        r=64*(s&1)+(ks*8+dt)*4+2*hf
        g.lgop(f"ds_read_b64_tr_b16 a[{r}:{r+1}], v{vWR+dt} offset:{(s%3)*16384+ks*8192+hf*1024}",('A',s))
    def b_read(s,i,ks):
        n=s*4+i
        r=128+(n&1)*8+ks*4
        g.lgop(f"ds_read_b128 a[{r}:{r+3}], v{vXR+ks} offset:{((s&1)*4+i)*2048}",('B',s,i))
    tick(40)
    kidx(0,sKW,19); wq_dma(0)
    if opt.get("tlb"):
        late_setup()
        g.e(f"""
        v_lshlrev_b32 v1, 22, v0
        v_lshlrev_b32 v2, 20, v0
        v_mov_b32 v3, s{sOB}
        v_writelane_b32 v3, s{sOOB}, 1
        v_writelane_b32 v3, s{sEXW}, 2
        s_lshl_b32 s{sT0}, s2, 7
        s_add_u32 s{sT0}, s{sT0}, {FLAG_OFF}
        v_writelane_b32 v3, s{sT0}, 3
        s_mov_b32 m0, s{sWOFF}
        s_mov_b64 exec, 0xf
        """)
        g.vmop(f"buffer_load_dword v1, {sr(S_K)}, s{sCUR} offen{NT} lds",('tlb',))
        g.vmop(f"buffer_load_dword v1, {sr(S_V)}, s{sCUR} offen{NT} lds",('tlb',))
        g.vmop(f"buffer_load_dword v2, {sr(S_WO)}, s{sWOB} offen{NT} lds",('tlb',))
        g.vmop(f"buffer_load_dword v3, {sr(S_O)}, 0 offen{NT} lds",('tlb',))
        g.e("s_mov_b64 exec, 1")
        g.vmop(f"buffer_load_dword v1, {sr(S_OUT)}, s{sOUTB} offen{NT} lds",('tlb',))
        g.e("s_mov_b64 exec, -1")
    kidx(0,sKX,7)
    for i in range(4): x_dma(0,i)
    kidx(1,sKW,19); wq_dma(1)
    Q0=opt.get("q0fast",0)
    if not opt.get("qpro",0) and not Q0:
        kidx(1,sKX,7)
        for i in range(4): x_dma(1,i)
        kidx(2,sKW,19); wq_dma(2)
    tick(41)
    if not opt.get("tlb"): late_setup()
    tick(42)
    g.vmwait(('wq',0))
    tick(43)
    g.e("s_barrier")
    AR=[(ks,dt,hf) for ks in range(2) for dt in range(8) for hf in range(2)]
    for (ks,dt,hf) in AR: a_read(0,ks,dt,hf)
    g.vmwait(('x',0,0))
    tick(44)
    b_read(0,0,0); b_read(0,0,1)
    if opt.get("qpro",0) and not Q0:
        kidx(1,sKX,7)
        for i in range(4): x_dma(1,i)
        kidx(2,sKW,19); wq_dma(2)
    if Q0:
        g.e(f"s_add_u32 s{sT0}, s{sPHI}, 1\ns_and_b32 s{sT0}, s{sT0}, {KM}\ns_lshl_b32 s{sQ1}, s{sT0}, 7\ns_add_u32 s{sT0}, s{sPHI}, 2\ns_and_b32 s{sT0}, s{sT0}, {KM}\ns_lshl_b32 s{sQ2}, s{sT0}, 19\ns_add_u32 s{sQ2}, s{sQ2}, s{sWQB}")
    g.e(f"""s_add_u32 s{sT0}, s{sPHI}, 2
    s_and_b32 s{sT0}, s{sT0}, {KM}
    s_lshl_b32 s{sKX}, s{sT0}, 7
    s_add_u32 s{sT0}, s{sPHI}, 3
    s_and_b32 s{sT0}, s{sT0}, {KM}
    s_lshl_b32 s{sKW}, s{sT0}, 19""")
    for s in range(16):
        first=(Q0 and s==0)
        if s+1<16 and not first: g.vmwait(('wq',s+1))
        g.lgwait(('A',s))
        g.e("s_barrier")
        tick(s)
        G_=Gaps(64)
        dpos=opt.get("dpos",[2,7,12,17,23,28,34,39,45,50,56,61])
        if first:
            p=0
            for i in range(4):
                G_.put_post(p,S(f"s_add_u32 s{sQ3}, s{sXB+i}, s{sQ1}\ns_add_u32 m0, s{sXL}, {(4+i)*2048}"))
                for j in range(2):
                    G_.mem[p+1+j]=(lambda j=j,i=i: g.vmop(f"buffer_load_dwordx4 v{vXD+j}, {sr(S_X)}, s{sQ3} offen offset:{1024*j}{NTX} lds",('x',1,i)))
                p+=3
            G_.put_post(p,S(f"s_add_u32 m0, s{sWL}, {2*16384}"))
            for j in range(4):
                G_.mem[p+1+j]=(lambda j=j: g.vmop(f"buffer_load_dwordx4 v{vWD+j}, {sr(S_WQ)}, s{sQ2} offen offset:{1024*j}{NTW} lds",('wq',2)))
            dpos=[21,24,27,30,35,38,43,46,51,54,58,61]
        if s+3<16:
            if (s+3)==8 and not FULL: G_.put_post(0,S(f"s_add_u32 s{sWQB}, s{sWQB}, {8<<19}"))
            G_.put_post(dpos[0]-2,S(f"s_add_u32 s{sWT}, s{sWQB}, s{sKW}"))
            G_.put_post(dpos[0]-1,S(f"s_add_u32 m0, s{sWL}, {((s+3)%3)*16384}"))
            for j in range(4):
                G_.mem[dpos[j]]=(lambda j=j,s=s: g.vmop(f"buffer_load_dwordx4 v{vWD+j}, {sr(S_WQ)}, s{sWT} offen offset:{1024*j}{NTW} lds",('wq',s+3)))
            G_.put_post(dpos[3],S(f"s_add_u32 s{sKW}, s{sKW}, {1<<19}"))
            G_.put_post(dpos[3]+1,S(f"s_and_b32 s{sKW}, s{sKW}, {KM<<19}"))
        if s+2<16:
            for i in range(4):
                p=dpos[4+2*i]
                if (s+2)==8 and not FULL: G_.put_post(p-3,S(f"s_add_u32 s{sXB+i}, s{sXB+i}, 1024"))
                G_.put_post(p-2,S(f"s_add_u32 s{sXT}, s{sXB+i}, s{sKX}"))
                G_.put_post(p-1,S(f"s_add_u32 m0, s{sXL}, {((s&1)*4+i)*2048}"))
                for j in range(2):
                    G_.mem[dpos[4+2*i+j]]=(lambda j=j,s=s,i=i: g.vmop(f"buffer_load_dwordx4 v{vXD+j}, {sr(S_X)}, s{sXT} offen offset:{1024*j}{NTX} lds",('x',s+2,i)))
            G_.put_post(dpos[11],S(f"s_add_u32 s{sKX}, s{sKX}, 128"))
            G_.put_post(dpos[11]+1,S(f"s_and_b32 s{sKX}, s{sKX}, {KM<<7}"))
        if s in KPRE:
            c=KPRE[s]
            for j,p in enumerate(opt.get("kpos",[19,30,41,52])):
                G_.put_post(p-2,S(kv_soff(sT1,sCUR,c)))
                G_.put_post(p-1,S(f"s_add_u32 m0, s{sWOFF}, {c*SLOT}"))
                assert G_.mem[p] is None
                G_.mem[p]=(lambda j=j,c=c: g.vmop(f"buffer_load_dwordx4 v{vKD+j}, {sr(S_K)}, s{sT1} offen offset:{1024*j}{NT} lds",('kv',c)))
        if s in KREG:
            c=KREG[s]
            for j,p in enumerate(opt.get("kpos",[19,30,41,52])):
                if j==0: G_.put_post(p-2,S(f"s_add_u32 s{sKRG}, s{sCUR}, {c*16384}"))
                assert G_.mem[p] is None
                r=OACC+16*KRI[c]+4*j
                G_.mem[p]=(lambda j=j,r=r: g.e(f"buffer_load_dwordx4 {ar(r)}, v{vKD+j}, {sr(S_K)}, s{sKRG} offen offset:{1024*j}{NT}"))
        WT={int(k):v for k,v in opt.get("wotouch",{}).items()}
        if s in WT:
            n_=WT[s]; p=20
            assert G_.mem[p] is None
            G_.put_post(p-2,S(f"s_add_u32 s{sT1}, s{sTCH}, {n_*8192}"))
            G_.put_post(p-1,S(f"s_add_u32 m0, s{sWOFF}, {2*SLOT}"))
            G_.mem[p]=(lambda: g.vmop(f"buffer_load_dword v{vTCH}, {sr(S_WO)}, s{sT1} offen lds",('tch',)))
        for i in range(4):
            nxt=(s,i+1) if i<3 else ((s+1,0) if s+1<16 else None)
            if nxt:
                q=G_.put_mem(16*i+opt.get("bpos",4),lambda nxt=nxt: b_read(nxt[0],nxt[1],0),lo=16*i,hi=16*i+16)
                G_.put_pre(q,lambda nxt=nxt: g.vmwait(('x',)+nxt))
                G_.put_mem(q+1,lambda nxt=nxt: b_read(nxt[0],nxt[1],1),lo=q+1,hi=16*i+16)
        if first:
            G_.put_pre(31,lambda: (g.vmwait(('wq',1)), g.e("s_barrier")))
            for n_,(ks,dt,hf) in enumerate(AR):
                G_.put_mem(32+n_*28/32.0,lambda ks=ks,dt=dt,hf=hf,s=s: a_read(s+1,ks,dt,hf),lo=32,hi=64)
        elif s+1<16:
            aend=opt.get("aend",56)
            for n_,(ks,dt,hf) in enumerate(AR):
                G_.put_mem(n_*aend/32.0,lambda ks=ks,dt=dt,hf=hf,s=s: a_read(s+1,ks,dt,hf),hi=62)
        M=[]
        for i in range(4):
            n=s*4+i
            for ks in range(2):
                for dt in range(8):
                    d=ACC+(i*8+dt)*4
                    txt=f"v_mfma_f32_16x16x32_bf16 {vr(d)}, {ar(64*(s&1)+(ks*8+dt)*4)}, {ar(128+(n&1)*8+ks*4)}, {'0' if (s==0 and ks==0) else vr(d)}"
                    if ks==0 and dt==0: M.append(lambda txt=txt,s=s,i=i: (g.lgwait(('B',s,i)), g.e(txt)))
                    else: M.append(txt)
        G_.emit(g,M)
    tick(16)
    if KREG: g.e("s_waitcnt vmcnt(0)")
    g.e("s_barrier")
    if KREG:
        g.e(f"v_add_u32 v1, s{sWOFF}, v{vOS}\nv_add_u32 v3, 0x10000, v1")
        for c in sorted(KREG.values()):
            for j in range(4):
                r=OACC+16*KRI[c]+4*j
                off=c*SLOT+j*1024
                if off<65536: g.e(f"ds_write_b128 v1, {ar(r)} offset:{off}")
                else: g.e(f"ds_write_b128 v3, {ar(r)} offset:{off-65536}")
            if c==3: pass
    rest=[cc for cc in range(LA) if cc not in KPRE.values() and cc not in KREG.values()]
    late=rest[-opt.get("late",0):] if opt.get("late",0) else []
    for cc in rest:
        if cc in late: continue
        h,dm=kv_group(cc); g.e(h)
        for l in dm: g.e(l)
    for i in range(4):
        for t in range(4):
            bx=ACC+(i*8+2*t)*4; by=bx+4; F=QF+16*i+4*t
            g.e(f"""
            v_cvt_pk_bf16_f32 v56, v{bx}, v{bx+1}
            v_cvt_pk_bf16_f32 v57, v{bx+2}, v{bx+3}
            v_cvt_pk_bf16_f32 v58, v{by}, v{by+1}
            v_cvt_pk_bf16_f32 v59, v{by+2}, v{by+3}
            v_cndmask_b32 v{F}, v56, v58, s[{sMASK}:{sMASK+1}]
            v_cndmask_b32 v{F+1}, v57, v59, s[{sMASK}:{sMASK+1}]
            v_cndmask_b32 v{F+2}, v58, v56, s[{sMASK}:{sMASK+1}]
            v_cndmask_b32 v{F+3}, v59, v57, s[{sMASK}:{sMASK+1}]
            """)
    for cc in late:
        h,dm=kv_group(cc); g.e(h)
        for l in dm: g.e(l)
    if KREG: g.e("s_waitcnt lgkmcnt(0)")
    tick(17); tick_store(); stamp(); dstamp(3)
    g.label("L_ITEM")
    g.vm=[]; g.lg=[]
    tick(40)
    g.e(f"s_cmp_lt_u32 s{sITEM}, 3\ns_cselect_b32 s{S_KN+2}, {64*MB}, 0\ns_cselect_b32 s{sLAST}, 0, 1")
    for n in range(4):
        g.e(f"s_cmp_eq_u32 s{sITEM}, {n}\ns_cbranch_scc0 L_QC{n}")
        for r in range(16): g.e(f"v_accvgpr_write_b32 a{QCUR+r}, v{QF+16*n+r}")
        g.label(f"L_QC{n}")
    MX=4
    def pcalc(J):
        b=ACC+8*J
        L=[f"v_fma_f32 v{TA+r}, v{b+r}, s{sC}, -v4" for r in range(8)]
        L+=[f"v_exp_f32 v{TA+r}, v{TA+r}" for r in range(8)]
        L+=[f"v_cvt_pk_bf16_f32 v{ACC+4*J+r}, v{TA+2*r}, v{TA+2*r+1}" for r in range(4)]
        return L
    def reads(c):
        st=c&1; sl=c&7; hi=sl>=4; so=(sl&3)*SLOT; R=[]
        if c<8:
            for kt in range(4):
                for t in range(4):
                    R.append(lambda kt=kt,t=t: g.lgop(f"ds_read_b128 {ar(64*st+(kt*4+t)*4)}, v{vKR+(4 if hi else 0)+t} offset:{so+kt*4096}",('F',c,kt)))
        else:
            for js in range(2):
                for dt in range(8):
                    for hf in range(2):
                        r=64*st+(js*8+dt)*4+2*hf
                        R.append(lambda r=r,js=js,dt=dt,hf=hf: g.lgop(f"ds_read_b64_tr_b16 a[{r}:{r+1}], v{vVR+(8 if hi else 0)+dt} offset:{so+js*8192+hf*4096}",('F',c,js*8+dt)))
        return R
    g.e(f"s_waitcnt vmcnt({4*(LA-1)})\ns_barrier")
    for f in reads(0): f()
    for c in range(16):
        cc=c+LA
        if c<15: g.e(f"s_waitcnt vmcnt({4*(LA-2)})")
        if opt.get("thra") is not None and c<15:
            if c<opt.get("thra_skip_all",0):
                if opt.get("thra_alt") is not None: g.e(f"s_waitcnt vmcnt({opt['thra_alt']})")
            elif c<opt.get("thra_skip",0):
                g.e(f"s_cmp_eq_u32 s{sITEM}, 0\ns_cbranch_scc1 L_TS{c}\ns_waitcnt vmcnt({opt['thra']})\nL_TS{c}:")
            else: g.e(f"s_waitcnt vmcnt({opt['thra']})")
        if opt.get("thr") is not None and c<15:
            g.e(f"s_bitcmp1_b32 s2, 0\ns_cbranch_scc{opt.get('thr_par',1)} L_TH{c}\ns_waitcnt vmcnt({opt['thr']})\nL_TH{c}:")
        g.e("s_barrier")
        tick(c)
        dm=[]
        if cc<16 or cc>=16+NWOP:
            h,dl=kv_group(cc); g.e(h); dm=[(lambda l=l: g.e(l)) for l in dl]
        else:
            k=cc-16
            g.e(f"s_cmp_eq_u32 s{sLAST}, 1\ns_cbranch_scc1 L_HO{k}")
            h,dl=kv_group(cc); g.e(h)
            for l in dl: g.e(l)
            g.e(f"s_branch L_HJ{k}")
            g.label(f"L_HO{k}")
            wo_group(k,False)
            g.label(f"L_HJ{k}")
        R=reads(c+1) if c<15 else []
        st=c&1; M=[]; VL=[]
        if c<8:
            for kt in range(4):
                T=4*c+kt; d=ACC+4*T
                for t in range(4):
                    txt=f"v_mfma_f32_16x16x32_bf16 {vr(d)}, {ar(64*st+(kt*4+t)*4)}, {ar(QCUR+4*t)}, {'0' if t==0 else vr(d)}"
                    M.append((lambda txt=txt,kt=kt,c=c: (g.lgwait(('F',c,kt)), g.e(txt))) if t==0 else txt)
            if c>0:
                for kt in range(4):
                    b=ACC+16*(c-1)+4*kt
                    if c==1: VL+=[f"v_max3_f32 v{MX+kt}, v{b}, v{b+1}, v{b+2}",f"v_max_f32 v{MX+kt}, v{MX+kt}, v{b+3}"]
                    else: VL+=[f"v_max3_f32 v{MX+kt}, v{MX+kt}, v{b}, v{b+1}",f"v_max3_f32 v{MX+kt}, v{MX+kt}, v{b+2}, v{b+3}"]
        else:
            cv=c-8
            for js in range(2):
                J=2*cv+js; P=ACC+4*J
                for dt in range(8):
                    d=OA+4*dt
                    txt=f"v_mfma_f32_16x16x32_bf16 {ar(d)}, {ar(64*st+(js*8+dt)*4)}, {vr(P)}, {'0' if J==0 else ar(d)}"
                    M.append(lambda txt=txt,c=c,k=js*8+dt: (g.lgwait(('F',c,k)), g.e(txt)))
                M.append(f"v_mfma_f32_16x16x32_bf16 {ar(LAcc)}, {ar(ONES)}, {vr(P)}, {'0' if J==0 else ar(LAcc)}")
            if cv<7:
                for J in (2*cv+2,2*cv+3): VL+=pcalc(J)
        if c<7: pat=['tv','tv','tt','d']*4
        elif c==7: pat=['ttv','tt','ttv','dtt']*4
        else: pat=['ttv','ttv','ttv','dvvvv']*4+['ttttvv','ttttvv']
        if opt.get("dfront"):
            nd=opt["dfront"]
            pat=[p.replace('d','') for p in pat]
            for q in range(4): pat[min(q*nd,len(pat)-1)]='d'+pat[min(q*nd,len(pat)-1)]
        ti=vi=di=0
        for m,p in zip(M,pat):
            m() if callable(m) else g.e(m)
            for ch in p:
                if ch=='t' and ti<len(R): R[ti](); ti+=1
                elif ch=='v' and vi<len(VL): g.e(VL[vi]); vi+=1
                elif ch=='d' and di<len(dm): dm[di](); di+=1
        while ti<len(R): R[ti](); ti+=1
        while di<len(dm): dm[di](); di+=1
        while vi<len(VL): g.e(VL[vi]); vi+=1
        if c==7:
            g.e("s_nop 7")
            for kt in range(4):
                b=ACC+16*7+4*kt
                g.e(f"v_max3_f32 v{MX+kt}, v{MX+kt}, v{b}, v{b+1}\nv_max3_f32 v{MX+kt}, v{MX+kt}, v{b+2}, v{b+3}")
            g.e(f"""
            v_max3_f32 v4, v4, v5, v6
            v_max_f32 v4, v4, v7
            v_mov_b32 v5, v4
            s_nop 1
            v_permlane16_swap_b32 v4, v5
            v_max_f32 v4, v4, v5
            v_mov_b32 v5, v4
            s_nop 1
            v_permlane32_swap_b32 v4, v5
            v_max_f32 v4, v4, v5
            v_mul_f32 v4, s{sC}, v4
            """)
            for J in (0,1):
                for l in pcalc(J): g.e(l)
    tick(16)
    g.e(f"s_nop 7\nv_accvgpr_read_b32 v4, a{LAcc}\ns_nop 0\nv_rcp_f32 v4, v4")
    if opt.get("odefer"):
        for r in range(32): g.e(f"v_accvgpr_read_b32 v{128+r}, a{OA+r}")
        for r in range(32): g.e(f"v_mul_f32 v{128+r}, v{128+r}, v4")
        for n in range(4):
            g.e(f"s_cmp_eq_u32 s{sITEM}, {n}\ns_cbranch_scc0 L_OP{n}")
            for r in range(16): g.e(f"v_cvt_pk_bf16_f32 v{QF+16*n+r}, v{128+2*r}, v{129+2*r}")
            g.label(f"L_OP{n}")
        g.e(f"s_cmp_eq_u32 s{sLAST}, 1\ns_cbranch_scc0 L_OSKIP")
        g.e(f"s_sub_u32 s{sT1}, s{sOB}, {3*0x80000}")
        for n in range(4):
            for t in range(4):
                g.e(f"buffer_store_dwordx4 {vr(QF+16*n+4*t)}, v{vOS}, {sr(S_O)}, s{sT1} offen offset:{t*1024}{STO}")
            if n<3: g.e(f"s_add_u32 s{sT1}, s{sT1}, 0x80000")
        g.label("L_OSKIP")
    else:
        for t in range(4):
            tb=128+16*t
            for r in range(8): g.e(f"v_accvgpr_read_b32 v{tb+r}, a{OA+8*t+r}")
            for r in range(8): g.e(f"v_mul_f32 v{tb+r}, v{tb+r}, v4")
            for r in range(4): g.e(f"v_cvt_pk_bf16_f32 v{tb+8+r}, v{tb+2*r}, v{tb+2*r+1}")
            if not opt.get("no_ostore"): g.e(f"buffer_store_dwordx4 {vr(tb+8)}, v{vOS}, {sr(S_O)}, s{sOB} offen offset:{t*1024}{STO}")
    g.e(f"""
    s_add_u32 s{sCUR}, s{sCUR}, 0x400000
    s_add_u32 s{sNXT}, s{sNXT}, 0x400000
    s_add_u32 s{sOB}, s{sOB}, {0 if opt.get("osame") else 0x80000}
    s_cmp_eq_u32 s{sLAST}, 1
    s_cbranch_scc0 L_A_DONE
    s_waitcnt vmcnt(0)
    s_barrier
    s_cmp_lg_u32 s{sW}, 0
    s_cbranch_scc1 L_A_DONE
    v_accvgpr_read_b32 v1, a166
    v_accvgpr_read_b32 v3, a164
    s_nop 0
    v_readfirstlane_b32 s{sT0}, v1
    v_readfirstlane_b32 s{sT1}, v3
    s_nop 3
    s_cmp_eq_u32 s{sT0}, 0
    s_cselect_b32 s{sNONCE}, s{sT1}, s{sT0}
    """)
    flag_store(0)
    g.e(f"L_A_DONE:\ns_add_u32 s{sITEM}, s{sITEM}, 1")
    tick(17); tick_store(); stamp()
    g.e(f"s_cmp_lt_u32 s{sITEM}, 4\ns_cbranch_scc1 L_ITEM")
    def xst(i):
        if opt.get("xstamps"):
            g.e(f"s_mov_b32 s101, s{sSEGN}\ns_mov_b32 s{sSEGN}, {i}"); stamp(); g.e(f"s_mov_b32 s{sSEGN}, s101")
    def phase_o4():
        dstamp(4)
        g.vm=[]; g.lg=[]
        g.e(f"s_lshl_b32 s{sT0}, s{sKH}, 6")
        for dt in range(16): g.e(f"v_xor_b32 v{vWOR+dt}, s{sT0}, v{vVR+dt}")
        g.e(f"v_add_u32 v{vOS2}, 0x40000, v{vOS}\nv_add_u32 v{vOS3}, 0x60000, v{vOS}")
        g.e(f"""
        s_cmp_lg_u32 s{sW}, 0
        s_cbranch_scc1 L_O_WAITB
        v_mov_b32 v1, {128*K1}
        v_mov_b32 v3, s{sNONCE}
        ds_write_b32 v1, v3
        s_mov_b32 s{sCNT}, 0
        s_mov_b64 exec, 0xff
        L_O_POLL:
        global_load_dword v3, v{vPA}, s[{sWS}:{sWS+1}] sc1
        s_add_u32 s{sCNT}, s{sCNT}, 1
        s_waitcnt vmcnt(0)
        v_cmp_eq_u32 vcc, s{sNONCE}, v3
        s_cmp_gt_u32 s{sCNT}, 0x40000
        s_cbranch_scc1 L_O_POLLX
        s_nop 1
        s_cmp_lg_u32 vcc_lo, 0xff
        s_cbranch_scc1 L_O_POLL
        L_O_POLLX:
        s_mov_b64 exec, -1
        s_waitcnt lgkmcnt(0)
        L_O_WAITB:
        s_barrier
        v_mov_b32 v1, {128*K1}
        ds_read_b32 v3, v1
        s_waitcnt lgkmcnt(0)
        v_readfirstlane_b32 s{sNONCE}, v3
        """)
        dstamp(5)
        if opt.get("stamps"):
            g.e(f"s_mov_b32 s101, s{sSEGN}\ns_mov_b32 s{sSEGN}, 9"); stamp(); g.e(f"s_mov_b32 s{sSEGN}, s101")
        OL=3; WL=5; OF=128; NS=16; OA4=128
        vQ=[vOS,vOS1,vOS2,vOS3]
        def cid(j): return j&8
        def o_txt(s_,k):
            rt,js=k>>1,k&1
            r=OF+(s_&3)*32+(rt*2+js)*4
            return f"buffer_load_dwordx4 {vr(r)}, v{vQ[rt]}, {sr(S_O)}, s{sKO} offen offset:{js*1024}{NTOO}"
        for s_ in range(OL):
            g.e(f"s_add_u32 s{sT0}, s{sPHO}, {s_}\ns_and_b32 s{sT0}, s{sT0}, 7\ns_lshl_b32 s{sT0}, s{sT0}, 11\ns_add_u32 s{sKO}, s{sT0}, s{sOOB}")
            for k in range(8): g.e(o_txt(s_,k))
        RD=[(js,nt,hf) for js in range(2) for nt in range(8) for hf in range(2)]
        def rd(u,js,nt,hf):
            r=64*(u&1)+(js*8+nt)*4+2*hf; sl=u&7
            g.lgop(f"ds_read_b64_tr_b16 a[{r}:{r+1}], v{vWOR+(8 if sl>=4 else 0)+nt} offset:{(sl&3)*SLOT+js*8192+hf*4096}",('A',u,js,nt))
        for (js,nt,hf) in RD: rd(0,js,nt,hf)
        g.e(f"""s_add_u32 s{sT0}, s{sPHO}, {WL}
        s_and_b32 s{sT0}, s{sT0}, 7
        s_lshl_b32 s{sWLO}, s{sT0}, 17
        s_add_u32 s{sT0}, s{sPHO}, {OL}
        s_and_b32 s{sT0}, s{sT0}, 7
        s_lshl_b32 s{sOLO}, s{sT0}, 11""")
        for u in range(NS):
            yv=8*len([j for j in range(u+1,min(u+OL,NS))])
            n=min(12,yv)
            if u+1<NS and u+1>=NWOP:
                yd=4*len([j for j in range(u+2,min(u+WL,NS))])
                n=min(n,yd)
            g.e(f"s_waitcnt vmcnt({n})")
            g.e("s_barrier")
            tick(u)
            G_=Gaps(64)
            if u+WL<NS:
                if u+WL==8: G_.put_post(0,S(f"s_add_u32 s{sWOB}, s{sWOB}, {8<<17}"))
                G_.put_post(1,S(f"s_add_u32 s{sKWO}, s{sWLO}, s{sWOB}"))
                G_.put_post(2,S(f"s_add_u32 m0, s{sWOFF}, {((u+WL)&7)*SLOT}"))
                G_.put_post(20,S(f"s_add_u32 s{sWLO}, s{sWLO}, {1<<17}"))
                G_.put_post(21,S(f"s_and_b32 s{sWLO}, s{sWLO}, {7<<17}"))
                for j,p in enumerate([3,19,35,51]):
                    G_.mem[p]=(lambda j=j: g.e(f"buffer_load_dwordx4 v{vWOD+j}, {sr(S_WO)}, s{sKWO} offen offset:{1024*j}{NTO} lds"))
            if u+OL<NS:
                if u+OL==8: G_.put_post(4,S(f"s_add_u32 s{sOOB}, s{sOOB}, {8<<11}"))
                G_.put_post(5,S(f"s_add_u32 s{sKO}, s{sOLO}, s{sOOB}"))
                G_.put_post(61,S(f"s_add_u32 s{sOLO}, s{sOLO}, {1<<11}"))
                G_.put_post(62,S(f"s_and_b32 s{sOLO}, s{sOLO}, {7<<11}"))
                for k,p in enumerate([7,13,23,29,39,45,55,60]):
                    G_.mem[p]=(lambda k=k,u=u: g.e(o_txt(u+OL,k)))
            if u+1<NS:
                for n_,(js,nt,hf) in enumerate(RD):
                    G_.put_mem(n_*58/32.0,lambda js=js,nt=nt,hf=hf,u=u: rd(u+1,js,nt,hf),hi=62)
            M=[]
            for js in range(2):
                for nt in range(8):
                    for rt in range(4):
                        d=OA4+(rt*8+nt)*4
                        txt=f"v_mfma_f32_16x16x32_bf16 {ar(d)}, {ar(64*(u&1)+(js*8+nt)*4)}, {vr(OF+(u&3)*32+(rt*2+js)*4)}, {'0' if (u==0 and js==0) else ar(d)}"
                        if rt==0: M.append(lambda txt=txt,u=u,js=js,nt=nt: (g.lgwait(('A',u,js,nt)), g.e(txt)))
                        else: M.append(txt)
            G_.emit(g,M)
        tick(16); tick(17); tick_store(); stamp(); dstamp(6)
        g.e("s_nop 7")
        for d in range(1,4):
            for hb in range(2):
                g.e(f"s_add_u32 s{sT1}, s{sEXW}, {(d-1)*8192+hb*4096}")
                for rr in range(2):
                    rt=2*hb+rr
                    for m in range(2):
                        g.e(f"buffer_store_dwordx4 {ar(OA4+(rt*8+2*d+m)*4)}, v{vOS}, {sr(S_O)}, s{sT1} offen offset:{(rr*2+m)*1024} sc1")
        for rt in range(4):
            for m in range(2):
                for q in range(4): g.e(f"v_accvgpr_read_b32 v{224+(rt*2+m)*4+q}, a{OA4+(rt*8+m)*4+q}")
        g.e(f"""
        v_lshrrev_b32 v3, 4, v0
        v_and_b32 v4, 15, v0
        v_lshlrev_b32 v5, 3, v3
        v_lshl_add_u32 v52, v4, 12, v5
        s_lshl_b32 s{sCNT}, s{sW}, 2
        s_add_u32 s{sCNT}, s{sCNT}, 16
        v_add_u32 v5, 1, v0
        v_xor_b32 v5, s2, v5
        v_lshlrev_b32 v5, 7, v5
        s_add_u32 s{sT0}, s{sCNT}, {FLAG_OFF}
        v_add_u32 v53, s{sT0}, v5
        s_waitcnt vmcnt(0)
        """)
        xst(11)
        flag_store(f"s{sCNT}")
        g.e(f"""
        s_mov_b32 s{sCNT}, 0
        s_mov_b64 exec, 7
        L_X_POLL:
        global_load_dword v3, v53, s[{sWS}:{sWS+1}] sc1
        s_add_u32 s{sCNT}, s{sCNT}, 1
        s_waitcnt vmcnt(0)
        v_cmp_eq_u32 vcc, s{sNONCE}, v3
        s_cmp_gt_u32 s{sCNT}, 0x40000
        s_cbranch_scc1 L_X_POLLX
        s_nop 1
        s_cmp_lg_u32 vcc_lo, 7
        s_cbranch_scc1 L_X_POLL
        L_X_POLLX:
        s_mov_b64 exec, -1
        """)
        xst(12)
        for d in range(1,4):
            g.e(f"s_xor_b32 s{sT0}, s2, {d}\ns_mul_i32 s{sT0}, s{sT0}, 98304\ns_mul_i32 s{sT1}, s{sW}, 24576\ns_add_u32 s{sT0}, s{sT0}, s{sT1}\ns_add_u32 s{sEXR}, s{sT0}, {EXCH_OFF+(d-1)*8192}")
            for hb in range(2):
                if hb==1: g.e(f"s_add_u32 s{sEXR}, s{sEXR}, 4096")
                for k in range(4):
                    g.e(f"buffer_load_dwordx4 {vr(128+((d-1)*8+hb*4+k)*4)}, v{vOS}, {sr(S_O)}, s{sEXR} offen offset:{k*1024} sc1")
        g.e("s_waitcnt vmcnt(0)")
        xst(13)
        for rt in range(4):
            if rt>0: g.e(f"s_add_u32 s{sOUTB}, s{sOUTB}, 0x10000")
            for m in range(2):
                dd=224+(rt*2+m)*4
                for d in range(3):
                    r=128+(d*8+rt*2+m)*4
                    for q in range(4): g.e(f"v_add_f32 v{dd+q}, v{dd+q}, v{r+q}")
                g.e(f"""v_cvt_pk_bf16_f32 v{dd}, v{dd}, v{dd+1}
                v_cvt_pk_bf16_f32 v{dd+1}, v{dd+2}, v{dd+3}
                buffer_store_dwordx2 v[{dd}:{dd+1}], v52, {sr(S_OUT)}, s{sOUTB} offen offset:{m*32}{opt.get("st_out","")}""")
    def phase_o2():
        dstamp(4)
        g.vm=[]; g.lg=[]
        tick(40)
        g.e(f"s_lshl_b32 s{sT0}, s{sKH}, 7")
        for dt in range(16): g.e(f"v_xor_b32 v{vWOR+dt}, s{sT0}, v{vVR+dt}")
        g.e("v_mov_b32 v1, 0")
        for r in range(64): g.e(f"v_accvgpr_write_b32 a{OACC+r}, v1")
        g.e(f"""
        s_cmp_lg_u32 s{sW}, 0
        s_cbranch_scc1 L_O_WAITB
        v_mov_b32 v1, {128*K1}
        v_mov_b32 v3, s{sNONCE}
        ds_write_b32 v1, v3
        s_mov_b32 s{sCNT}, 0
        s_mov_b64 exec, 0xffff
        L_O_POLL:
        global_load_dword v3, v{vPA}, s[{sWS}:{sWS+1}] sc1
        s_add_u32 s{sCNT}, s{sCNT}, 1
        s_waitcnt vmcnt(0)
        v_cmp_eq_u32 vcc, s{sNONCE}, v3
        s_cmp_gt_u32 s{sCNT}, 0x40000
        s_cbranch_scc1 L_O_POLLX
        s_nop 1
        s_cmp_lg_u32 vcc_lo, 0xffff
        s_cbranch_scc1 L_O_POLL
        L_O_POLLX:
        s_mov_b64 exec, -1
        s_waitcnt lgkmcnt(0)
        L_O_WAITB:
        s_barrier
        v_mov_b32 v1, {128*K1}
        ds_read_b32 v3, v1
        s_waitcnt lgkmcnt(0)
        v_readfirstlane_b32 s{sNONCE}, v3
        """)
        tick(41); dstamp(5)
        if opt.get("stamps"):
            g.e(f"s_mov_b32 s101, s{sSEGN}\ns_mov_b32 s{sSEGN}, 9"); stamp(); g.e(f"s_mov_b32 s{sSEGN}, s101")
        OL=3; WL=NWOP; OF=128; NCH=32
        def o_1(st,k,srdn,tag=None):
            rt,js=k>>1,k&1
            r=OF+st*16+(rt*2+js)*4
            g.e(f"buffer_load_dwordx4 {vr(r)}, v{vOS if rt==0 else vOS1}, {sr(srdn)}, s{sKO} offen offset:{js*1024}{NTOO}")
        for c in range(OL):
            g.e(f"s_add_u32 s{sT0}, s{sPHO}, {c}\ns_and_b32 s{sT0}, s{sT0}, 7\ns_lshl_b32 s{sT0}, s{sT0}, 11\ns_add_u32 s{sKO}, s{sT0}, s{sOOB}")
            for k in range(4): o_1(c,k,S_O)
        RD=[(js,nt,hf) for js in range(2) for nt in range(8) for hf in range(2)]
        def a_read2(u,js,nt,hf):
            r=64*(u&1)+(js*8+nt)*4+2*hf
            sl=u&7
            g.lgop(f"ds_read_b64_tr_b16 a[{r}:{r+1}], v{vWOR+(8 if sl>=4 else 0)+nt} offset:{(sl&3)*SLOT+js*8192+hf*4096}",('A',u&1,js,nt))
        for (js,nt,hf) in RD: a_read2(0,js,nt,hf)
        g.e(f"""s_add_u32 s{sT0}, s{sPHO}, {WL}
        s_and_b32 s{sT0}, s{sT0}, 7
        s_lshl_b32 s{sWLO}, s{sT0}, 17
        s_add_u32 s{sT0}, s{sPHO}, {OL}
        s_and_b32 s{sT0}, s{sT0}, 7
        s_lshl_b32 s{sOLO}, s{sT0}, 11
        s_mov_b32 s{sJ}, 0""")
        def body(u):
            g.e(f"s_waitcnt vmcnt(8)")
            g.e("s_barrier")
            if opt.get("steps"): g.e(f"s_memtime s[96:97]\ns_waitcnt lgkmcnt(0)\ns_sub_u32 s99, s96, s98\ns_mov_b32 s98, s96\nv_readlane_b32 s97, v62, {u}\ns_nop 3\ns_add_u32 s97, s97, s99\ns_nop 0\nv_writelane_b32 v62, s97, {u}"); g.lg=[]
            G_=Gaps(32)
            vp=opt.get("o_vpos",[3,7,11,15,19,23,27,31])
            if u+WL==8:
                G_.put_post(0,S(f"s_add_u32 s{sWOB}, s{sWOB}, {8<<17}\ns_cmp_lt_u32 s{sJ}, {NCH-8}\ns_cselect_b32 s{S_WON+2}, {8*MB}, 0"))
            G_.put_post(1,S(f"s_add_u32 s{sKWO}, s{sWLO}, s{sWOB}"))
            G_.put_post(2,S(f"s_add_u32 m0, s{sWOFF}, {((u+WL)&7)*SLOT}"))
            if u+OL==8:
                G_.put_post(4,S(f"s_add_u32 s{sOOB}, s{sOOB}, {8<<11}\ns_cmp_lt_u32 s{sJ}, {NCH-8}\ns_cselect_b32 s{S_ON+2}, {WS_SRD}, 0"))
            G_.put_post(5,S(f"s_add_u32 s{sKO}, s{sOLO}, s{sOOB}"))
            G_.put_post(8,S(f"s_add_u32 s{sWLO}, s{sWLO}, {1<<17}"))
            G_.put_post(9,S(f"s_and_b32 s{sWLO}, s{sWLO}, {7<<17}"))
            G_.put_post(12,S(f"s_add_u32 s{sOLO}, s{sOLO}, {1<<11}"))
            G_.put_post(13,S(f"s_and_b32 s{sOLO}, s{sOLO}, {7<<11}"))
            for j in range(4):
                G_.mem[vp[2*j]]=(lambda j=j: g.e(f"buffer_load_dwordx4 v{vWOD+j}, {sr(S_WON)}, s{sKWO} offen offset:{1024*j}{NTO} lds"))
                G_.mem[vp[2*j+1]]=(lambda j=j,u=u: o_1((u+OL)&3,j,S_ON))
            rend=opt.get("o_rend",30)
            for n_,(js,nt,hf) in enumerate(RD):
                G_.put_mem(n_*rend/32.0,lambda js=js,nt=nt,hf=hf,u=u: a_read2(u+1,js,nt,hf))
            M=[]
            for js in range(2):
                for nt in range(8):
                    for rt in range(2):
                        d=OACC+(rt*8+nt)*4
                        txt=f"v_mfma_f32_16x16x32_bf16 {ar(d)}, {ar(64*(u&1)+(js*8+nt)*4)}, {vr(OF+(u&3)*16+(rt*2+js)*4)}, {ar(d)}"
                        if rt==0: M.append(lambda txt=txt,u=u,js=js,nt=nt: (g.lgwait(('A',u&1,js,nt)), g.e(txt)))
                        else: M.append(txt)
            G_.emit(g,M)
        save=list(g.L)
        for u in range(8): body(u)
        lg_end=list(g.lg)
        g.L=save; g.lg=list(lg_end)
        g.e("s_waitcnt lgkmcnt(0)")
        if opt.get("steps"): g.e("v_mov_b32 v62, 0\ns_memtime s[98:99]\ns_waitcnt lgkmcnt(0)")
        g.label("L_O_LOOP")
        for u in range(8): body(u)
        assert g.lg==lg_end
        g.e(f"s_add_u32 s{sJ}, s{sJ}, 8\ns_cmp_lt_u32 s{sJ}, {NCH}\ns_cbranch_scc1 L_O_LOOP\ns_waitcnt lgkmcnt(0)")
        tick_store(); stamp(); dstamp(6)
        g.e("s_nop 7")
        for rt in range(2):
            if rt==1: g.e(f"s_add_u32 s{sEXW}, s{sEXW}, 4096")
            for m in range(4):
                d=OACC+(rt*8+4+m)*4
                g.e(f"buffer_store_dwordx4 {ar(d)}, v{vOS}, {sr(S_O)}, s{sEXW} offen offset:{m*1024} sc1")
        for rt in range(2):
            for m in range(4):
                for q in range(4): g.e(f"v_accvgpr_read_b32 v{128+(rt*4+m)*4+q}, a{OACC+(rt*8+m)*4+q}")
        g.e(f"""
        v_lshrrev_b32 v3, 4, v0
        v_and_b32 v4, 15, v0
        v_lshlrev_b32 v5, 3, v3
        v_lshl_add_u32 v52, v4, 12, v5
        s_lshl_b32 s{sCNT}, s{sW}, 2
        s_add_u32 s{sCNT}, s{sCNT}, 16
        s_waitcnt vmcnt(0)
        """)
        xst(11)
        flag_store(f"s{sCNT}")
        g.e(f"""
        s_xor_b32 s{sT0}, s2, 128
        s_lshl_b32 s{sT0}, s{sT0}, 7
        s_add_u32 s{sT0}, s{sT0}, {FLAG_OFF}
        s_add_u32 s{sT0}, s{sT0}, s{sCNT}
        v_mov_b32 v1, s{sT0}
        s_mov_b32 s{sCNT}, 0
        s_mov_b64 exec, 1
        L_X_POLL:
        global_load_dword v3, v1, s[{sWS}:{sWS+1}] sc1
        s_add_u32 s{sCNT}, s{sCNT}, 1
        s_waitcnt vmcnt(0)
        v_readfirstlane_b32 s{sT0}, v3
        s_cmp_gt_u32 s{sCNT}, 0x40000
        s_cbranch_scc1 L_X_POLLX
        s_cmp_lg_u32 s{sT0}, s{sNONCE}
        s_cbranch_scc1 L_X_POLL
        L_X_POLLX:
        s_mov_b64 exec, -1
        """)
        xst(12)
        for rt in range(2):
            if rt==1: g.e(f"s_add_u32 s{sEXR}, s{sEXR}, 4096")
            for m in range(4):
                r=192+(rt*4+m)*4
                g.e(f"buffer_load_dwordx4 {vr(r)}, v{vOS}, {sr(S_O)}, s{sEXR} offen offset:{m*1024} sc1")
        for rt in range(2):
            if rt==1: g.e(f"s_add_u32 s{sOUTB}, s{sOUTB}, 0x10000")
            for m in range(4):
                d=128+(rt*4+m)*4; r=192+(rt*4+m)*4
                if rt==0 and m==0:
                    g.e("s_waitcnt vmcnt(0)"); xst(13)
                for q in range(4): g.e(f"v_add_f32 v{d+q}, v{d+q}, v{r+q}")
                g.e(f"""v_cvt_pk_bf16_f32 v{d}, v{d}, v{d+1}
                v_cvt_pk_bf16_f32 v{d+1}, v{d+2}, v{d+3}
                buffer_store_dwordx2 v[{d}:{d+1}], v52, {sr(S_OUT)}, s{sOUTB} offen offset:{m*32}{opt.get("st_out","")}""")
    phase_o4() if O4 else phase_o2()
    stamp()
    if opt.get("dstamps"):
        g.e("s_waitcnt vmcnt(0)"); dstamp(7)
    if opt.get("stamps"):
        g.e("s_waitcnt vmcnt(0)")
        g.e(f"s_mov_b32 s{sSEGN}, 10")
        stamp()
    g.label("L_END")
    g.e("s_endpgm")
    return g.text()

def build(opt):
    s="; @launch grid=(256,1,1) block=(256,1,1) lds=163840\n"
    s+=""";
;
;            row sums from an extra MFMA with a ones operand; K/V stream through an 8-slot LDS ring (non-temporal loads).
;  phase O : out tile 128 x 128 over half of K (split-K 2): o fragments straight to registers, wo through the LDS ring.
;  phase X : the two K halves exchange fp32 partial tiles through the workspace, add, round to bf16, store.
;  Hand-offs between workgroups use write-through stores + per-workgroup flag words in the workspace; flags carry a
;  per-launch tag agreed through d_debug (zero at launch), so stale workspace contents never match.  Counted vmcnt waits
"""
    s+='.amdgcn_target "amdgcn-amd-amdhsa--gfx950"\n'
    s+=f".text\n.globl {KN}\n.p2align 8\n.type {KN},@function\n{KN}:\n"
    s+=gen(opt)
    s+=f""".section .rodata,"a"
.p2align 6
.amdhsa_kernel {KN}
  .amdhsa_next_free_vgpr 512
  .amdhsa_next_free_sgpr 102
  .amdhsa_accum_offset 256
  .amdhsa_group_segment_fixed_size 0
  .amdhsa_kernarg_size 104
  .amdhsa_user_sgpr_count 2
  .amdhsa_user_sgpr_kernarg_segment_ptr 1
  .amdhsa_system_sgpr_workgroup_id_x 1
.end_amdhsa_kernel
"""
    return s
if __name__=="__main__":
    opt=json.loads(sys.argv[2]) if len(sys.argv)>2 else {}
    open(sys.argv[1],"w").write(build(opt))
```

```python
import sys, struct, math, json
from gl import *
KN="concat_heads__mha_block_cached__mha_block_cached__near_ridge_kernel"
C_SCALE=struct.unpack("<I",struct.pack("<f",math.log2(math.e)/math.sqrt(128.0)))[0]
K1=1024; MB=K1*K1
EXCH_OFF=16*MB; FLAG_OFF=44*MB; STAMP_OFF=48*MB; WS_SRD=48*MB
SLOT=16384; LA=7; NPRE=3
WQBASE=48*K1; XBASE=96*K1
WO_AREA=[128*K1,144*K1,96*K1,112*K1]; WO_RB=96*K1

def gen(opt):
    opt=dict(opt); opt.setdefault('thra',4); opt.setdefault('thra_skip',3); opt.setdefault('late',1); opt.setdefault('odefer',1)
    g=G()
    S=lambda txt: (lambda: g.e(txt))
    NT=opt.get('nt_kv',' nt')
    NTX=opt.get("nt_x",""); NTW=opt.get("nt_wq"," nt"); NTO=opt.get("nt_wo",""); NTOO=opt.get("nt_o"," sc1"); STO=opt.get("st_o"," sc1")
    FULL=opt.get("fullrot",0); KM=15 if FULL else 7
    O4=opt.get("o4",0)
    NWOP=5 if O4 else opt.get("nwop",7)
    KREG={int(k):v for k,v in opt.get("kreg",{}).items()}
    KRI={c:n for n,c in enumerate(sorted(KREG.values()))}
    KPRE={int(k):v for k,v in opt.get("kpre",{10:0,12:1,14:2}).items()}
    sPA=7;sKRG=7;sSIG=3;sKRO=100;sQ1=5;sQ2=6;sQ3=4;sPOL=88;sJ=4;sLAST=5;sCNT=6
    S_X=8;S_WQ=12;S_K=16;S_V=20;S_KN=24;S_O=28;S_WO=32;S_OUT=36;S_WON=40
    sW=44;sBR=45;sH=46;sBG=47;sRB=48;sCB=49;sKH=50;sPHI=51;sPHO=52
    sWQB=53;sKX=54;sKW=55;sXT=56;sWT=57;sT0=58;sT1=59
    sCUR=60;sNXT=61;sITEM=62;sOB=63;sC=64;sWOFF=65;sXL=66;sWL=67
    sMASK=68
    sXB=70
    sNONCE=74;sWOB=75;sOOB=76;sKWO=77;sKO=78;sWLO=79;sOLO=80;sOUTB=81;sEXW=82;sEXR=83
    S_ON=84
    sSEGN=89; sWS=90; sDBG=92; sSTB=94
    vKD=8; vVD=12; vKR=14; vVR=22; vOS=38; vOS1=39; vWOD=40; vPA=44; vTCH=45; sTCH=88; vOS2=45; vOS3=63
    vXD=46; vXR=48; vWD=50; vWR=54
    TA=52; vWOR=46
    QF=64; ACC=128
    OA=128; LAcc=160; ONES=168; QCUR=172; OACC=192
    def stamp():
        if not opt.get("stamps"): return
        g.e(f"""
        s_memrealtime s[96:97]
        s_memtime s[98:99]
        s_waitcnt lgkmcnt(0)
        v_mov_b32 v2, s96
        v_mov_b32 v3, s98
        s_lshl_b32 s96, s2, 7
        s_lshl_b32 s97, s{sSEGN}, 3
        s_add_u32 s96, s96, s97
        v_mov_b32 v1, s96
        global_store_dwordx2 v1, v[2:3], s[{sSTB}:{sSTB+1}]
        s_add_u32 s{sSEGN}, s{sSEGN}, 1
        """)
        g.lg=[]
        g.vm.append('stamp') if False else None
    def dstamp(word,neg=False):
        if not opt.get("dstamps"): return
        n=f"L_DS{word}"
        g.e(f"""
        s_cmp_lg_u32 s{sW}, 0
        s_cbranch_scc1 {n}
        s_memrealtime s[96:97]
        s_waitcnt lgkmcnt(0)
        {"s_not_b32 s96, s96" if neg else ""}
        v_mov_b32 v2, s96
        v_mov_b32 v1, {word*4}
        s_mov_b64 exec, 1
        global_atomic_umax v1, v2, s[{sDBG}:{sDBG+1}]
        s_mov_b64 exec, -1
        {n}:
        """)
        g.lg=[]
    def tick(k):
        if opt.get("steps"):
            g.e(f"s_memtime s[96:97]\ns_waitcnt lgkmcnt(0)\nv_writelane_b32 v62, s96, {k}"); g.lg=[]
    def tick_store():
        if opt.get("steps"):
            g.e(f"s_lshl_b32 s96, s2, 12\ns_lshl_b32 s97, s{sSEGN}, 8\ns_add_u32 s96, s96, s97\ns_add_u32 s96, s96, {MB}\nv_lshlrev_b32 v1, 2, v0\nv_add_u32 v1, s96, v1\nglobal_store_dword v1, v62, s[{sSTB}:{sSTB+1}]")
    if opt.get("stamps"): g.e("s_memrealtime s[88:89]\ns_waitcnt lgkmcnt(0)\ns_mov_b32 s101, s88")
    g.e(f"""
    s_cmp_ge_u32 s2, 256
    s_cbranch_scc1 L_END
    s_load_dwordx4 s[96:99], s[0:1], 80
    s_load_dwordx2 s[{sWS}:{sWS+1}], s[0:1], 96
    s_and_b32 s3, s2, 7                          ; xcd
    s_lshr_b32 s4, s2, 3                         ; idx
    s_lshr_b32 s{sBR}, s3, 2
    s_and_b32 s5, s3, 3
    s_lshl_b32 s5, s5, 3
    s_and_b32 s6, s4, 7
    s_add_u32 s{sH}, s5, s6
    s_lshr_b32 s{sBG}, s4, 3
    s_lshl_b32 s7, s{sBG}, 1
    s_add_u32 s7, s7, s6
    s_and_b32 s{sPHI}, s7, 7
    {"s_lshl_b32 s"+str(sPHI)+", s"+str(sPHI)+", 1" if FULL else ""}
    ; O mapping
    s_lshr_b32 s5, s3, 1
    s_and_b32 s5, s5, 1
    s_lshl_b32 s5, s5, 2
    s_and_b32 s6, s4, 3
    s_add_u32 s{sRB}, s5, s6
    s_and_b32 s5, s3, 1
    s_lshl_b32 s5, s5, 2
    s_lshr_b32 s7, s4, 2
    s_and_b32 s7, s7, 3
    s_add_u32 s{sCB}, s5, s7
    s_lshr_b32 s{sKH}, s4, 4
    s_add_u32 s{sPHO}, s6, s7
    s_and_b32 s{sPHO}, s{sPHO}, 3
    s_lshl_b32 s{sPHO}, s{sPHO}, 1
    s_mul_i32 s5, s{sBR}, 40
    s_add_u32 s4, s0, s5
    s_addc_u32 s5, s1, 0
    s_load_dwordx4 s[8:11], s[4:5], 0            ; x, k
    s_load_dwordx4 s[12:15], s[4:5], 16          ; v, wq
    s_load_dwordx2 s[16:17], s[4:5], 32          ; wo
    v_lshrrev_b32 v1, 6, v0
    v_and_b32 v0, 63, v0
    s_nop 0
    v_readfirstlane_b32 s{sW}, v1
    """)
    g.e(f"""
    v_lshrrev_b32 v1, 3, v0              ; r8
    v_and_b32 v2, 7, v0                  ; p8
    v_lshrrev_b32 v3, 4, v0              ; rr / g
    v_and_b32 v4, 15, v0                 ; p16 / q / key
    v_xor_b32 v5, v2, v3
    v_lshlrev_b32 v5, 4, v5
    v_lshl_add_u32 v{vXD}, v1, 11, v5
    v_xor_b32 v5, 64, v5
    v_lshl_add_u32 v5, v1, 11, v5
    v_add_u32 v{vXD+1}, {8*2048-1024}, v5
    v_lshrrev_b32 v5, 1, v4
    v_xor_b32 v5, v5, v3
    v_lshlrev_b32 v5, 4, v5
    v_lshl_add_u32 v5, v4, 7, v5
    s_lshl_b32 s{sXL}, s{sW}, 14
    s_add_u32 s{sXL}, s{sXL}, {XBASE}
    v_add_u32 v{vXR}, s{sXL}, v5
    v_xor_b32 v{vXR+1}, 64, v{vXR}
    v_and_b32 v5, 1, v3
    v_and_b32 v6, 2, v3
    v_lshl_or_b32 v5, v6, 1, v5          ; f0
    v_xor_b32 v5, v5, v4                 ; p ^ f0
    """)
    for j in range(4):
        g.e(f"""
        v_xor_b32 v6, {8*(j>>1)}, v5
        v_lshlrev_b32 v6, 4, v6
        v_lshl_add_u32 v6, v3, 13, v6
        v_add_u32 v{vWD+j}, {4*j*8192-1024*j}, v6
        """)
    g.e(f"""
    v_lshrrev_b32 v5, 2, v4              ; rp
    v_and_b32 v6, 3, v0                  ; c
    v_and_b32 v7, 1, v5
    v_and_b32 v1, 2, v5
    v_lshl_or_b32 v7, v1, 1, v7
    v_and_b32 v1, 1, v3
    v_lshl_or_b32 v7, v1, 3, v7          ; f
    v_xor_b32 v7, v7, v6                 ; c ^ f
    v_lshlrev_b32 v7, 4, v7
    v_and_b32 v1, 1, v6
    v_lshl_or_b32 v7, v1, 3, v7          ; + 8*(c&1)
    v_lshl_add_u32 v1, v3, 3, v5         ; 8kg+rp
    v_lshl_add_u32 v7, v1, 8, v7
    v_add_u32 v7, {WQBASE}, v7
    """)
    for dt in range(8):
        t,u=dt>>1,dt&1
        g.e(f"v_xor_b32 v{vWR+dt}, {(t<<6)^(u<<3)}, v7")
    for j in range(4):
        g.e(f"""
        v_add_u32 v5, {4*(j&1)}, v3
        v_lshlrev_b32 v5, 1, v5
        v_xor_b32 v5, v5, v4
        v_lshlrev_b32 v5, 4, v5
        v_lshl_add_u32 v5, v3, 11, v5
        v_add_u32 v{vWOD+j}, {4*j*2048-1024*j}, v5
        """)
    if O4:
        g.e(f"""
        v_and_b32 v5, 7, v0
        s_lshl_b32 s{sT0}, s{sBG}, 3
        v_add_u32 v5, s{sT0}, v5
        s_and_b32 s{sT0}, s2, 7
        v_lshlrev_b32 v5, 3, v5
        v_add_u32 v5, s{sT0}, v5
        v_lshlrev_b32 v5, 7, v5
        v_add_u32 v{vPA}, {FLAG_OFF}, v5
        """)
    else:
        g.e(f"""
        s_lshl_b32 s{sT0}, s{sKH}, 4
        v_add_u32 v5, s{sT0}, v4             ; h = 16kh + t
        v_lshrrev_b32 v6, 3, v5              ; h>>3
        s_lshl_b32 s{sT0}, s{sBR}, 2
        v_add_u32 v6, s{sT0}, v6             ; xcd'
        v_and_b32 v5, 7, v5
        s_lshr_b32 s{sT0}, s{sRB}, 1
        s_lshl_b32 s{sT0}, s{sT0}, 3
        v_add_u32 v5, s{sT0}, v5             ; idx'
        v_lshl_add_u32 v5, v5, 3, v6         ; wg'
        v_lshlrev_b32 v5, 7, v5
        s_mov_b32 s{sT0}, {FLAG_OFF}
        v_add_u32 v{vPA}, s{sT0}, v5
        """)
    for j in range(4):
        g.e(f"""
        v_add_u32 v5, {4*j}, v3
        v_xor_b32 v5, v5, v4
        v_lshlrev_b32 v5, 4, v5
        v_lshl_add_u32 v{vKD+j}, v3, 8, v5
        """)
    g.e(f"""
    v_xor_b32 v5, v3, v4
    v_lshlrev_b32 v5, 4, v5
    v_lshl_add_u32 v5, v4, 8, v5
    """)
    for t in range(4): g.e(f"v_xor_b32 v{vKR+t}, {t<<6}, v5\nv_add_u32 v{vKR+4+t}, 0x10000, v{vKR+t}")
    for jp in range(2):
        g.e(f"""
        v_add_u32 v5, {4*jp}, v3
        v_lshlrev_b32 v5, 1, v5
        v_xor_b32 v5, v5, v4
        v_lshlrev_b32 v5, 4, v5
        v_lshl_add_u32 v{vVD+jp}, v3, 8, v5
        """)
    g.e(f"""
    v_lshrrev_b32 v5, 2, v4              ; rp
    v_and_b32 v6, 3, v0                  ; c
    v_and_b32 v7, 1, v3
    v_lshl_add_u32 v7, v7, 2, v5         ; 4(g&1)+rp
    v_lshlrev_b32 v7, 1, v7
    v_lshrrev_b32 v1, 1, v6
    v_xor_b32 v7, v7, v1
    v_lshlrev_b32 v7, 4, v7
    v_and_b32 v1, 1, v6
    v_lshl_or_b32 v7, v1, 3, v7
    v_lshl_add_u32 v1, v3, 2, v5         ; 4g+rp
    v_lshl_add_u32 v7, v1, 8, v7
    """)
    for dt in range(8): g.e(f"v_xor_b32 v{vVR+dt}, {dt<<5}, v7\nv_add_u32 v{vVR+8+dt}, 0x10000, v{vVR+dt}")
    g.e(f"v_lshlrev_b32 v{vTCH}, 7, v0")
    g.e(f"s_and_b32 s{sT0}, s2, 3\ns_lshl_b32 s{sT0}, s{sT0}, 5\ns_lshr_b32 s{sT1}, s2, 3\ns_add_u32 s{sT0}, s{sT0}, s{sT1}\ns_lshl_b32 s{sTCH}, s{sT0}, 16\ns_lshl_b32 s{sT0}, s{sW}, 14\ns_add_u32 s{sTCH}, s{sTCH}, s{sT0}")
    g.e(f"v_lshlrev_b32 v{vOS}, 4, v0\nv_add_u32 v{vOS1}, 0x20000, v{vOS}\nv_mov_b32 v1, 0x3f803f80")
    for r in range(4): g.e(f"v_accvgpr_write_b32 a{ONES+r}, v1")
    g.e("s_waitcnt lgkmcnt(0)")
    def mk(s,lo,hi,size): g.e(f"s_mov_b32 s{s}, s{lo}\ns_and_b32 s{s+1}, s{hi}, 0xffff\ns_mov_b32 s{s+2}, {size}\ns_mov_b32 s{s+3}, 0x20000")
    g.e(f"s_mov_b32 s{sDBG}, s98\ns_mov_b32 s{sDBG+1}, s99")
    mk(S_OUT,96,97,4*MB); mk(S_WO,16,17,8*MB); mk(S_WON,16,17,8*MB); mk(S_V,12,13,64*MB)
    mk(S_K,10,11,64*MB); mk(S_KN,10,11,64*MB)
    g.e(f"s_mov_b32 s4, s14\ns_mov_b32 s5, s15\ns_and_b32 s{S_X+1}, s9, 0xffff\ns_mov_b32 s{S_X+2}, {2*MB}\ns_mov_b32 s{S_X+3}, 0x20000")
    mk(S_WQ,4,5,8*MB); mk(S_O,sWS,sWS+1,WS_SRD); mk(S_ON,sWS,sWS+1,WS_SRD)
    g.e(f"""
    s_add_u32 s{sSTB}, s{sWS}, {STAMP_OFF}
    s_addc_u32 s{sSTB+1}, s{sWS+1}, 0
    s_mov_b32 s{sSEGN}, 0
    s_lshl_b32 s{sWOFF}, s{sW}, 12
    s_add_u32 s{sWL}, s{sWOFF}, {WQBASE}
    s_lshl_b32 s{sT0}, s{sBG}, 19
    s_lshl_b32 s{sT1}, s{sW}, 15
    s_add_u32 s{sXB}, s{sT0}, s{sT1}
    s_add_u32 s{sXB+1}, s{sXB}, 0x20000
    s_add_u32 s{sXB+2}, s{sXB}, 0x40000
    s_add_u32 s{sXB+3}, s{sXB}, 0x60000
    s_lshl_b32 s{sT0}, s{sW}, 17
    s_lshl_b32 s{sT1}, s{sH}, 8
    s_add_u32 s{sWQB}, s{sT0}, s{sT1}
    """)
    if opt.get("stamps"):
        g.e(f"v_mov_b32 v2, s101\nv_mov_b32 v3, 0\ns_lshl_b32 s96, s2, 7\ns_add_u32 s96, s96, 120\nv_mov_b32 v1, s96\nglobal_store_dwordx2 v1, v[2:3], s[{sSTB}:{sSTB+1}]")
    stamp()
    dstamp(2,True)
    O4B=f"""
        s_and_b32 s{sKH}, s2, 3                      ; kq
        s_lshr_b32 s{sT0}, s2, 3
        s_and_b32 s{sCB}, s{sT0}, 7                  ; cb
        s_lshl_b32 s{sT0}, s{sBG}, 1
        s_add_u32 s{sPHO}, s{sT0}, s{sCB}
        s_and_b32 s{sPHO}, s{sPHO}, 7
        s_lshl_b32 s{sWOB}, s{sKH}, 21
        s_lshl_b32 s{sT0}, s{sW}, 15
        s_add_u32 s{sWOB}, s{sWOB}, s{sT0}
        s_lshl_b32 s{sT0}, s{sCB}, 8
        s_add_u32 s{sWOB}, s{sWOB}, s{sT0}
        s_lshl_b32 s{sT0}, s{sBG}, 2
        s_add_u32 s{sT0}, s{sT0}, s{sW}
        s_lshl_b32 s{sOOB}, s{sT0}, 19
        s_lshl_b32 s{sOUTB}, s{sT0}, 18
        s_lshl_b32 s{sT0}, s{sBR}, 23
        s_add_u32 s{sOOB}, s{sOOB}, s{sT0}
        s_lshl_b32 s{sT0}, s{sKH}, 15
        s_add_u32 s{sOOB}, s{sOOB}, s{sT0}
        s_lshl_b32 s{sT0}, s{sBR}, 11
        s_add_u32 s{sOUTB}, s{sOUTB}, s{sT0}
        s_lshl_b32 s{sT0}, s{sCB}, 8
        s_add_u32 s{sOUTB}, s{sOUTB}, s{sT0}
        s_lshl_b32 s{sT0}, s{sKH}, 6
        s_add_u32 s{sOUTB}, s{sOUTB}, s{sT0}
        s_mul_i32 s{sEXW}, s2, 98304
        s_mul_i32 s{sT0}, s{sW}, 24576
        s_add_u32 s{sEXW}, s{sEXW}, s{sT0}
        s_add_u32 s{sEXW}, s{sEXW}, {EXCH_OFF}
    """
    def late_setup():
        g.e(f"""
        s_mov_b32 s{sC}, {C_SCALE}
        s_mov_b32 s{sMASK}, 0xffff0000
        s_mov_b32 s{sMASK+1}, 0xffff0000
        s_lshl_b32 s{sT0}, s{sBG}, 24
        s_lshl_b32 s{sT1}, s{sH}, 17
        s_add_u32 s{sCUR}, s{sT0}, s{sT1}
        s_add_u32 s{sCUR}, s{sCUR}, s{sWOFF}
        s_add_u32 s{sNXT}, s{sCUR}, 0x400000
        s_lshl_b32 s{sT0}, s{sBR}, 23
        s_lshl_b32 s{sT1}, s{sBG}, 21
        s_add_u32 s{sOB}, s{sT0}, s{sT1}
        s_lshl_b32 s{sT0}, s{sW}, 17
        s_add_u32 s{sOB}, s{sOB}, s{sT0}
        s_lshl_b32 s{sT0}, s{sH}, 12
        s_add_u32 s{sOB}, s{sOB}, s{sT0}
        s_lshl_b32 s{sT0}, s{sKH}, 22
        s_lshl_b32 s{sT1}, s{sW}, 15
        s_add_u32 s{sWOB}, s{sT0}, s{sT1}
        s_lshl_b32 s{sT0}, s{sCB}, 8
        s_add_u32 s{sWOB}, s{sWOB}, s{sT0}
        s_lshl_b32 s{sT0}, s{sRB}, 3
        s_lshl_b32 s{sT1}, s{sW}, 1
        s_add_u32 s{sT0}, s{sT0}, s{sT1}            ; 8rb+2w
        s_lshl_b32 s{sOUTB}, s{sT0}, 16
        s_lshl_b32 s{sOOB}, s{sT0}, 17
        s_lshl_b32 s{sT1}, s{sBR}, 23
        s_add_u32 s{sOOB}, s{sOOB}, s{sT1}
        s_lshl_b32 s{sT1}, s{sKH}, 16
        s_add_u32 s{sOOB}, s{sOOB}, s{sT1}
        s_lshl_b32 s{sT1}, s{sBR}, 11
        s_add_u32 s{sOUTB}, s{sOUTB}, s{sT1}
        s_lshl_b32 s{sT1}, s{sCB}, 8
        s_add_u32 s{sOUTB}, s{sOUTB}, s{sT1}
        s_lshl_b32 s{sT1}, s{sKH}, 7
        s_add_u32 s{sOUTB}, s{sOUTB}, s{sT1}
        s_lshl_b32 s{sT1}, s{sW}, 13
        s_lshl_b32 s{sEXW}, s2, 15
        s_add_u32 s{sEXW}, s{sEXW}, s{sT1}
        s_add_u32 s{sEXW}, s{sEXW}, {EXCH_OFF}
        s_xor_b32 s{sEXR}, s2, 128
        s_lshl_b32 s{sEXR}, s{sEXR}, 15
        s_add_u32 s{sEXR}, s{sEXR}, s{sT1}
        s_add_u32 s{sEXR}, s{sEXR}, {EXCH_OFF}
        s_lshr_b32 s{sT0}, s2, {opt.get("krot_sh",3)}
        s_and_b32 s{sT0}, s{sT0}, 7
        s_lshl_b32 s{sKRO}, s{sT0}, 14
        {O4B if O4 else ""}
        {("s_mov_b32 s"+str(sPOL)+", s"+str(sBR)) if opt.get("polsel")==1 else ("s_xor_b32 s"+str(sPOL)+", s"+str(sBR)+", 1") if opt.get("polsel")==2 else ""}
        s_mov_b32 s{sITEM}, 0
        s_mov_b32 s{sNONCE}, 0
        s_mov_b32 s{sPA}, 0
        s_mov_b32 s{sSIG}, 0
        s_cmp_lg_u32 s{sW}, 0
        s_cbranch_scc1 L_NONCE_DONE
        s_memrealtime s[96:97]
        s_waitcnt lgkmcnt(0)
        s_or_b32 s96, s96, 1
        v_mov_b32 v4, s96
        v_mov_b32 v5, 0
        v_accvgpr_write_b32 a164, v4
        v_accvgpr_write_b32 a165, v5
        s_mov_b64 exec, 1
        global_atomic_cmpswap a166, v5, a[164:165], s[{sDBG}:{sDBG+1}] sc0
        s_mov_b64 exec, -1
        L_NONCE_DONE:
        """)
    def flag_store(off):
        g.e(f"""
        s_lshl_b32 s{sT0}, s2, 7
        s_add_u32 s{sT0}, s{sT0}, {FLAG_OFF}
        s_add_u32 s{sT0}, s{sT0}, {off}
        v_mov_b32 v1, s{sT0}
        v_mov_b32 v3, s{sNONCE}
        s_mov_b64 exec, 1
        global_store_dword v1, v3, s[{sWS}:{sWS+1}] sc1
        s_mov_b64 exec, -1
        """)
    nsig=[0]
    def pending_signal():
        nsig[0]+=1; n=nsig[0]
        g.e(f"""
        s_cmp_eq_u32 s{sSIG}, 0
        s_cbranch_scc1 L_SG{n}
        s_cmp_lg_u32 s{sW}, 0
        s_cbranch_scc1 L_SGX{n}
        s_sub_u32 s{sCNT}, s{sSIG}, 1
        s_lshl_b32 s{sCNT}, s{sCNT}, 2
        """)
        flag_store(f"s{sCNT}")
        g.e(f"L_SGX{n}:\ns_mov_b32 s{sSIG}, 0\nL_SG{n}:")
    def kv_soff(dst,base,ch):
        if opt.get("krot"):
            return f"s_add_u32 s{dst}, s{sKRO}, {ch*16384}\ns_and_b32 s{dst}, s{dst}, 0x1ffff\ns_add_u32 s{dst}, s{dst}, s{base}"
        return f"s_add_u32 s{dst}, s{base}, {ch*16384}"
    def kv_group(cc):
        if cc<8: srdn,base,vo,ch=S_K,sCUR,[vKD+j for j in range(4)],cc
        elif cc<16: srdn,base,vo,ch=S_V,sCUR,[vVD+(j&1) for j in range(4)],cc-8
        else: srdn,base,vo,ch=S_KN,sNXT,[vKD+j for j in range(4)],cc-16
        return (f"s_add_u32 m0, s{sWOFF}, {(cc&7)*SLOT}\n"+kv_soff(sT1,base,ch),
                [f"buffer_load_dwordx4 v{vo[j]}, {sr(srdn)}, s{sT1} offen offset:{1024*j}{NT} lds" for j in range(4)])
    def wo_group(c,track,srdn=S_WO):
        g.e(f"s_add_u32 s{sT1}, s{sPHO}, {c}\ns_and_b32 s{sT1}, s{sT1}, 7\ns_lshl_b32 s{sT1}, s{sT1}, 17\ns_add_u32 m0, s{sWOFF}, {(c&7)*SLOT}\ns_add_u32 s{sT1}, s{sT1}, s{sWOB}")
        for j in range(4):
            t=f"buffer_load_dwordx4 v{vWOD+j}, {sr(srdn)}, s{sT1} offen offset:{1024*j}{NTO} lds"
            g.vmop(t,('wo',c)) if track else g.e(t)
    def kidx(s,dst,shift):
        g.e(f"s_add_u32 s{sT0}, s{sPHI}, {s}\ns_and_b32 s{sT0}, s{sT0}, {KM}\ns_or_b32 s{sT0}, s{sT0}, {0 if FULL else s&8}\ns_lshl_b32 s{dst}, s{sT0}, {shift}")
    def x_dma(s,i):
        slot=(s&1)*4+i
        g.e(f"s_add_u32 m0, s{sXL}, {slot*2048}\ns_add_u32 s{sT1}, s{sXB+i}, s{sKX}")
        for j in range(2): g.vmop(f"buffer_load_dwordx4 v{vXD+j}, {sr(S_X)}, s{sT1} offen offset:{1024*j}{NTX} lds",('x',s,i))
    def wq_dma(s):
        g.e(f"s_add_u32 m0, s{sWL}, {(s%3)*16384}\ns_add_u32 s{sT1}, s{sWQB}, s{sKW}")
        for j in range(4): g.vmop(f"buffer_load_dwordx4 v{vWD+j}, {sr(S_WQ)}, s{sT1} offen offset:{1024*j}{NTW} lds",('wq',s))
    def a_read(s,ks,dt,hf):
        r=64*(s&1)+(ks*8+dt)*4+2*hf
        g.lgop(f"ds_read_b64_tr_b16 a[{r}:{r+1}], v{vWR+dt} offset:{(s%3)*16384+ks*8192+hf*1024}",('A',s))
    def b_read(s,i,ks):
        n=s*4+i
        r=128+(n&1)*8+ks*4
        g.lgop(f"ds_read_b128 a[{r}:{r+3}], v{vXR+ks} offset:{((s&1)*4+i)*2048}",('B',s,i))
    tick(40)
    kidx(0,sKW,19); wq_dma(0)
    if opt.get("tlb"):
        late_setup()
        g.e(f"""
        v_lshlrev_b32 v1, 22, v0
        v_lshlrev_b32 v2, 20, v0
        v_mov_b32 v3, s{sOB}
        v_writelane_b32 v3, s{sOOB}, 1
        v_writelane_b32 v3, s{sEXW}, 2
        s_lshl_b32 s{sT0}, s2, 7
        s_add_u32 s{sT0}, s{sT0}, {FLAG_OFF}
        v_writelane_b32 v3, s{sT0}, 3
        s_mov_b32 m0, s{sWOFF}
        s_mov_b64 exec, 0xf
        """)
        g.vmop(f"buffer_load_dword v1, {sr(S_K)}, s{sCUR} offen{NT} lds",('tlb',))
        g.vmop(f"buffer_load_dword v1, {sr(S_V)}, s{sCUR} offen{NT} lds",('tlb',))
        g.vmop(f"buffer_load_dword v2, {sr(S_WO)}, s{sWOB} offen{NT} lds",('tlb',))
        g.vmop(f"buffer_load_dword v3, {sr(S_O)}, 0 offen{NT} lds",('tlb',))
        g.e("s_mov_b64 exec, 1")
        g.vmop(f"buffer_load_dword v1, {sr(S_OUT)}, s{sOUTB} offen{NT} lds",('tlb',))
        g.e("s_mov_b64 exec, -1")
    kidx(0,sKX,7)
    for i in range(4): x_dma(0,i)
    kidx(1,sKW,19); wq_dma(1)
    Q0=opt.get("q0fast",0)
    if not opt.get("qpro",0) and not Q0:
        kidx(1,sKX,7)
        for i in range(4): x_dma(1,i)
        kidx(2,sKW,19); wq_dma(2)
    tick(41)
    if not opt.get("tlb"): late_setup()
    tick(42)
    g.vmwait(('wq',0))
    tick(43)
    g.e("s_barrier")
    AR=[(ks,dt,hf) for ks in range(2) for dt in range(8) for hf in range(2)]
    for (ks,dt,hf) in AR: a_read(0,ks,dt,hf)
    g.vmwait(('x',0,0))
    tick(44)
    b_read(0,0,0); b_read(0,0,1)
    if opt.get("qpro",0) and not Q0:
        kidx(1,sKX,7)
        for i in range(4): x_dma(1,i)
        kidx(2,sKW,19); wq_dma(2)
    if Q0:
        g.e(f"s_add_u32 s{sT0}, s{sPHI}, 1\ns_and_b32 s{sT0}, s{sT0}, {KM}\ns_lshl_b32 s{sQ1}, s{sT0}, 7\ns_add_u32 s{sT0}, s{sPHI}, 2\ns_and_b32 s{sT0}, s{sT0}, {KM}\ns_lshl_b32 s{sQ2}, s{sT0}, 19\ns_add_u32 s{sQ2}, s{sQ2}, s{sWQB}")
    g.e(f"""s_add_u32 s{sT0}, s{sPHI}, 2
    s_and_b32 s{sT0}, s{sT0}, {KM}
    s_lshl_b32 s{sKX}, s{sT0}, 7
    s_add_u32 s{sT0}, s{sPHI}, 3
    s_and_b32 s{sT0}, s{sT0}, {KM}
    s_lshl_b32 s{sKW}, s{sT0}, 19""")
    for s in range(16):
        first=(Q0 and s==0)
        if s+1<16 and not first: g.vmwait(('wq',s+1))
        g.lgwait(('A',s))
        g.e("s_barrier")
        tick(s)
        G_=Gaps(64)
        dpos=opt.get("dpos",[2,7,12,17,23,28,34,39,45,50,56,61])
        if first:
            p=0
            for i in range(4):
                G_.put_post(p,S(f"s_add_u32 s{sQ3}, s{sXB+i}, s{sQ1}\ns_add_u32 m0, s{sXL}, {(4+i)*2048}"))
                for j in range(2):
                    G_.mem[p+1+j]=(lambda j=j,i=i: g.vmop(f"buffer_load_dwordx4 v{vXD+j}, {sr(S_X)}, s{sQ3} offen offset:{1024*j}{NTX} lds",('x',1,i)))
                p+=3
            G_.put_post(p,S(f"s_add_u32 m0, s{sWL}, {2*16384}"))
            for j in range(4):
                G_.mem[p+1+j]=(lambda j=j: g.vmop(f"buffer_load_dwordx4 v{vWD+j}, {sr(S_WQ)}, s{sQ2} offen offset:{1024*j}{NTW} lds",('wq',2)))
            dpos=[21,24,27,30,35,38,43,46,51,54,58,61]
        if s+3<16:
            if (s+3)==8 and not FULL: G_.put_post(0,S(f"s_add_u32 s{sWQB}, s{sWQB}, {8<<19}"))
            G_.put_post(dpos[0]-2,S(f"s_add_u32 s{sWT}, s{sWQB}, s{sKW}"))
            G_.put_post(dpos[0]-1,S(f"s_add_u32 m0, s{sWL}, {((s+3)%3)*16384}"))
            for j in range(4):
                G_.mem[dpos[j]]=(lambda j=j,s=s: g.vmop(f"buffer_load_dwordx4 v{vWD+j}, {sr(S_WQ)}, s{sWT} offen offset:{1024*j}{NTW} lds",('wq',s+3)))
            G_.put_post(dpos[3],S(f"s_add_u32 s{sKW}, s{sKW}, {1<<19}"))
            G_.put_post(dpos[3]+1,S(f"s_and_b32 s{sKW}, s{sKW}, {KM<<19}"))
        if s+2<16:
            for i in range(4):
                p=dpos[4+2*i]
                if (s+2)==8 and not FULL: G_.put_post(p-3,S(f"s_add_u32 s{sXB+i}, s{sXB+i}, 1024"))
                G_.put_post(p-2,S(f"s_add_u32 s{sXT}, s{sXB+i}, s{sKX}"))
                G_.put_post(p-1,S(f"s_add_u32 m0, s{sXL}, {((s&1)*4+i)*2048}"))
                for j in range(2):
                    G_.mem[dpos[4+2*i+j]]=(lambda j=j,s=s,i=i: g.vmop(f"buffer_load_dwordx4 v{vXD+j}, {sr(S_X)}, s{sXT} offen offset:{1024*j}{NTX} lds",('x',s+2,i)))
            G_.put_post(dpos[11],S(f"s_add_u32 s{sKX}, s{sKX}, 128"))
            G_.put_post(dpos[11]+1,S(f"s_and_b32 s{sKX}, s{sKX}, {KM<<7}"))
        if s in KPRE:
            c=KPRE[s]
            for j,p in enumerate(opt.get("kpos",[19,30,41,52])):
                G_.put_post(p-2,S(kv_soff(sT1,sCUR,c)))
                G_.put_post(p-1,S(f"s_add_u32 m0, s{sWOFF}, {c*SLOT}"))
                assert G_.mem[p] is None
                G_.mem[p]=(lambda j=j,c=c: g.vmop(f"buffer_load_dwordx4 v{vKD+j}, {sr(S_K)}, s{sT1} offen offset:{1024*j}{NT} lds",('kv',c)))
        if s in KREG:
            c=KREG[s]
            for j,p in enumerate(opt.get("kpos",[19,30,41,52])):
                if j==0: G_.put_post(p-2,S(f"s_add_u32 s{sKRG}, s{sCUR}, {c*16384}"))
                assert G_.mem[p] is None
                r=OACC+16*KRI[c]+4*j
                G_.mem[p]=(lambda j=j,r=r: g.e(f"buffer_load_dwordx4 {ar(r)}, v{vKD+j}, {sr(S_K)}, s{sKRG} offen offset:{1024*j}{NT}"))
        WT={int(k):v for k,v in opt.get("wotouch",{}).items()}
        if s in WT:
            n_=WT[s]; p=20
            assert G_.mem[p] is None
            G_.put_post(p-2,S(f"s_add_u32 s{sT1}, s{sTCH}, {n_*8192}"))
            G_.put_post(p-1,S(f"s_add_u32 m0, s{sWOFF}, {2*SLOT}"))
            G_.mem[p]=(lambda: g.vmop(f"buffer_load_dword v{vTCH}, {sr(S_WO)}, s{sT1} offen lds",('tch',)))
        for i in range(4):
            nxt=(s,i+1) if i<3 else ((s+1,0) if s+1<16 else None)
            if nxt:
                q=G_.put_mem(16*i+opt.get("bpos",4),lambda nxt=nxt: b_read(nxt[0],nxt[1],0),lo=16*i,hi=16*i+16)
                G_.put_pre(q,lambda nxt=nxt: g.vmwait(('x',)+nxt))
                G_.put_mem(q+1,lambda nxt=nxt: b_read(nxt[0],nxt[1],1),lo=q+1,hi=16*i+16)
        if first:
            G_.put_pre(31,lambda: (g.vmwait(('wq',1)), g.e("s_barrier")))
            for n_,(ks,dt,hf) in enumerate(AR):
                G_.put_mem(32+n_*28/32.0,lambda ks=ks,dt=dt,hf=hf,s=s: a_read(s+1,ks,dt,hf),lo=32,hi=64)
        elif s+1<16:
            aend=opt.get("aend",56)
            for n_,(ks,dt,hf) in enumerate(AR):
                G_.put_mem(n_*aend/32.0,lambda ks=ks,dt=dt,hf=hf,s=s: a_read(s+1,ks,dt,hf),hi=62)
        M=[]
        for i in range(4):
            n=s*4+i
            for ks in range(2):
                for dt in range(8):
                    d=ACC+(i*8+dt)*4
                    txt=f"v_mfma_f32_16x16x32_bf16 {vr(d)}, {ar(64*(s&1)+(ks*8+dt)*4)}, {ar(128+(n&1)*8+ks*4)}, {'0' if (s==0 and ks==0) else vr(d)}"
                    if ks==0 and dt==0: M.append(lambda txt=txt,s=s,i=i: (g.lgwait(('B',s,i)), g.e(txt)))
                    else: M.append(txt)
        G_.emit(g,M)
    tick(16)
    if KREG: g.e("s_waitcnt vmcnt(0)")
    g.e("s_barrier")
    if KREG:
        g.e(f"v_add_u32 v1, s{sWOFF}, v{vOS}\nv_add_u32 v3, 0x10000, v1")
        for c in sorted(KREG.values()):
            for j in range(4):
                r=OACC+16*KRI[c]+4*j
                off=c*SLOT+j*1024
                if off<65536: g.e(f"ds_write_b128 v1, {ar(r)} offset:{off}")
                else: g.e(f"ds_write_b128 v3, {ar(r)} offset:{off-65536}")
            if c==3: pass
    rest=[cc for cc in range(LA) if cc not in KPRE.values() and cc not in KREG.values()]
    late=rest[-opt.get("late",0):] if opt.get("late",0) else []
    for cc in rest:
        if cc in late: continue
        h,dm=kv_group(cc); g.e(h)
        for l in dm: g.e(l)
    for i in range(4):
        for t in range(4):
            bx=ACC+(i*8+2*t)*4; by=bx+4; F=QF+16*i+4*t
            g.e(f"""
            v_cvt_pk_bf16_f32 v56, v{bx}, v{bx+1}
            v_cvt_pk_bf16_f32 v57, v{bx+2}, v{bx+3}
            v_cvt_pk_bf16_f32 v58, v{by}, v{by+1}
            v_cvt_pk_bf16_f32 v59, v{by+2}, v{by+3}
            v_cndmask_b32 v{F}, v56, v58, s[{sMASK}:{sMASK+1}]
            v_cndmask_b32 v{F+1}, v57, v59, s[{sMASK}:{sMASK+1}]
            v_cndmask_b32 v{F+2}, v58, v56, s[{sMASK}:{sMASK+1}]
            v_cndmask_b32 v{F+3}, v59, v57, s[{sMASK}:{sMASK+1}]
            """)
    for cc in late:
        h,dm=kv_group(cc); g.e(h)
        for l in dm: g.e(l)
    if KREG: g.e("s_waitcnt lgkmcnt(0)")
    tick(17); tick_store(); stamp(); dstamp(3)
    g.label("L_ITEM")
    g.vm=[]; g.lg=[]
    tick(40)
    g.e(f"s_cmp_lt_u32 s{sITEM}, 3\ns_cselect_b32 s{S_KN+2}, {64*MB}, 0\ns_cselect_b32 s{sLAST}, 0, 1")
    for n in range(4):
        g.e(f"s_cmp_eq_u32 s{sITEM}, {n}\ns_cbranch_scc0 L_QC{n}")
        for r in range(16): g.e(f"v_accvgpr_write_b32 a{QCUR+r}, v{QF+16*n+r}")
        g.label(f"L_QC{n}")
    MX=4
    def pcalc(J):
        b=ACC+8*J
        L=[f"v_fma_f32 v{TA+r}, v{b+r}, s{sC}, -v4" for r in range(8)]
        L+=[f"v_exp_f32 v{TA+r}, v{TA+r}" for r in range(8)]
        L+=[f"v_cvt_pk_bf16_f32 v{ACC+4*J+r}, v{TA+2*r}, v{TA+2*r+1}" for r in range(4)]
        return L
    def reads(c):
        st=c&1; sl=c&7; hi=sl>=4; so=(sl&3)*SLOT; R=[]
        if c<8:
            for kt in range(4):
                for t in range(4):
                    R.append(lambda kt=kt,t=t: g.lgop(f"ds_read_b128 {ar(64*st+(kt*4+t)*4)}, v{vKR+(4 if hi else 0)+t} offset:{so+kt*4096}",('F',c,kt)))
        else:
            for js in range(2):
                for dt in range(8):
                    for hf in range(2):
                        r=64*st+(js*8+dt)*4+2*hf
                        R.append(lambda r=r,js=js,dt=dt,hf=hf: g.lgop(f"ds_read_b64_tr_b16 a[{r}:{r+1}], v{vVR+(8 if hi else 0)+dt} offset:{so+js*8192+hf*4096}",('F',c,js*8+dt)))
        return R
    g.e(f"s_waitcnt vmcnt({4*(LA-1)})\ns_barrier")
    for f in reads(0): f()
    for c in range(16):
        cc=c+LA
        if c<15: g.e(f"s_waitcnt vmcnt({4*(LA-2)})")
        if opt.get("thra") is not None and c<15:
            if c<opt.get("thra_skip_all",0):
                if opt.get("thra_alt") is not None: g.e(f"s_waitcnt vmcnt({opt['thra_alt']})")
            elif c<opt.get("thra_skip",0):
                g.e(f"s_cmp_eq_u32 s{sITEM}, 0\ns_cbranch_scc1 L_TS{c}\ns_waitcnt vmcnt({opt['thra']})\nL_TS{c}:")
            else: g.e(f"s_waitcnt vmcnt({opt['thra']})")
        if opt.get("thr") is not None and c<15:
            g.e(f"s_bitcmp1_b32 s2, 0\ns_cbranch_scc{opt.get('thr_par',1)} L_TH{c}\ns_waitcnt vmcnt({opt['thr']})\nL_TH{c}:")
        g.e("s_barrier")
        tick(c)
        dm=[]
        if (cc<16 or cc>=16+NWOP) and opt.get("polsel"):
            h,dl=kv_group(cc); g.e(h)
            g.e(f"s_cmp_lg_u32 s{sPOL}, 0\ns_cbranch_scc1 L_PB{c}")
            for l in dl: g.e(l)
            g.e(f"s_branch L_PJ{c}\nL_PB{c}:")
            for l in dl: g.e(l.replace(NT,""))
            g.e(f"L_PJ{c}:")
        elif cc<16 or cc>=16+NWOP:
            h,dl=kv_group(cc); g.e(h); dm=[(lambda l=l: g.e(l)) for l in dl]
        else:
            k=cc-16
            g.e(f"s_cmp_eq_u32 s{sLAST}, 1\ns_cbranch_scc1 L_HO{k}")
            h,dl=kv_group(cc); g.e(h)
            if opt.get("polsel"):
                g.e(f"s_cmp_lg_u32 s{sPOL}, 0\ns_cbranch_scc1 L_PC{k}")
                for l in dl: g.e(l)
                g.e(f"s_branch L_HJ{k}\nL_PC{k}:")
                for l in dl: g.e(l.replace(NT,""))
            else:
                for l in dl: g.e(l)
            g.e(f"s_branch L_HJ{k}")
            g.label(f"L_HO{k}")
            wo_group(k,False)
            g.label(f"L_HJ{k}")
        R=reads(c+1) if c<15 else []
        st=c&1; M=[]; VL=[]
        if c<8:
            for kt in range(4):
                T=4*c+kt; d=ACC+4*T
                for t in range(4):
                    txt=f"v_mfma_f32_16x16x32_bf16 {vr(d)}, {ar(64*st+(kt*4+t)*4)}, {ar(QCUR+4*t)}, {'0' if t==0 else vr(d)}"
                    M.append((lambda txt=txt,kt=kt,c=c: (g.lgwait(('F',c,kt)), g.e(txt))) if t==0 else txt)
            if c>0:
                for kt in range(4):
                    b=ACC+16*(c-1)+4*kt
                    if c==1: VL+=[f"v_max3_f32 v{MX+kt}, v{b}, v{b+1}, v{b+2}",f"v_max_f32 v{MX+kt}, v{MX+kt}, v{b+3}"]
                    else: VL+=[f"v_max3_f32 v{MX+kt}, v{MX+kt}, v{b}, v{b+1}",f"v_max3_f32 v{MX+kt}, v{MX+kt}, v{b+2}, v{b+3}"]
        else:
            cv=c-8
            for js in range(2):
                J=2*cv+js; P=ACC+4*J
                for dt in range(8):
                    d=OA+4*dt
                    txt=f"v_mfma_f32_16x16x32_bf16 {ar(d)}, {ar(64*st+(js*8+dt)*4)}, {vr(P)}, {'0' if J==0 else ar(d)}"
                    M.append(lambda txt=txt,c=c,k=js*8+dt: (g.lgwait(('F',c,k)), g.e(txt)))
                M.append(f"v_mfma_f32_16x16x32_bf16 {ar(LAcc)}, {ar(ONES)}, {vr(P)}, {'0' if J==0 else ar(LAcc)}")
            if cv<7:
                for J in (2*cv+2,2*cv+3): VL+=pcalc(J)
        if c<7: pat=['tv','tv','tt','d']*4
        elif c==7: pat=['ttv','tt','ttv','dtt']*4
        else: pat=['ttv','ttv','ttv','dvvvv']*4+['ttttvv','ttttvv']
        if opt.get("dfront"):
            nd=opt["dfront"]
            pat=[p.replace('d','') for p in pat]
            for q in range(4): pat[min(q*nd,len(pat)-1)]='d'+pat[min(q*nd,len(pat)-1)]
        ti=vi=di=0
        for m,p in zip(M,pat):
            m() if callable(m) else g.e(m)
            for ch in p:
                if ch=='t' and ti<len(R): R[ti](); ti+=1
                elif ch=='v' and vi<len(VL): g.e(VL[vi]); vi+=1
                elif ch=='d' and di<len(dm): dm[di](); di+=1
        while ti<len(R): R[ti](); ti+=1
        while di<len(dm): dm[di](); di+=1
        while vi<len(VL): g.e(VL[vi]); vi+=1
        if c==7:
            g.e("s_nop 7")
            for kt in range(4):
                b=ACC+16*7+4*kt
                g.e(f"v_max3_f32 v{MX+kt}, v{MX+kt}, v{b}, v{b+1}\nv_max3_f32 v{MX+kt}, v{MX+kt}, v{b+2}, v{b+3}")
            g.e(f"""
            v_max3_f32 v4, v4, v5, v6
            v_max_f32 v4, v4, v7
            v_mov_b32 v5, v4
            s_nop 1
            v_permlane16_swap_b32 v4, v5
            v_max_f32 v4, v4, v5
            v_mov_b32 v5, v4
            s_nop 1
            v_permlane32_swap_b32 v4, v5
            v_max_f32 v4, v4, v5
            v_mul_f32 v4, s{sC}, v4
            """)
            for J in (0,1):
                for l in pcalc(J): g.e(l)
    tick(16)
    g.e(f"s_nop 7\nv_accvgpr_read_b32 v4, a{LAcc}\ns_nop 0\nv_rcp_f32 v4, v4")
    if opt.get("odefer"):
        for r in range(32): g.e(f"v_accvgpr_read_b32 v{128+r}, a{OA+r}")
        for r in range(32): g.e(f"v_mul_f32 v{128+r}, v{128+r}, v4")
        for n in range(4):
            g.e(f"s_cmp_eq_u32 s{sITEM}, {n}\ns_cbranch_scc0 L_OP{n}")
            for r in range(16): g.e(f"v_cvt_pk_bf16_f32 v{QF+16*n+r}, v{128+2*r}, v{129+2*r}")
            g.label(f"L_OP{n}")
        g.e(f"s_cmp_eq_u32 s{sLAST}, 1\ns_cbranch_scc0 L_OSKIP")
        g.e(f"s_sub_u32 s{sT1}, s{sOB}, {3*0x80000}")
        for n in range(4):
            for t in range(4):
                g.e(f"buffer_store_dwordx4 {vr(QF+16*n+4*t)}, v{vOS}, {sr(S_O)}, s{sT1} offen offset:{t*1024}{STO}")
            if n<3: g.e(f"s_add_u32 s{sT1}, s{sT1}, 0x80000")
        g.label("L_OSKIP")
    else:
        for t in range(4):
            tb=128+16*t
            for r in range(8): g.e(f"v_accvgpr_read_b32 v{tb+r}, a{OA+8*t+r}")
            for r in range(8): g.e(f"v_mul_f32 v{tb+r}, v{tb+r}, v4")
            for r in range(4): g.e(f"v_cvt_pk_bf16_f32 v{tb+8+r}, v{tb+2*r}, v{tb+2*r+1}")
            if not opt.get("no_ostore"): g.e(f"buffer_store_dwordx4 {vr(tb+8)}, v{vOS}, {sr(S_O)}, s{sOB} offen offset:{t*1024}{STO}")
    g.e(f"""
    s_add_u32 s{sCUR}, s{sCUR}, 0x400000
    s_add_u32 s{sNXT}, s{sNXT}, 0x400000
    s_add_u32 s{sOB}, s{sOB}, {0 if opt.get("osame") else 0x80000}
    s_cmp_eq_u32 s{sLAST}, 1
    s_cbranch_scc0 L_A_DONE
    s_waitcnt vmcnt(0)
    s_barrier
    s_cmp_lg_u32 s{sW}, 0
    s_cbranch_scc1 L_A_DONE
    v_accvgpr_read_b32 v1, a166
    v_accvgpr_read_b32 v3, a164
    s_nop 0
    v_readfirstlane_b32 s{sT0}, v1
    v_readfirstlane_b32 s{sT1}, v3
    s_nop 3
    s_cmp_eq_u32 s{sT0}, 0
    s_cselect_b32 s{sNONCE}, s{sT1}, s{sT0}
    """)
    flag_store(0)
    g.e(f"L_A_DONE:\ns_add_u32 s{sITEM}, s{sITEM}, 1")
    tick(17); tick_store(); stamp()
    g.e(f"s_cmp_lt_u32 s{sITEM}, 4\ns_cbranch_scc1 L_ITEM")
    def xst(i):
        if opt.get("xstamps"):
            g.e(f"s_mov_b32 s101, s{sSEGN}\ns_mov_b32 s{sSEGN}, {i}"); stamp(); g.e(f"s_mov_b32 s{sSEGN}, s101")
    def phase_o4():
        dstamp(4)
        g.vm=[]; g.lg=[]
        g.e(f"s_lshl_b32 s{sT0}, s{sKH}, 6")
        for dt in range(16): g.e(f"v_xor_b32 v{vWOR+dt}, s{sT0}, v{vVR+dt}")
        g.e(f"v_add_u32 v{vOS2}, 0x40000, v{vOS}\nv_add_u32 v{vOS3}, 0x60000, v{vOS}")
        g.e(f"""
        s_cmp_lg_u32 s{sW}, 0
        s_cbranch_scc1 L_O_WAITB
        v_mov_b32 v1, {128*K1}
        v_mov_b32 v3, s{sNONCE}
        ds_write_b32 v1, v3
        s_mov_b32 s{sCNT}, 0
        s_mov_b64 exec, 0xff
        L_O_POLL:
        global_load_dword v3, v{vPA}, s[{sWS}:{sWS+1}] sc1
        s_add_u32 s{sCNT}, s{sCNT}, 1
        s_waitcnt vmcnt(0)
        v_cmp_eq_u32 vcc, s{sNONCE}, v3
        s_cmp_gt_u32 s{sCNT}, 0x40000
        s_cbranch_scc1 L_O_POLLX
        s_nop 1
        s_cmp_lg_u32 vcc_lo, 0xff
        s_cbranch_scc1 L_O_POLL
        L_O_POLLX:
        s_mov_b64 exec, -1
        s_waitcnt lgkmcnt(0)
        L_O_WAITB:
        s_barrier
        v_mov_b32 v1, {128*K1}
        ds_read_b32 v3, v1
        s_waitcnt lgkmcnt(0)
        v_readfirstlane_b32 s{sNONCE}, v3
        """)
        dstamp(5)
        if opt.get("stamps"):
            g.e(f"s_mov_b32 s101, s{sSEGN}\ns_mov_b32 s{sSEGN}, 9"); stamp(); g.e(f"s_mov_b32 s{sSEGN}, s101")
        OL=3; WL=5; OF=128; NS=16; OA4=128
        vQ=[vOS,vOS1,vOS2,vOS3]
        def cid(j): return j&8
        def o_txt(s_,k):
            rt,js=k>>1,k&1
            r=OF+(s_&3)*32+(rt*2+js)*4
            return f"buffer_load_dwordx4 {vr(r)}, v{vQ[rt]}, {sr(S_O)}, s{sKO} offen offset:{js*1024}{NTOO}"
        for s_ in range(OL):
            g.e(f"s_add_u32 s{sT0}, s{sPHO}, {s_}\ns_and_b32 s{sT0}, s{sT0}, 7\ns_lshl_b32 s{sT0}, s{sT0}, 11\ns_add_u32 s{sKO}, s{sT0}, s{sOOB}")
            for k in range(8): g.e(o_txt(s_,k))
        RD=[(js,nt,hf) for js in range(2) for nt in range(8) for hf in range(2)]
        def rd(u,js,nt,hf):
            r=64*(u&1)+(js*8+nt)*4+2*hf; sl=u&7
            g.lgop(f"ds_read_b64_tr_b16 a[{r}:{r+1}], v{vWOR+(8 if sl>=4 else 0)+nt} offset:{(sl&3)*SLOT+js*8192+hf*4096}",('A',u,js,nt))
        for (js,nt,hf) in RD: rd(0,js,nt,hf)
        g.e(f"""s_add_u32 s{sT0}, s{sPHO}, {WL}
        s_and_b32 s{sT0}, s{sT0}, 7
        s_lshl_b32 s{sWLO}, s{sT0}, 17
        s_add_u32 s{sT0}, s{sPHO}, {OL}
        s_and_b32 s{sT0}, s{sT0}, 7
        s_lshl_b32 s{sOLO}, s{sT0}, 11""")
        for u in range(NS):
            yv=8*len([j for j in range(u+1,min(u+OL,NS))])
            n=min(12,yv)
            if u+1<NS and u+1>=NWOP:
                yd=4*len([j for j in range(u+2,min(u+WL,NS))])
                n=min(n,yd)
            g.e(f"s_waitcnt vmcnt({n})")
            g.e("s_barrier")
            tick(u)
            G_=Gaps(64)
            if u+WL<NS:
                if u+WL==8: G_.put_post(0,S(f"s_add_u32 s{sWOB}, s{sWOB}, {8<<17}"))
                G_.put_post(1,S(f"s_add_u32 s{sKWO}, s{sWLO}, s{sWOB}"))
                G_.put_post(2,S(f"s_add_u32 m0, s{sWOFF}, {((u+WL)&7)*SLOT}"))
                G_.put_post(20,S(f"s_add_u32 s{sWLO}, s{sWLO}, {1<<17}"))
                G_.put_post(21,S(f"s_and_b32 s{sWLO}, s{sWLO}, {7<<17}"))
                for j,p in enumerate([3,19,35,51]):
                    G_.mem[p]=(lambda j=j: g.e(f"buffer_load_dwordx4 v{vWOD+j}, {sr(S_WO)}, s{sKWO} offen offset:{1024*j}{NTO} lds"))
            if u+OL<NS:
                if u+OL==8: G_.put_post(4,S(f"s_add_u32 s{sOOB}, s{sOOB}, {8<<11}"))
                G_.put_post(5,S(f"s_add_u32 s{sKO}, s{sOLO}, s{sOOB}"))
                G_.put_post(61,S(f"s_add_u32 s{sOLO}, s{sOLO}, {1<<11}"))
                G_.put_post(62,S(f"s_and_b32 s{sOLO}, s{sOLO}, {7<<11}"))
                for k,p in enumerate([7,13,23,29,39,45,55,60]):
                    G_.mem[p]=(lambda k=k,u=u: g.e(o_txt(u+OL,k)))
            if u+1<NS:
                for n_,(js,nt,hf) in enumerate(RD):
                    G_.put_mem(n_*58/32.0,lambda js=js,nt=nt,hf=hf,u=u: rd(u+1,js,nt,hf),hi=62)
            M=[]
            for js in range(2):
                for nt in range(8):
                    for rt in range(4):
                        d=OA4+(rt*8+nt)*4
                        txt=f"v_mfma_f32_16x16x32_bf16 {ar(d)}, {ar(64*(u&1)+(js*8+nt)*4)}, {vr(OF+(u&3)*32+(rt*2+js)*4)}, {'0' if (u==0 and js==0) else ar(d)}"
                        if rt==0: M.append(lambda txt=txt,u=u,js=js,nt=nt: (g.lgwait(('A',u,js,nt)), g.e(txt)))
                        else: M.append(txt)
            G_.emit(g,M)
        tick(16); tick(17); tick_store(); stamp(); dstamp(6)
        g.e("s_nop 7")
        for d in range(1,4):
            for hb in range(2):
                g.e(f"s_add_u32 s{sT1}, s{sEXW}, {(d-1)*8192+hb*4096}")
                for rr in range(2):
                    rt=2*hb+rr
                    for m in range(2):
                        g.e(f"buffer_store_dwordx4 {ar(OA4+(rt*8+2*d+m)*4)}, v{vOS}, {sr(S_O)}, s{sT1} offen offset:{(rr*2+m)*1024} sc1")
        for rt in range(4):
            for m in range(2):
                for q in range(4): g.e(f"v_accvgpr_read_b32 v{224+(rt*2+m)*4+q}, a{OA4+(rt*8+m)*4+q}")
        g.e(f"""
        v_lshrrev_b32 v3, 4, v0
        v_and_b32 v4, 15, v0
        v_lshlrev_b32 v5, 3, v3
        v_lshl_add_u32 v52, v4, 12, v5
        s_lshl_b32 s{sCNT}, s{sW}, 2
        s_add_u32 s{sCNT}, s{sCNT}, 16
        v_add_u32 v5, 1, v0
        v_xor_b32 v5, s2, v5
        v_lshlrev_b32 v5, 7, v5
        s_add_u32 s{sT0}, s{sCNT}, {FLAG_OFF}
        v_add_u32 v53, s{sT0}, v5
        s_waitcnt vmcnt(0)
        """)
        xst(11)
        flag_store(f"s{sCNT}")
        g.e(f"""
        s_mov_b32 s{sCNT}, 0
        s_mov_b64 exec, 7
        L_X_POLL:
        global_load_dword v3, v53, s[{sWS}:{sWS+1}] sc1
        s_add_u32 s{sCNT}, s{sCNT}, 1
        s_waitcnt vmcnt(0)
        v_cmp_eq_u32 vcc, s{sNONCE}, v3
        s_cmp_gt_u32 s{sCNT}, 0x40000
        s_cbranch_scc1 L_X_POLLX
        s_nop 1
        s_cmp_lg_u32 vcc_lo, 7
        s_cbranch_scc1 L_X_POLL
        L_X_POLLX:
        s_mov_b64 exec, -1
        """)
        xst(12)
        for d in range(1,4):
            g.e(f"s_xor_b32 s{sT0}, s2, {d}\ns_mul_i32 s{sT0}, s{sT0}, 98304\ns_mul_i32 s{sT1}, s{sW}, 24576\ns_add_u32 s{sT0}, s{sT0}, s{sT1}\ns_add_u32 s{sEXR}, s{sT0}, {EXCH_OFF+(d-1)*8192}")
            for hb in range(2):
                if hb==1: g.e(f"s_add_u32 s{sEXR}, s{sEXR}, 4096")
                for k in range(4):
                    g.e(f"buffer_load_dwordx4 {vr(128+((d-1)*8+hb*4+k)*4)}, v{vOS}, {sr(S_O)}, s{sEXR} offen offset:{k*1024} sc1")
        g.e("s_waitcnt vmcnt(0)")
        xst(13)
        for rt in range(4):
            if rt>0: g.e(f"s_add_u32 s{sOUTB}, s{sOUTB}, 0x10000")
            for m in range(2):
                dd=224+(rt*2+m)*4
                for d in range(3):
                    r=128+(d*8+rt*2+m)*4
                    for q in range(4): g.e(f"v_add_f32 v{dd+q}, v{dd+q}, v{r+q}")
                g.e(f"""v_cvt_pk_bf16_f32 v{dd}, v{dd}, v{dd+1}
                v_cvt_pk_bf16_f32 v{dd+1}, v{dd+2}, v{dd+3}
                buffer_store_dwordx2 v[{dd}:{dd+1}], v52, {sr(S_OUT)}, s{sOUTB} offen offset:{m*32}{opt.get("st_out","")}""")
    def phase_o2():
        dstamp(4)
        g.vm=[]; g.lg=[]
        tick(40)
        g.e(f"s_lshl_b32 s{sT0}, s{sKH}, 7")
        for dt in range(16): g.e(f"v_xor_b32 v{vWOR+dt}, s{sT0}, v{vVR+dt}")
        g.e("v_mov_b32 v1, 0")
        for r in range(64): g.e(f"v_accvgpr_write_b32 a{OACC+r}, v1")
        g.e(f"""
        s_cmp_lg_u32 s{sW}, 0
        s_cbranch_scc1 L_O_WAITB
        v_mov_b32 v1, {128*K1}
        v_mov_b32 v3, s{sNONCE}
        ds_write_b32 v1, v3
        s_mov_b32 s{sCNT}, 0
        s_mov_b64 exec, 0xffff
        L_O_POLL:
        global_load_dword v3, v{vPA}, s[{sWS}:{sWS+1}] sc1
        s_add_u32 s{sCNT}, s{sCNT}, 1
        s_waitcnt vmcnt(0)
        v_cmp_eq_u32 vcc, s{sNONCE}, v3
        s_cmp_gt_u32 s{sCNT}, 0x40000
        s_cbranch_scc1 L_O_POLLX
        s_nop 1
        s_cmp_lg_u32 vcc_lo, 0xffff
        s_cbranch_scc1 L_O_POLL
        L_O_POLLX:
        s_mov_b64 exec, -1
        s_waitcnt lgkmcnt(0)
        L_O_WAITB:
        s_barrier
        v_mov_b32 v1, {128*K1}
        ds_read_b32 v3, v1
        s_waitcnt lgkmcnt(0)
        v_readfirstlane_b32 s{sNONCE}, v3
        """)
        tick(41); dstamp(5)
        if opt.get("stamps"):
            g.e(f"s_mov_b32 s101, s{sSEGN}\ns_mov_b32 s{sSEGN}, 9"); stamp(); g.e(f"s_mov_b32 s{sSEGN}, s101")
        OL=3; WL=NWOP; OF=128; NCH=32
        def o_1(st,k,srdn,tag=None):
            rt,js=k>>1,k&1
            r=OF+st*16+(rt*2+js)*4
            g.e(f"buffer_load_dwordx4 {vr(r)}, v{vOS if rt==0 else vOS1}, {sr(srdn)}, s{sKO} offen offset:{js*1024}{NTOO}")
        for c in range(OL):
            g.e(f"s_add_u32 s{sT0}, s{sPHO}, {c}\ns_and_b32 s{sT0}, s{sT0}, 7\ns_lshl_b32 s{sT0}, s{sT0}, 11\ns_add_u32 s{sKO}, s{sT0}, s{sOOB}")
            for k in range(4): o_1(c,k,S_O)
        RD=[(js,nt,hf) for js in range(2) for nt in range(8) for hf in range(2)]
        def a_read2(u,js,nt,hf):
            r=64*(u&1)+(js*8+nt)*4+2*hf
            sl=u&7
            g.lgop(f"ds_read_b64_tr_b16 a[{r}:{r+1}], v{vWOR+(8 if sl>=4 else 0)+nt} offset:{(sl&3)*SLOT+js*8192+hf*4096}",('A',u&1,js,nt))
        for (js,nt,hf) in RD: a_read2(0,js,nt,hf)
        g.e(f"""s_add_u32 s{sT0}, s{sPHO}, {WL}
        s_and_b32 s{sT0}, s{sT0}, 7
        s_lshl_b32 s{sWLO}, s{sT0}, 17
        s_add_u32 s{sT0}, s{sPHO}, {OL}
        s_and_b32 s{sT0}, s{sT0}, 7
        s_lshl_b32 s{sOLO}, s{sT0}, 11
        s_mov_b32 s{sJ}, 0""")
        def body(u):
            g.e(f"s_waitcnt vmcnt(8)")
            g.e("s_barrier")
            if opt.get("steps"): g.e(f"s_memtime s[96:97]\ns_waitcnt lgkmcnt(0)\ns_sub_u32 s99, s96, s98\ns_mov_b32 s98, s96\nv_readlane_b32 s97, v62, {u}\ns_nop 3\ns_add_u32 s97, s97, s99\ns_nop 0\nv_writelane_b32 v62, s97, {u}"); g.lg=[]
            G_=Gaps(32)
            vp=opt.get("o_vpos",[3,7,11,15,19,23,27,31])
            if u+WL==8:
                G_.put_post(0,S(f"s_add_u32 s{sWOB}, s{sWOB}, {8<<17}\ns_cmp_lt_u32 s{sJ}, {NCH-8}\ns_cselect_b32 s{S_WON+2}, {8*MB}, 0"))
            G_.put_post(1,S(f"s_add_u32 s{sKWO}, s{sWLO}, s{sWOB}"))
            G_.put_post(2,S(f"s_add_u32 m0, s{sWOFF}, {((u+WL)&7)*SLOT}"))
            if u+OL==8:
                G_.put_post(4,S(f"s_add_u32 s{sOOB}, s{sOOB}, {8<<11}\ns_cmp_lt_u32 s{sJ}, {NCH-8}\ns_cselect_b32 s{S_ON+2}, {WS_SRD}, 0"))
            G_.put_post(5,S(f"s_add_u32 s{sKO}, s{sOLO}, s{sOOB}"))
            G_.put_post(8,S(f"s_add_u32 s{sWLO}, s{sWLO}, {1<<17}"))
            G_.put_post(9,S(f"s_and_b32 s{sWLO}, s{sWLO}, {7<<17}"))
            G_.put_post(12,S(f"s_add_u32 s{sOLO}, s{sOLO}, {1<<11}"))
            G_.put_post(13,S(f"s_and_b32 s{sOLO}, s{sOLO}, {7<<11}"))
            for j in range(4):
                G_.mem[vp[2*j]]=(lambda j=j: g.e(f"buffer_load_dwordx4 v{vWOD+j}, {sr(S_WON)}, s{sKWO} offen offset:{1024*j}{NTO} lds"))
                G_.mem[vp[2*j+1]]=(lambda j=j,u=u: o_1((u+OL)&3,j,S_ON))
            rend=opt.get("o_rend",30)
            for n_,(js,nt,hf) in enumerate(RD):
                G_.put_mem(n_*rend/32.0,lambda js=js,nt=nt,hf=hf,u=u: a_read2(u+1,js,nt,hf))
            M=[]
            for js in range(2):
                for nt in range(8):
                    for rt in range(2):
                        d=OACC+(rt*8+nt)*4
                        txt=f"v_mfma_f32_16x16x32_bf16 {ar(d)}, {ar(64*(u&1)+(js*8+nt)*4)}, {vr(OF+(u&3)*16+(rt*2+js)*4)}, {ar(d)}"
                        if rt==0: M.append(lambda txt=txt,u=u,js=js,nt=nt: (g.lgwait(('A',u&1,js,nt)), g.e(txt)))
                        else: M.append(txt)
            G_.emit(g,M)
        save=list(g.L)
        for u in range(8): body(u)
        lg_end=list(g.lg)
        g.L=save; g.lg=list(lg_end)
        g.e("s_waitcnt lgkmcnt(0)")
        if opt.get("steps"): g.e("v_mov_b32 v62, 0\ns_memtime s[98:99]\ns_waitcnt lgkmcnt(0)")
        g.label("L_O_LOOP")
        for u in range(8): body(u)
        assert g.lg==lg_end
        g.e(f"s_add_u32 s{sJ}, s{sJ}, 8\ns_cmp_lt_u32 s{sJ}, {NCH}\ns_cbranch_scc1 L_O_LOOP\ns_waitcnt lgkmcnt(0)")
        tick_store(); stamp(); dstamp(6)
        g.e("s_nop 7")
        for rt in range(2):
            if rt==1: g.e(f"s_add_u32 s{sEXW}, s{sEXW}, 4096")
            for m in range(4):
                d=OACC+(rt*8+4+m)*4
                g.e(f"buffer_store_dwordx4 {ar(d)}, v{vOS}, {sr(S_O)}, s{sEXW} offen offset:{m*1024} sc1")
        for rt in range(2):
            for m in range(4):
                for q in range(4): g.e(f"v_accvgpr_read_b32 v{128+(rt*4+m)*4+q}, a{OACC+(rt*8+m)*4+q}")
        g.e(f"""
        v_lshrrev_b32 v3, 4, v0
        v_and_b32 v4, 15, v0
        v_lshlrev_b32 v5, 3, v3
        v_lshl_add_u32 v52, v4, 12, v5
        s_lshl_b32 s{sCNT}, s{sW}, 2
        s_add_u32 s{sCNT}, s{sCNT}, 16
        s_waitcnt vmcnt(0)
        """)
        xst(11)
        flag_store(f"s{sCNT}")
        g.e(f"""
        s_xor_b32 s{sT0}, s2, 128
        s_lshl_b32 s{sT0}, s{sT0}, 7
        s_add_u32 s{sT0}, s{sT0}, {FLAG_OFF}
        s_add_u32 s{sT0}, s{sT0}, s{sCNT}
        v_mov_b32 v1, s{sT0}
        s_mov_b32 s{sCNT}, 0
        s_mov_b64 exec, 1
        L_X_POLL:
        global_load_dword v3, v1, s[{sWS}:{sWS+1}] sc1
        s_add_u32 s{sCNT}, s{sCNT}, 1
        s_waitcnt vmcnt(0)
        v_readfirstlane_b32 s{sT0}, v3
        s_cmp_gt_u32 s{sCNT}, 0x40000
        s_cbranch_scc1 L_X_POLLX
        s_cmp_lg_u32 s{sT0}, s{sNONCE}
        s_cbranch_scc1 L_X_POLL
        L_X_POLLX:
        s_mov_b64 exec, -1
        """)
        xst(12)
        for rt in range(2):
            if rt==1: g.e(f"s_add_u32 s{sEXR}, s{sEXR}, 4096")
            for m in range(4):
                r=192+(rt*4+m)*4
                g.e(f"buffer_load_dwordx4 {vr(r)}, v{vOS}, {sr(S_O)}, s{sEXR} offen offset:{m*1024} sc1")
        for rt in range(2):
            if rt==1: g.e(f"s_add_u32 s{sOUTB}, s{sOUTB}, 0x10000")
            for m in range(4):
                d=128+(rt*4+m)*4; r=192+(rt*4+m)*4
                if rt==0 and m==0:
                    g.e("s_waitcnt vmcnt(0)"); xst(13)
                for q in range(4): g.e(f"v_add_f32 v{d+q}, v{d+q}, v{r+q}")
                g.e(f"""v_cvt_pk_bf16_f32 v{d}, v{d}, v{d+1}
                v_cvt_pk_bf16_f32 v{d+1}, v{d+2}, v{d+3}
                buffer_store_dwordx2 v[{d}:{d+1}], v52, {sr(S_OUT)}, s{sOUTB} offen offset:{m*32}{opt.get("st_out","")}""")
    phase_o4() if O4 else phase_o2()
    stamp()
    if opt.get("dstamps"):
        g.e("s_waitcnt vmcnt(0)"); dstamp(7)
    if opt.get("stamps"):
        g.e("s_waitcnt vmcnt(0)")
        g.e(f"s_mov_b32 s{sSEGN}, 10")
        stamp()
    g.label("L_END")
    g.e("s_endpgm")
    return g.text()

def build(opt):
    s="; @launch grid=(256,1,1) block=(256,1,1) lds=163840\n"
    s+=""";
;
;            row sums from an extra MFMA with a ones operand; K/V stream through an 8-slot LDS ring (non-temporal loads).
;  phase O : out tile 128 x 128 over half of K (split-K 2): o fragments straight to registers, wo through the LDS ring.
;  phase X : the two K halves exchange fp32 partial tiles through the workspace, add, round to bf16, store.
;  Hand-offs between workgroups use write-through stores + per-workgroup flag words in the workspace; flags carry a
;  per-launch tag agreed through d_debug (zero at launch), so stale workspace contents never match.  Counted vmcnt waits
"""
    s+='.amdgcn_target "amdgcn-amd-amdhsa--gfx950"\n'
    s+=f".text\n.globl {KN}\n.p2align 8\n.type {KN},@function\n{KN}:\n"
    s+=gen(opt)
    s+=f""".section .rodata,"a"
.p2align 6
.amdhsa_kernel {KN}
  .amdhsa_next_free_vgpr 512
  .amdhsa_next_free_sgpr 102
  .amdhsa_accum_offset 256
  .amdhsa_group_segment_fixed_size 0
  .amdhsa_kernarg_size 104
  .amdhsa_user_sgpr_count 2
  .amdhsa_user_sgpr_kernarg_segment_ptr 1
  .amdhsa_system_sgpr_workgroup_id_x 1
.end_amdhsa_kernel
"""
    return s
if __name__=="__main__":
    opt=json.loads(sys.argv[2]) if len(sys.argv)>2 else {}
    open(sys.argv[1],"w").write(build(opt))
```

```python
import sys, struct, math, json
from gl import *
KN="concat_heads__mha_block_cached__mha_block_cached__near_ridge_kernel"
C_SCALE=struct.unpack("<I",struct.pack("<f",math.log2(math.e)/math.sqrt(128.0)))[0]
K1=1024; MB=K1*K1
EXCH_OFF=16*MB; FLAG_OFF=44*MB; STAMP_OFF=48*MB; WS_SRD=48*MB
SLOT=16384; LA=7; NPRE=3
WQBASE=48*K1; XBASE=96*K1
WO_AREA=[128*K1,144*K1,96*K1,112*K1]; WO_RB=96*K1

def gen(opt):
    opt=dict(opt); opt.setdefault('thra',4); opt.setdefault('thra_skip',3); opt.setdefault('late',1); opt.setdefault('odefer',1)
    g=G()
    S=lambda txt: (lambda: g.e(txt))
    NT=opt.get('nt_kv',' nt')
    NTX=opt.get("nt_x",""); NTW=opt.get("nt_wq",""); NTO=opt.get("nt_wo",""); NTOO=opt.get("nt_o"," sc1"); STO=opt.get("st_o"," sc1")
    FULL=opt.get("fullrot",0); KM=15 if FULL else 7
    O4=opt.get("o4",0)
    NWOP=5 if O4 else opt.get("nwop",7)
    KREG={int(k):v for k,v in opt.get("kreg",{3:3,6:4,9:5,13:6}).items()}
    KRI={c:n for n,c in enumerate(sorted(KREG.values()))}
    KPRE={int(k):v for k,v in opt.get("kpre",{10:0,12:1,14:2}).items()}
    sPA=7;sKRG=7;sSIG=3;sKRO=100;sQ1=5;sQ2=6;sQ3=4;sPOL=88;sJ=4;sLAST=5;sCNT=6
    S_X=8;S_WQ=12;S_K=16;S_V=20;S_KN=24;S_O=28;S_WO=32;S_OUT=36;S_WON=40
    sW=44;sBR=45;sH=46;sBG=47;sRB=48;sCB=49;sKH=50;sPHI=51;sPHO=52
    sWQB=53;sKX=54;sKW=55;sXT=56;sWT=57;sT0=58;sT1=59
    sCUR=60;sNXT=61;sITEM=62;sOB=63;sC=64;sWOFF=65;sXL=66;sWL=67
    sMASK=68
    sXB=70
    sNONCE=74;sWOB=75;sOOB=76;sKWO=77;sKO=78;sWLO=79;sOLO=80;sOUTB=81;sEXW=82;sEXR=83
    S_ON=84
    sSEGN=89; sWS=90; sDBG=92; sSTB=94
    vKD=8; vVD=12; vKR=14; vVR=22; vOS=38; vOS1=39; vWOD=40; vPA=44; vTCH=45; sTCH=88; vOS2=45; vOS3=63
    vXD=46; vXR=48; vWD=50; vWR=54
    TA=52; vWOR=46
    QF=64; ACC=128
    OA=128; LAcc=160; ONES=168; QCUR=172; OACC=192
    def stamp():
        if not opt.get("stamps"): return
        g.e(f"""
        s_memrealtime s[96:97]
        s_memtime s[98:99]
        s_waitcnt lgkmcnt(0)
        v_mov_b32 v2, s96
        v_mov_b32 v3, s98
        s_lshl_b32 s96, s2, 7
        s_lshl_b32 s97, s{sSEGN}, 3
        s_add_u32 s96, s96, s97
        v_mov_b32 v1, s96
        global_store_dwordx2 v1, v[2:3], s[{sSTB}:{sSTB+1}]
        s_add_u32 s{sSEGN}, s{sSEGN}, 1
        """)
        g.lg=[]
        g.vm.append('stamp') if False else None
    def dstamp(word,neg=False):
        if not opt.get("dstamps"): return
        n=f"L_DS{word}"
        g.e(f"""
        s_cmp_lg_u32 s{sW}, 0
        s_cbranch_scc1 {n}
        s_memrealtime s[96:97]
        s_waitcnt lgkmcnt(0)
        {"s_not_b32 s96, s96" if neg else ""}
        v_mov_b32 v2, s96
        v_mov_b32 v1, {word*4}
        s_mov_b64 exec, 1
        global_atomic_umax v1, v2, s[{sDBG}:{sDBG+1}]
        s_mov_b64 exec, -1
        {n}:
        """)
        g.lg=[]
    def tick(k):
        if opt.get("steps"):
            g.e(f"s_memtime s[96:97]\ns_waitcnt lgkmcnt(0)\nv_writelane_b32 v62, s96, {k}"); g.lg=[]
    def tick_store():
        if opt.get("steps"):
            g.e(f"s_lshl_b32 s96, s2, 12\ns_lshl_b32 s97, s{sSEGN}, 8\ns_add_u32 s96, s96, s97\ns_add_u32 s96, s96, {MB}\nv_lshlrev_b32 v1, 2, v0\nv_add_u32 v1, s96, v1\nglobal_store_dword v1, v62, s[{sSTB}:{sSTB+1}]")
    if opt.get("stamps"): g.e("s_memrealtime s[88:89]\ns_waitcnt lgkmcnt(0)\ns_mov_b32 s101, s88")
    g.e(f"""
    s_cmp_ge_u32 s2, 256
    s_cbranch_scc1 L_END
    s_load_dwordx4 s[96:99], s[0:1], 80
    s_load_dwordx2 s[{sWS}:{sWS+1}], s[0:1], 96
    s_and_b32 s3, s2, 7                          ; xcd
    s_lshr_b32 s4, s2, 3                         ; idx
    s_lshr_b32 s{sBR}, s3, 2
    s_and_b32 s5, s3, 3
    s_lshl_b32 s5, s5, 3
    s_and_b32 s6, s4, 7
    s_add_u32 s{sH}, s5, s6
    s_lshr_b32 s{sBG}, s4, 3
    s_lshl_b32 s7, s{sBG}, 1
    s_add_u32 s7, s7, s6
    s_and_b32 s{sPHI}, s7, 7
    {"s_lshl_b32 s"+str(sPHI)+", s"+str(sPHI)+", 1" if FULL else ""}
    ; O mapping
    s_lshr_b32 s5, s3, 1
    s_and_b32 s5, s5, 1
    s_lshl_b32 s5, s5, 2
    s_and_b32 s6, s4, 3
    s_add_u32 s{sRB}, s5, s6
    s_and_b32 s5, s3, 1
    s_lshl_b32 s5, s5, 2
    s_lshr_b32 s7, s4, 2
    s_and_b32 s7, s7, 3
    s_add_u32 s{sCB}, s5, s7
    s_lshr_b32 s{sKH}, s4, 4
    s_add_u32 s{sPHO}, s6, s7
    s_and_b32 s{sPHO}, s{sPHO}, 3
    s_lshl_b32 s{sPHO}, s{sPHO}, 1
    s_mul_i32 s5, s{sBR}, 40
    s_add_u32 s4, s0, s5
    s_addc_u32 s5, s1, 0
    s_load_dwordx4 s[8:11], s[4:5], 0            ; x, k
    s_load_dwordx4 s[12:15], s[4:5], 16          ; v, wq
    s_load_dwordx2 s[16:17], s[4:5], 32          ; wo
    v_lshrrev_b32 v1, 6, v0
    v_and_b32 v0, 63, v0
    s_nop 0
    v_readfirstlane_b32 s{sW}, v1
    """)
    g.e(f"""
    v_lshrrev_b32 v1, 3, v0              ; r8
    v_and_b32 v2, 7, v0                  ; p8
    v_lshrrev_b32 v3, 4, v0              ; rr / g
    v_and_b32 v4, 15, v0                 ; p16 / q / key
    v_xor_b32 v5, v2, v3
    v_lshlrev_b32 v5, 4, v5
    v_lshl_add_u32 v{vXD}, v1, 11, v5
    v_xor_b32 v5, 64, v5
    v_lshl_add_u32 v5, v1, 11, v5
    v_add_u32 v{vXD+1}, {8*2048-1024}, v5
    v_lshrrev_b32 v5, 1, v4
    v_xor_b32 v5, v5, v3
    v_lshlrev_b32 v5, 4, v5
    v_lshl_add_u32 v5, v4, 7, v5
    s_lshl_b32 s{sXL}, s{sW}, 14
    s_add_u32 s{sXL}, s{sXL}, {XBASE}
    v_add_u32 v{vXR}, s{sXL}, v5
    v_xor_b32 v{vXR+1}, 64, v{vXR}
    v_and_b32 v5, 1, v3
    v_and_b32 v6, 2, v3
    v_lshl_or_b32 v5, v6, 1, v5          ; f0
    v_xor_b32 v5, v5, v4                 ; p ^ f0
    """)
    for j in range(4):
        g.e(f"""
        v_xor_b32 v6, {8*(j>>1)}, v5
        v_lshlrev_b32 v6, 4, v6
        v_lshl_add_u32 v6, v3, 13, v6
        v_add_u32 v{vWD+j}, {4*j*8192-1024*j}, v6
        """)
    g.e(f"""
    v_lshrrev_b32 v5, 2, v4              ; rp
    v_and_b32 v6, 3, v0                  ; c
    v_and_b32 v7, 1, v5
    v_and_b32 v1, 2, v5
    v_lshl_or_b32 v7, v1, 1, v7
    v_and_b32 v1, 1, v3
    v_lshl_or_b32 v7, v1, 3, v7          ; f
    v_xor_b32 v7, v7, v6                 ; c ^ f
    v_lshlrev_b32 v7, 4, v7
    v_and_b32 v1, 1, v6
    v_lshl_or_b32 v7, v1, 3, v7          ; + 8*(c&1)
    v_lshl_add_u32 v1, v3, 3, v5         ; 8kg+rp
    v_lshl_add_u32 v7, v1, 8, v7
    v_add_u32 v7, {WQBASE}, v7
    """)
    for dt in range(8):
        t,u=dt>>1,dt&1
        g.e(f"v_xor_b32 v{vWR+dt}, {(t<<6)^(u<<3)}, v7")
    for j in range(4):
        g.e(f"""
        v_add_u32 v5, {4*(j&1)}, v3
        v_lshlrev_b32 v5, 1, v5
        v_xor_b32 v5, v5, v4
        v_lshlrev_b32 v5, 4, v5
        v_lshl_add_u32 v5, v3, 11, v5
        v_add_u32 v{vWOD+j}, {4*j*2048-1024*j}, v5
        """)
    if O4:
        g.e(f"""
        v_and_b32 v5, 7, v0
        s_lshl_b32 s{sT0}, s{sBG}, 3
        v_add_u32 v5, s{sT0}, v5
        s_and_b32 s{sT0}, s2, 7
        v_lshlrev_b32 v5, 3, v5
        v_add_u32 v5, s{sT0}, v5
        v_lshlrev_b32 v5, 7, v5
        v_add_u32 v{vPA}, {FLAG_OFF}, v5
        """)
    else:
        g.e(f"""
        s_lshl_b32 s{sT0}, s{sKH}, 4
        v_add_u32 v5, s{sT0}, v4             ; h = 16kh + t
        v_lshrrev_b32 v6, 3, v5              ; h>>3
        s_lshl_b32 s{sT0}, s{sBR}, 2
        v_add_u32 v6, s{sT0}, v6             ; xcd'
        v_and_b32 v5, 7, v5
        s_lshr_b32 s{sT0}, s{sRB}, 1
        s_lshl_b32 s{sT0}, s{sT0}, 3
        v_add_u32 v5, s{sT0}, v5             ; idx'
        v_lshl_add_u32 v5, v5, 3, v6         ; wg'
        v_lshlrev_b32 v5, 7, v5
        s_mov_b32 s{sT0}, {FLAG_OFF}
        v_add_u32 v{vPA}, s{sT0}, v5
        """)
    for j in range(4):
        g.e(f"""
        v_add_u32 v5, {4*j}, v3
        v_xor_b32 v5, v5, v4
        v_lshlrev_b32 v5, 4, v5
        v_lshl_add_u32 v{vKD+j}, v3, 8, v5
        """)
    g.e(f"""
    v_xor_b32 v5, v3, v4
    v_lshlrev_b32 v5, 4, v5
    v_lshl_add_u32 v5, v4, 8, v5
    """)
    for t in range(4): g.e(f"v_xor_b32 v{vKR+t}, {t<<6}, v5\nv_add_u32 v{vKR+4+t}, 0x10000, v{vKR+t}")
    for jp in range(2):
        g.e(f"""
        v_add_u32 v5, {4*jp}, v3
        v_lshlrev_b32 v5, 1, v5
        v_xor_b32 v5, v5, v4
        v_lshlrev_b32 v5, 4, v5
        v_lshl_add_u32 v{vVD+jp}, v3, 8, v5
        """)
    g.e(f"""
    v_lshrrev_b32 v5, 2, v4              ; rp
    v_and_b32 v6, 3, v0                  ; c
    v_and_b32 v7, 1, v3
    v_lshl_add_u32 v7, v7, 2, v5         ; 4(g&1)+rp
    v_lshlrev_b32 v7, 1, v7
    v_lshrrev_b32 v1, 1, v6
    v_xor_b32 v7, v7, v1
    v_lshlrev_b32 v7, 4, v7
    v_and_b32 v1, 1, v6
    v_lshl_or_b32 v7, v1, 3, v7
    v_lshl_add_u32 v1, v3, 2, v5         ; 4g+rp
    v_lshl_add_u32 v7, v1, 8, v7
    """)
    for dt in range(8): g.e(f"v_xor_b32 v{vVR+dt}, {dt<<5}, v7\nv_add_u32 v{vVR+8+dt}, 0x10000, v{vVR+dt}")
    g.e(f"v_lshlrev_b32 v{vTCH}, 7, v0")
    g.e(f"s_and_b32 s{sT0}, s2, 3\ns_lshl_b32 s{sT0}, s{sT0}, 5\ns_lshr_b32 s{sT1}, s2, 3\ns_add_u32 s{sT0}, s{sT0}, s{sT1}\ns_lshl_b32 s{sTCH}, s{sT0}, 16\ns_lshl_b32 s{sT0}, s{sW}, 14\ns_add_u32 s{sTCH}, s{sTCH}, s{sT0}")
    g.e(f"v_lshlrev_b32 v{vOS}, 4, v0\nv_add_u32 v{vOS1}, 0x20000, v{vOS}\nv_mov_b32 v1, 0x3f803f80")
    for r in range(4): g.e(f"v_accvgpr_write_b32 a{ONES+r}, v1")
    g.e("s_waitcnt lgkmcnt(0)")
    def mk(s,lo,hi,size): g.e(f"s_mov_b32 s{s}, s{lo}\ns_and_b32 s{s+1}, s{hi}, 0xffff\ns_mov_b32 s{s+2}, {size}\ns_mov_b32 s{s+3}, 0x20000")
    g.e(f"s_mov_b32 s{sDBG}, s98\ns_mov_b32 s{sDBG+1}, s99")
    mk(S_OUT,96,97,4*MB); mk(S_WO,16,17,8*MB); mk(S_WON,16,17,8*MB); mk(S_V,12,13,64*MB)
    mk(S_K,10,11,64*MB); mk(S_KN,10,11,64*MB)
    g.e(f"s_mov_b32 s4, s14\ns_mov_b32 s5, s15\ns_and_b32 s{S_X+1}, s9, 0xffff\ns_mov_b32 s{S_X+2}, {2*MB}\ns_mov_b32 s{S_X+3}, 0x20000")
    mk(S_WQ,4,5,8*MB); mk(S_O,sWS,sWS+1,WS_SRD); mk(S_ON,sWS,sWS+1,WS_SRD)
    g.e(f"""
    s_add_u32 s{sSTB}, s{sWS}, {STAMP_OFF}
    s_addc_u32 s{sSTB+1}, s{sWS+1}, 0
    s_mov_b32 s{sSEGN}, 0
    s_lshl_b32 s{sWOFF}, s{sW}, 12
    s_add_u32 s{sWL}, s{sWOFF}, {WQBASE}
    s_lshl_b32 s{sT0}, s{sBG}, 19
    s_lshl_b32 s{sT1}, s{sW}, 15
    s_add_u32 s{sXB}, s{sT0}, s{sT1}
    s_add_u32 s{sXB+1}, s{sXB}, 0x20000
    s_add_u32 s{sXB+2}, s{sXB}, 0x40000
    s_add_u32 s{sXB+3}, s{sXB}, 0x60000
    s_lshl_b32 s{sT0}, s{sW}, 17
    s_lshl_b32 s{sT1}, s{sH}, 8
    s_add_u32 s{sWQB}, s{sT0}, s{sT1}
    """)
    if opt.get("stamps"):
        g.e(f"v_mov_b32 v2, s101\nv_mov_b32 v3, 0\ns_lshl_b32 s96, s2, 7\ns_add_u32 s96, s96, 120\nv_mov_b32 v1, s96\nglobal_store_dwordx2 v1, v[2:3], s[{sSTB}:{sSTB+1}]")
    stamp()
    dstamp(2,True)
    O4B=f"""
        s_and_b32 s{sKH}, s2, 3                      ; kq
        s_lshr_b32 s{sT0}, s2, 3
        s_and_b32 s{sCB}, s{sT0}, 7                  ; cb
        s_lshl_b32 s{sT0}, s{sBG}, 1
        s_add_u32 s{sPHO}, s{sT0}, s{sCB}
        s_and_b32 s{sPHO}, s{sPHO}, 7
        s_lshl_b32 s{sWOB}, s{sKH}, 21
        s_lshl_b32 s{sT0}, s{sW}, 15
        s_add_u32 s{sWOB}, s{sWOB}, s{sT0}
        s_lshl_b32 s{sT0}, s{sCB}, 8
        s_add_u32 s{sWOB}, s{sWOB}, s{sT0}
        s_lshl_b32 s{sT0}, s{sBG}, 2
        s_add_u32 s{sT0}, s{sT0}, s{sW}
        s_lshl_b32 s{sOOB}, s{sT0}, 19
        s_lshl_b32 s{sOUTB}, s{sT0}, 18
        s_lshl_b32 s{sT0}, s{sBR}, 23
        s_add_u32 s{sOOB}, s{sOOB}, s{sT0}
        s_lshl_b32 s{sT0}, s{sKH}, 15
        s_add_u32 s{sOOB}, s{sOOB}, s{sT0}
        s_lshl_b32 s{sT0}, s{sBR}, 11
        s_add_u32 s{sOUTB}, s{sOUTB}, s{sT0}
        s_lshl_b32 s{sT0}, s{sCB}, 8
        s_add_u32 s{sOUTB}, s{sOUTB}, s{sT0}
        s_lshl_b32 s{sT0}, s{sKH}, 6
        s_add_u32 s{sOUTB}, s{sOUTB}, s{sT0}
        s_mul_i32 s{sEXW}, s2, 98304
        s_mul_i32 s{sT0}, s{sW}, 24576
        s_add_u32 s{sEXW}, s{sEXW}, s{sT0}
        s_add_u32 s{sEXW}, s{sEXW}, {EXCH_OFF}
    """
    def late_setup():
        g.e(f"""
        s_mov_b32 s{sC}, {C_SCALE}
        s_mov_b32 s{sMASK}, 0xffff0000
        s_mov_b32 s{sMASK+1}, 0xffff0000
        s_lshl_b32 s{sT0}, s{sBG}, 24
        s_lshl_b32 s{sT1}, s{sH}, 17
        s_add_u32 s{sCUR}, s{sT0}, s{sT1}
        s_add_u32 s{sCUR}, s{sCUR}, s{sWOFF}
        s_add_u32 s{sNXT}, s{sCUR}, 0x400000
        s_lshl_b32 s{sT0}, s{sBR}, 23
        s_lshl_b32 s{sT1}, s{sBG}, 21
        s_add_u32 s{sOB}, s{sT0}, s{sT1}
        s_lshl_b32 s{sT0}, s{sW}, 17
        s_add_u32 s{sOB}, s{sOB}, s{sT0}
        s_lshl_b32 s{sT0}, s{sH}, 12
        s_add_u32 s{sOB}, s{sOB}, s{sT0}
        s_lshl_b32 s{sT0}, s{sKH}, 22
        s_lshl_b32 s{sT1}, s{sW}, 15
        s_add_u32 s{sWOB}, s{sT0}, s{sT1}
        s_lshl_b32 s{sT0}, s{sCB}, 8
        s_add_u32 s{sWOB}, s{sWOB}, s{sT0}
        s_lshl_b32 s{sT0}, s{sRB}, 3
        s_lshl_b32 s{sT1}, s{sW}, 1
        s_add_u32 s{sT0}, s{sT0}, s{sT1}            ; 8rb+2w
        s_lshl_b32 s{sOUTB}, s{sT0}, 16
        s_lshl_b32 s{sOOB}, s{sT0}, 17
        s_lshl_b32 s{sT1}, s{sBR}, 23
        s_add_u32 s{sOOB}, s{sOOB}, s{sT1}
        s_lshl_b32 s{sT1}, s{sKH}, 16
        s_add_u32 s{sOOB}, s{sOOB}, s{sT1}
        s_lshl_b32 s{sT1}, s{sBR}, 11
        s_add_u32 s{sOUTB}, s{sOUTB}, s{sT1}
        s_lshl_b32 s{sT1}, s{sCB}, 8
        s_add_u32 s{sOUTB}, s{sOUTB}, s{sT1}
        s_lshl_b32 s{sT1}, s{sKH}, 7
        s_add_u32 s{sOUTB}, s{sOUTB}, s{sT1}
        s_lshl_b32 s{sT1}, s{sW}, 13
        s_lshl_b32 s{sEXW}, s2, 15
        s_add_u32 s{sEXW}, s{sEXW}, s{sT1}
        s_add_u32 s{sEXW}, s{sEXW}, {EXCH_OFF}
        s_xor_b32 s{sEXR}, s2, 128
        s_lshl_b32 s{sEXR}, s{sEXR}, 15
        s_add_u32 s{sEXR}, s{sEXR}, s{sT1}
        s_add_u32 s{sEXR}, s{sEXR}, {EXCH_OFF}
        s_lshr_b32 s{sT0}, s2, {opt.get("krot_sh",3)}
        s_and_b32 s{sT0}, s{sT0}, 7
        s_lshl_b32 s{sKRO}, s{sT0}, 14
        {O4B if O4 else ""}
        {("s_mov_b32 s"+str(sPOL)+", s"+str(sBR)) if opt.get("polsel")==1 else ("s_xor_b32 s"+str(sPOL)+", s"+str(sBR)+", 1") if opt.get("polsel")==2 else ""}
        s_mov_b32 s{sITEM}, 0
        s_mov_b32 s{sNONCE}, 0
        s_mov_b32 s{sPA}, 0
        s_mov_b32 s{sSIG}, 0
        s_cmp_lg_u32 s{sW}, 0
        s_cbranch_scc1 L_NONCE_DONE
        s_memrealtime s[96:97]
        s_waitcnt lgkmcnt(0)
        s_or_b32 s96, s96, 1
        v_mov_b32 v4, s96
        v_mov_b32 v5, 0
        v_accvgpr_write_b32 a164, v4
        v_accvgpr_write_b32 a165, v5
        s_mov_b64 exec, 1
        global_atomic_cmpswap a166, v5, a[164:165], s[{sDBG}:{sDBG+1}] sc0
        s_mov_b64 exec, -1
        L_NONCE_DONE:
        """)
    def flag_store(off):
        g.e(f"""
        s_lshl_b32 s{sT0}, s2, 7
        s_add_u32 s{sT0}, s{sT0}, {FLAG_OFF}
        s_add_u32 s{sT0}, s{sT0}, {off}
        v_mov_b32 v1, s{sT0}
        v_mov_b32 v3, s{sNONCE}
        s_mov_b64 exec, 1
        global_store_dword v1, v3, s[{sWS}:{sWS+1}] sc1
        s_mov_b64 exec, -1
        """)
    nsig=[0]
    def pending_signal():
        nsig[0]+=1; n=nsig[0]
        g.e(f"""
        s_cmp_eq_u32 s{sSIG}, 0
        s_cbranch_scc1 L_SG{n}
        s_cmp_lg_u32 s{sW}, 0
        s_cbranch_scc1 L_SGX{n}
        s_sub_u32 s{sCNT}, s{sSIG}, 1
        s_lshl_b32 s{sCNT}, s{sCNT}, 2
        """)
        flag_store(f"s{sCNT}")
        g.e(f"L_SGX{n}:\ns_mov_b32 s{sSIG}, 0\nL_SG{n}:")
    def kv_soff(dst,base,ch):
        if opt.get("krot"):
            return f"s_add_u32 s{dst}, s{sKRO}, {ch*16384}\ns_and_b32 s{dst}, s{dst}, 0x1ffff\ns_add_u32 s{dst}, s{dst}, s{base}"
        return f"s_add_u32 s{dst}, s{base}, {ch*16384}"
    def kv_group(cc):
        if cc<8: srdn,base,vo,ch=S_K,sCUR,[vKD+j for j in range(4)],cc
        elif cc<16: srdn,base,vo,ch=S_V,sCUR,[vVD+(j&1) for j in range(4)],cc-8
        else: srdn,base,vo,ch=S_KN,sNXT,[vKD+j for j in range(4)],cc-16
        return (f"s_add_u32 m0, s{sWOFF}, {(cc&7)*SLOT}\n"+kv_soff(sT1,base,ch),
                [f"buffer_load_dwordx4 v{vo[j]}, {sr(srdn)}, s{sT1} offen offset:{1024*j}{NT} lds" for j in range(4)])
    def wo_group(c,track,srdn=S_WO):
        g.e(f"s_add_u32 s{sT1}, s{sPHO}, {c}\ns_and_b32 s{sT1}, s{sT1}, 7\ns_lshl_b32 s{sT1}, s{sT1}, 17\ns_add_u32 m0, s{sWOFF}, {(c&7)*SLOT}\ns_add_u32 s{sT1}, s{sT1}, s{sWOB}")
        for j in range(4):
            t=f"buffer_load_dwordx4 v{vWOD+j}, {sr(srdn)}, s{sT1} offen offset:{1024*j}{NTO} lds"
            g.vmop(t,('wo',c)) if track else g.e(t)
    def kidx(s,dst,shift):
        g.e(f"s_add_u32 s{sT0}, s{sPHI}, {s}\ns_and_b32 s{sT0}, s{sT0}, {KM}\ns_or_b32 s{sT0}, s{sT0}, {0 if FULL else s&8}\ns_lshl_b32 s{dst}, s{sT0}, {shift}")
    def x_dma(s,i):
        slot=(s&1)*4+i
        g.e(f"s_add_u32 m0, s{sXL}, {slot*2048}\ns_add_u32 s{sT1}, s{sXB+i}, s{sKX}")
        for j in range(2): g.vmop(f"buffer_load_dwordx4 v{vXD+j}, {sr(S_X)}, s{sT1} offen offset:{1024*j}{NTX} lds",('x',s,i))
    def wq_dma(s):
        g.e(f"s_add_u32 m0, s{sWL}, {(s%3)*16384}\ns_add_u32 s{sT1}, s{sWQB}, s{sKW}")
        for j in range(4): g.vmop(f"buffer_load_dwordx4 v{vWD+j}, {sr(S_WQ)}, s{sT1} offen offset:{1024*j}{NTW} lds",('wq',s))
    def a_read(s,ks,dt,hf):
        r=64*(s&1)+(ks*8+dt)*4+2*hf
        g.lgop(f"ds_read_b64_tr_b16 a[{r}:{r+1}], v{vWR+dt} offset:{(s%3)*16384+ks*8192+hf*1024}",('A',s))
    def b_read(s,i,ks):
        n=s*4+i
        r=128+(n&1)*8+ks*4
        g.lgop(f"ds_read_b128 a[{r}:{r+3}], v{vXR+ks} offset:{((s&1)*4+i)*2048}",('B',s,i))
    tick(40)
    kidx(0,sKW,19); wq_dma(0)
    if opt.get("tlb"):
        late_setup()
        g.e(f"""
        v_lshlrev_b32 v1, 22, v0
        v_lshlrev_b32 v2, 20, v0
        v_mov_b32 v3, s{sOB}
        v_writelane_b32 v3, s{sOOB}, 1
        v_writelane_b32 v3, s{sEXW}, 2
        s_lshl_b32 s{sT0}, s2, 7
        s_add_u32 s{sT0}, s{sT0}, {FLAG_OFF}
        v_writelane_b32 v3, s{sT0}, 3
        s_mov_b32 m0, s{sWOFF}
        s_mov_b64 exec, 0xf
        """)
        g.vmop(f"buffer_load_dword v1, {sr(S_K)}, s{sCUR} offen{NT} lds",('tlb',))
        g.vmop(f"buffer_load_dword v1, {sr(S_V)}, s{sCUR} offen{NT} lds",('tlb',))
        g.vmop(f"buffer_load_dword v2, {sr(S_WO)}, s{sWOB} offen{NT} lds",('tlb',))
        g.vmop(f"buffer_load_dword v3, {sr(S_O)}, 0 offen{NT} lds",('tlb',))
        g.e("s_mov_b64 exec, 1")
        g.vmop(f"buffer_load_dword v1, {sr(S_OUT)}, s{sOUTB} offen{NT} lds",('tlb',))
        g.e("s_mov_b64 exec, -1")
    kidx(0,sKX,7)
    for i in range(4): x_dma(0,i)
    kidx(1,sKW,19); wq_dma(1)
    Q0=opt.get("q0fast",0)
    if not opt.get("qpro",0) and not Q0:
        kidx(1,sKX,7)
        for i in range(4): x_dma(1,i)
        kidx(2,sKW,19); wq_dma(2)
    tick(41)
    if not opt.get("tlb"): late_setup()
    tick(42)
    g.vmwait(('wq',0))
    tick(43)
    g.e("s_barrier")
    AR=[(ks,dt,hf) for ks in range(2) for dt in range(8) for hf in range(2)]
    for (ks,dt,hf) in AR: a_read(0,ks,dt,hf)
    g.vmwait(('x',0,0))
    tick(44)
    b_read(0,0,0); b_read(0,0,1)
    if opt.get("qpro",0) and not Q0:
        kidx(1,sKX,7)
        for i in range(4): x_dma(1,i)
        kidx(2,sKW,19); wq_dma(2)
    if Q0:
        g.e(f"s_add_u32 s{sT0}, s{sPHI}, 1\ns_and_b32 s{sT0}, s{sT0}, {KM}\ns_lshl_b32 s{sQ1}, s{sT0}, 7\ns_add_u32 s{sT0}, s{sPHI}, 2\ns_and_b32 s{sT0}, s{sT0}, {KM}\ns_lshl_b32 s{sQ2}, s{sT0}, 19\ns_add_u32 s{sQ2}, s{sQ2}, s{sWQB}")
    g.e(f"""s_add_u32 s{sT0}, s{sPHI}, 2
    s_and_b32 s{sT0}, s{sT0}, {KM}
    s_lshl_b32 s{sKX}, s{sT0}, 7
    s_add_u32 s{sT0}, s{sPHI}, 3
    s_and_b32 s{sT0}, s{sT0}, {KM}
    s_lshl_b32 s{sKW}, s{sT0}, 19""")
    for s in range(16):
        first=(Q0 and s==0)
        if s+1<16 and not first: g.vmwait(('wq',s+1))
        g.lgwait(('A',s))
        g.e("s_barrier")
        tick(s)
        G_=Gaps(64)
        dpos=opt.get("dpos",[2,7,12,17,23,28,34,39,45,50,56,61])
        if first:
            p=0
            for i in range(4):
                G_.put_post(p,S(f"s_add_u32 s{sQ3}, s{sXB+i}, s{sQ1}\ns_add_u32 m0, s{sXL}, {(4+i)*2048}"))
                for j in range(2):
                    G_.mem[p+1+j]=(lambda j=j,i=i: g.vmop(f"buffer_load_dwordx4 v{vXD+j}, {sr(S_X)}, s{sQ3} offen offset:{1024*j}{NTX} lds",('x',1,i)))
                p+=3
            G_.put_post(p,S(f"s_add_u32 m0, s{sWL}, {2*16384}"))
            for j in range(4):
                G_.mem[p+1+j]=(lambda j=j: g.vmop(f"buffer_load_dwordx4 v{vWD+j}, {sr(S_WQ)}, s{sQ2} offen offset:{1024*j}{NTW} lds",('wq',2)))
            dpos=[21,24,27,30,35,38,43,46,51,54,58,61]
        if s+3<16:
            if (s+3)==8 and not FULL: G_.put_post(0,S(f"s_add_u32 s{sWQB}, s{sWQB}, {8<<19}"))
            G_.put_post(dpos[0]-2,S(f"s_add_u32 s{sWT}, s{sWQB}, s{sKW}"))
            G_.put_post(dpos[0]-1,S(f"s_add_u32 m0, s{sWL}, {((s+3)%3)*16384}"))
            for j in range(4):
                G_.mem[dpos[j]]=(lambda j=j,s=s: g.vmop(f"buffer_load_dwordx4 v{vWD+j}, {sr(S_WQ)}, s{sWT} offen offset:{1024*j}{NTW} lds",('wq',s+3)))
            G_.put_post(dpos[3],S(f"s_add_u32 s{sKW}, s{sKW}, {1<<19}"))
            G_.put_post(dpos[3]+1,S(f"s_and_b32 s{sKW}, s{sKW}, {KM<<19}"))
        if s+2<16:
            for i in range(4):
                p=dpos[4+2*i]
                if (s+2)==8 and not FULL: G_.put_post(p-3,S(f"s_add_u32 s{sXB+i}, s{sXB+i}, 1024"))
                G_.put_post(p-2,S(f"s_add_u32 s{sXT}, s{sXB+i}, s{sKX}"))
                G_.put_post(p-1,S(f"s_add_u32 m0, s{sXL}, {((s&1)*4+i)*2048}"))
                for j in range(2):
                    G_.mem[dpos[4+2*i+j]]=(lambda j=j,s=s,i=i: g.vmop(f"buffer_load_dwordx4 v{vXD+j}, {sr(S_X)}, s{sXT} offen offset:{1024*j}{NTX} lds",('x',s+2,i)))
            G_.put_post(dpos[11],S(f"s_add_u32 s{sKX}, s{sKX}, 128"))
            G_.put_post(dpos[11]+1,S(f"s_and_b32 s{sKX}, s{sKX}, {KM<<7}"))
        if s in KPRE:
            c=KPRE[s]
            for j,p in enumerate(opt.get("kpos",[19,30,41,52])):
                G_.put_post(p-2,S(kv_soff(sT1,sCUR,c)))
                G_.put_post(p-1,S(f"s_add_u32 m0, s{sWOFF}, {c*SLOT}"))
                assert G_.mem[p] is None
                G_.mem[p]=(lambda j=j,c=c: g.vmop(f"buffer_load_dwordx4 v{vKD+j}, {sr(S_K)}, s{sT1} offen offset:{1024*j}{NT} lds",('kv',c)))
        if s in KREG:
            c=KREG[s]
            for j,p in enumerate(opt.get("kpos",[19,30,41,52])):
                if j==0: G_.put_post(p-2,S(f"s_add_u32 s{sKRG}, s{sCUR}, {c*16384}"))
                assert G_.mem[p] is None
                r=OACC+16*KRI[c]+4*j
                G_.mem[p]=(lambda j=j,r=r: g.e(f"buffer_load_dwordx4 {ar(r)}, v{vKD+j}, {sr(S_K)}, s{sKRG} offen offset:{1024*j}{NT}"))
        WT={int(k):v for k,v in opt.get("wotouch",{}).items()}
        if s in WT:
            n_=WT[s]; p=20
            assert G_.mem[p] is None
            G_.put_post(p-2,S(f"s_add_u32 s{sT1}, s{sTCH}, {n_*8192}"))
            G_.put_post(p-1,S(f"s_add_u32 m0, s{sWOFF}, {2*SLOT}"))
            G_.mem[p]=(lambda: g.vmop(f"buffer_load_dword v{vTCH}, {sr(S_WO)}, s{sT1} offen lds",('tch',)))
        for i in range(4):
            nxt=(s,i+1) if i<3 else ((s+1,0) if s+1<16 else None)
            if nxt:
                q=G_.put_mem(16*i+opt.get("bpos",4),lambda nxt=nxt: b_read(nxt[0],nxt[1],0),lo=16*i,hi=16*i+16)
                G_.put_pre(q,lambda nxt=nxt: g.vmwait(('x',)+nxt))
                G_.put_mem(q+1,lambda nxt=nxt: b_read(nxt[0],nxt[1],1),lo=q+1,hi=16*i+16)
        if first:
            G_.put_pre(31,lambda: (g.vmwait(('wq',1)), g.e("s_barrier")))
            for n_,(ks,dt,hf) in enumerate(AR):
                G_.put_mem(32+n_*28/32.0,lambda ks=ks,dt=dt,hf=hf,s=s: a_read(s+1,ks,dt,hf),lo=32,hi=64)
        elif s+1<16:
            aend=opt.get("aend",56)
            for n_,(ks,dt,hf) in enumerate(AR):
                G_.put_mem(n_*aend/32.0,lambda ks=ks,dt=dt,hf=hf,s=s: a_read(s+1,ks,dt,hf),hi=62)
        M=[]
        for i in range(4):
            n=s*4+i
            for ks in range(2):
                for dt in range(8):
                    d=ACC+(i*8+dt)*4
                    txt=f"v_mfma_f32_16x16x32_bf16 {vr(d)}, {ar(64*(s&1)+(ks*8+dt)*4)}, {ar(128+(n&1)*8+ks*4)}, {'0' if (s==0 and ks==0) else vr(d)}"
                    if ks==0 and dt==0: M.append(lambda txt=txt,s=s,i=i: (g.lgwait(('B',s,i)), g.e(txt)))
                    else: M.append(txt)
        G_.emit(g,M)
    tick(16)
    if KREG: g.e("s_waitcnt vmcnt(0)")
    g.e("s_barrier")
    if KREG:
        g.e(f"v_add_u32 v1, s{sWOFF}, v{vOS}\nv_add_u32 v3, 0x10000, v1")
        for c in sorted(KREG.values()):
            for j in range(4):
                r=OACC+16*KRI[c]+4*j
                off=c*SLOT+j*1024
                if off<65536: g.e(f"ds_write_b128 v1, {ar(r)} offset:{off}")
                else: g.e(f"ds_write_b128 v3, {ar(r)} offset:{off-65536}")
            if c==3: pass
    rest=[cc for cc in range(LA) if cc not in KPRE.values() and cc not in KREG.values()]
    late=rest[-opt.get("late",0):] if opt.get("late",0) else []
    for cc in rest:
        if cc in late: continue
        h,dm=kv_group(cc); g.e(h)
        for l in dm: g.e(l)
    for i in range(4):
        for t in range(4):
            bx=ACC+(i*8+2*t)*4; by=bx+4; F=QF+16*i+4*t
            g.e(f"""
            v_cvt_pk_bf16_f32 v56, v{bx}, v{bx+1}
            v_cvt_pk_bf16_f32 v57, v{bx+2}, v{bx+3}
            v_cvt_pk_bf16_f32 v58, v{by}, v{by+1}
            v_cvt_pk_bf16_f32 v59, v{by+2}, v{by+3}
            v_cndmask_b32 v{F}, v56, v58, s[{sMASK}:{sMASK+1}]
            v_cndmask_b32 v{F+1}, v57, v59, s[{sMASK}:{sMASK+1}]
            v_cndmask_b32 v{F+2}, v58, v56, s[{sMASK}:{sMASK+1}]
            v_cndmask_b32 v{F+3}, v59, v57, s[{sMASK}:{sMASK+1}]
            """)
    for cc in late:
        h,dm=kv_group(cc); g.e(h)
        for l in dm: g.e(l)
    if KREG: g.e("s_waitcnt lgkmcnt(0)")
    tick(17); tick_store(); stamp(); dstamp(3)
    g.label("L_ITEM")
    g.vm=[]; g.lg=[]
    tick(40)
    g.e(f"s_cmp_lt_u32 s{sITEM}, 3\ns_cselect_b32 s{S_KN+2}, {64*MB}, 0\ns_cselect_b32 s{sLAST}, 0, 1")
    for n in range(4):
        g.e(f"s_cmp_eq_u32 s{sITEM}, {n}\ns_cbranch_scc0 L_QC{n}")
        for r in range(16): g.e(f"v_accvgpr_write_b32 a{QCUR+r}, v{QF+16*n+r}")
        g.label(f"L_QC{n}")
    MX=4
    def pcalc(J):
        b=ACC+8*J
        L=[f"v_fma_f32 v{TA+r}, v{b+r}, s{sC}, -v4" for r in range(8)]
        L+=[f"v_exp_f32 v{TA+r}, v{TA+r}" for r in range(8)]
        L+=[f"v_cvt_pk_bf16_f32 v{ACC+4*J+r}, v{TA+2*r}, v{TA+2*r+1}" for r in range(4)]
        return L
    def reads(c):
        st=c&1; sl=c&7; hi=sl>=4; so=(sl&3)*SLOT; R=[]
        if c<8:
            for kt in range(4):
                for t in range(4):
                    R.append(lambda kt=kt,t=t: g.lgop(f"ds_read_b128 {ar(64*st+(kt*4+t)*4)}, v{vKR+(4 if hi else 0)+t} offset:{so+kt*4096}",('F',c,kt)))
        else:
            for js in range(2):
                for dt in range(8):
                    for hf in range(2):
                        r=64*st+(js*8+dt)*4+2*hf
                        R.append(lambda r=r,js=js,dt=dt,hf=hf: g.lgop(f"ds_read_b64_tr_b16 a[{r}:{r+1}], v{vVR+(8 if hi else 0)+dt} offset:{so+js*8192+hf*4096}",('F',c,js*8+dt)))
        return R
    g.e(f"s_waitcnt vmcnt({4*(LA-1)})\ns_barrier")
    for f in reads(0): f()
    for c in range(16):
        cc=c+LA
        if c<15: g.e(f"s_waitcnt vmcnt({4*(LA-2)})")
        if opt.get("oearly") and 9<=c<15:
            g.e(f"s_cmp_eq_u32 s{sLAST}, 1\ns_cbranch_scc1 L_TL{c}\ns_waitcnt vmcnt({opt['thra']})\nL_TL{c}:")
        elif opt.get("thra") is not None and c<15:
            if c<opt.get("thra_skip_all",0):
                if opt.get("thra_alt") is not None: g.e(f"s_waitcnt vmcnt({opt['thra_alt']})")
            elif c<opt.get("thra_skip",0):
                g.e(f"s_cmp_eq_u32 s{sITEM}, 0\ns_cbranch_scc1 L_TS{c}\ns_waitcnt vmcnt({opt['thra']})\nL_TS{c}:")
            else: g.e(f"s_waitcnt vmcnt({opt['thra']})")
        if opt.get("thr") is not None and c<15:
            g.e(f"s_bitcmp1_b32 s2, 0\ns_cbranch_scc{opt.get('thr_par',1)} L_TH{c}\ns_waitcnt vmcnt({opt['thr']})\nL_TH{c}:")
        g.e("s_barrier")
        tick(c)
        dm=[]
        if (cc<16 or cc>=16+NWOP) and opt.get("polsel"):
            h,dl=kv_group(cc); g.e(h)
            g.e(f"s_cmp_lg_u32 s{sPOL}, 0\ns_cbranch_scc1 L_PB{c}")
            for l in dl: g.e(l)
            g.e(f"s_branch L_PJ{c}\nL_PB{c}:")
            for l in dl: g.e(l.replace(NT,""))
            g.e(f"L_PJ{c}:")
        elif cc<16 or cc>=16+NWOP:
            h,dl=kv_group(cc); g.e(h); dm=[(lambda l=l: g.e(l)) for l in dl]
        else:
            k=cc-16
            g.e(f"s_cmp_eq_u32 s{sLAST}, 1\ns_cbranch_scc1 L_HO{k}")
            h,dl=kv_group(cc); g.e(h)
            if opt.get("polsel"):
                g.e(f"s_cmp_lg_u32 s{sPOL}, 0\ns_cbranch_scc1 L_PC{k}")
                for l in dl: g.e(l)
                g.e(f"s_branch L_HJ{k}\nL_PC{k}:")
                for l in dl: g.e(l.replace(NT,""))
            else:
                for l in dl: g.e(l)
            g.e(f"s_branch L_HJ{k}")
            g.label(f"L_HO{k}")
            wo_group(k,False)
            g.label(f"L_HJ{k}")
        if opt.get("oearly") and 9<=c<15:
            n_=(c-9)>>1; t0=2*((c-9)&1)
            g.e(f"s_cmp_eq_u32 s{sLAST}, 1\ns_cbranch_scc0 L_OE{c}\ns_sub_u32 s{sT0}, s{sOB}, {(3-n_)*0x80000}")
            for t in (t0,t0+1): g.e(f"buffer_store_dwordx4 {vr(QF+16*n_+4*t)}, v{vOS}, {sr(S_O)}, s{sT0} offen offset:{t*1024}{STO}")
            g.label(f"L_OE{c}")
        R=reads(c+1) if c<15 else []
        st=c&1; M=[]; VL=[]
        if c<8:
            for kt in range(4):
                T=4*c+kt; d=ACC+4*T
                for t in range(4):
                    txt=f"v_mfma_f32_16x16x32_bf16 {vr(d)}, {ar(64*st+(kt*4+t)*4)}, {ar(QCUR+4*t)}, {'0' if t==0 else vr(d)}"
                    M.append((lambda txt=txt,kt=kt,c=c: (g.lgwait(('F',c,kt)), g.e(txt))) if t==0 else txt)
            if c>0:
                for kt in range(4):
                    b=ACC+16*(c-1)+4*kt
                    if c==1: VL+=[f"v_max3_f32 v{MX+kt}, v{b}, v{b+1}, v{b+2}",f"v_max_f32 v{MX+kt}, v{MX+kt}, v{b+3}"]
                    else: VL+=[f"v_max3_f32 v{MX+kt}, v{MX+kt}, v{b}, v{b+1}",f"v_max3_f32 v{MX+kt}, v{MX+kt}, v{b+2}, v{b+3}"]
        else:
            cv=c-8
            for js in range(2):
                J=2*cv+js; P=ACC+4*J
                for dt in range(8):
                    d=OA+4*dt
                    txt=f"v_mfma_f32_16x16x32_bf16 {ar(d)}, {ar(64*st+(js*8+dt)*4)}, {vr(P)}, {'0' if J==0 else ar(d)}"
                    M.append(lambda txt=txt,c=c,k=js*8+dt: (g.lgwait(('F',c,k)), g.e(txt)))
                M.append(f"v_mfma_f32_16x16x32_bf16 {ar(LAcc)}, {ar(ONES)}, {vr(P)}, {'0' if J==0 else ar(LAcc)}")
            if cv<7:
                for J in (2*cv+2,2*cv+3): VL+=pcalc(J)
        if c<7: pat=['tv','tv','tt','d']*4
        elif c==7: pat=['ttv','tt','ttv','dtt']*4
        else: pat=['ttv','ttv','ttv','dvvvv']*4+['ttttvv','ttttvv']
        if opt.get("dfront"):
            nd=opt["dfront"]
            pat=[p.replace('d','') for p in pat]
            for q in range(4): pat[min(q*nd,len(pat)-1)]='d'+pat[min(q*nd,len(pat)-1)]
        ti=vi=di=0
        for m,p in zip(M,pat):
            m() if callable(m) else g.e(m)
            for ch in p:
                if ch=='t' and ti<len(R): R[ti](); ti+=1
                elif ch=='v' and vi<len(VL): g.e(VL[vi]); vi+=1
                elif ch=='d' and di<len(dm): dm[di](); di+=1
        while ti<len(R): R[ti](); ti+=1
        while di<len(dm): dm[di](); di+=1
        while vi<len(VL): g.e(VL[vi]); vi+=1
        if c==7:
            g.e("s_nop 7")
            for kt in range(4):
                b=ACC+16*7+4*kt
                g.e(f"v_max3_f32 v{MX+kt}, v{MX+kt}, v{b}, v{b+1}\nv_max3_f32 v{MX+kt}, v{MX+kt}, v{b+2}, v{b+3}")
            g.e(f"""
            v_max3_f32 v4, v4, v5, v6
            v_max_f32 v4, v4, v7
            v_mov_b32 v5, v4
            s_nop 1
            v_permlane16_swap_b32 v4, v5
            v_max_f32 v4, v4, v5
            v_mov_b32 v5, v4
            s_nop 1
            v_permlane32_swap_b32 v4, v5
            v_max_f32 v4, v4, v5
            v_mul_f32 v4, s{sC}, v4
            """)
            for J in (0,1):
                for l in pcalc(J): g.e(l)
    tick(16)
    g.e(f"s_nop 7\nv_accvgpr_read_b32 v4, a{LAcc}\ns_nop 0\nv_rcp_f32 v4, v4")
    if opt.get("odefer"):
        for r in range(32): g.e(f"v_accvgpr_read_b32 v{128+r}, a{OA+r}")
        for r in range(32): g.e(f"v_mul_f32 v{128+r}, v{128+r}, v4")
        for n in range(4):
            g.e(f"s_cmp_eq_u32 s{sITEM}, {n}\ns_cbranch_scc0 L_OP{n}")
            for r in range(16): g.e(f"v_cvt_pk_bf16_f32 v{QF+16*n+r}, v{128+2*r}, v{129+2*r}")
            g.label(f"L_OP{n}")
        g.e(f"s_cmp_eq_u32 s{sLAST}, 1\ns_cbranch_scc0 L_OSKIP")
        g.e(f"s_sub_u32 s{sT1}, s{sOB}, {0 if opt.get('oearly') else 3*0x80000}")
        for n in (range(3,4) if opt.get("oearly") else range(4)):
            for t in range(4):
                g.e(f"buffer_store_dwordx4 {vr(QF+16*n+4*t)}, v{vOS}, {sr(S_O)}, s{sT1} offen offset:{t*1024}{STO}")
            if n<3: g.e(f"s_add_u32 s{sT1}, s{sT1}, 0x80000")
        g.label("L_OSKIP")
    else:
        for t in range(4):
            tb=128+16*t
            for r in range(8): g.e(f"v_accvgpr_read_b32 v{tb+r}, a{OA+8*t+r}")
            for r in range(8): g.e(f"v_mul_f32 v{tb+r}, v{tb+r}, v4")
            for r in range(4): g.e(f"v_cvt_pk_bf16_f32 v{tb+8+r}, v{tb+2*r}, v{tb+2*r+1}")
            if not opt.get("no_ostore"): g.e(f"buffer_store_dwordx4 {vr(tb+8)}, v{vOS}, {sr(S_O)}, s{sOB} offen offset:{t*1024}{STO}")
    g.e(f"""
    s_add_u32 s{sCUR}, s{sCUR}, 0x400000
    s_add_u32 s{sNXT}, s{sNXT}, 0x400000
    s_add_u32 s{sOB}, s{sOB}, {0 if opt.get("osame") else 0x80000}
    s_cmp_eq_u32 s{sLAST}, 1
    s_cbranch_scc0 L_A_DONE
    s_waitcnt vmcnt(0)
    s_barrier
    s_cmp_lg_u32 s{sW}, 0
    s_cbranch_scc1 L_A_DONE
    v_accvgpr_read_b32 v1, a166
    v_accvgpr_read_b32 v3, a164
    s_nop 0
    v_readfirstlane_b32 s{sT0}, v1
    v_readfirstlane_b32 s{sT1}, v3
    s_nop 3
    s_cmp_eq_u32 s{sT0}, 0
    s_cselect_b32 s{sNONCE}, s{sT1}, s{sT0}
    """)
    flag_store(0)
    g.e(f"L_A_DONE:\ns_add_u32 s{sITEM}, s{sITEM}, 1")
    tick(17); tick_store(); stamp()
    g.e(f"s_cmp_lt_u32 s{sITEM}, 4\ns_cbranch_scc1 L_ITEM")
    def xst(i):
        if opt.get("xstamps"):
            g.e(f"s_mov_b32 s101, s{sSEGN}\ns_mov_b32 s{sSEGN}, {i}"); stamp(); g.e(f"s_mov_b32 s{sSEGN}, s101")
    def phase_o4():
        dstamp(4)
        g.vm=[]; g.lg=[]
        g.e(f"s_lshl_b32 s{sT0}, s{sKH}, 6")
        for dt in range(16): g.e(f"v_xor_b32 v{vWOR+dt}, s{sT0}, v{vVR+dt}")
        g.e(f"v_add_u32 v{vOS2}, 0x40000, v{vOS}\nv_add_u32 v{vOS3}, 0x60000, v{vOS}")
        g.e(f"""
        s_cmp_lg_u32 s{sW}, 0
        s_cbranch_scc1 L_O_WAITB
        v_mov_b32 v1, {128*K1}
        v_mov_b32 v3, s{sNONCE}
        ds_write_b32 v1, v3
        s_mov_b32 s{sCNT}, 0
        s_mov_b64 exec, 0xff
        L_O_POLL:
        global_load_dword v3, v{vPA}, s[{sWS}:{sWS+1}] sc1
        s_add_u32 s{sCNT}, s{sCNT}, 1
        s_waitcnt vmcnt(0)
        v_cmp_eq_u32 vcc, s{sNONCE}, v3
        s_cmp_gt_u32 s{sCNT}, 0x40000
        s_cbranch_scc1 L_O_POLLX
        s_nop 1
        s_cmp_lg_u32 vcc_lo, 0xff
        s_cbranch_scc1 L_O_POLL
        L_O_POLLX:
        s_mov_b64 exec, -1
        s_waitcnt lgkmcnt(0)
        L_O_WAITB:
        s_barrier
        v_mov_b32 v1, {128*K1}
        ds_read_b32 v3, v1
        s_waitcnt lgkmcnt(0)
        v_readfirstlane_b32 s{sNONCE}, v3
        """)
        dstamp(5)
        if opt.get("stamps"):
            g.e(f"s_mov_b32 s101, s{sSEGN}\ns_mov_b32 s{sSEGN}, 9"); stamp(); g.e(f"s_mov_b32 s{sSEGN}, s101")
        OL=3; WL=5; OF=128; NS=16; OA4=128
        vQ=[vOS,vOS1,vOS2,vOS3]
        def cid(j): return j&8
        def o_txt(s_,k):
            rt,js=k>>1,k&1
            r=OF+(s_&3)*32+(rt*2+js)*4
            return f"buffer_load_dwordx4 {vr(r)}, v{vQ[rt]}, {sr(S_O)}, s{sKO} offen offset:{js*1024}{NTOO}"
        for s_ in range(OL):
            g.e(f"s_add_u32 s{sT0}, s{sPHO}, {s_}\ns_and_b32 s{sT0}, s{sT0}, 7\ns_lshl_b32 s{sT0}, s{sT0}, 11\ns_add_u32 s{sKO}, s{sT0}, s{sOOB}")
            for k in range(8): g.e(o_txt(s_,k))
        RD=[(js,nt,hf) for js in range(2) for nt in range(8) for hf in range(2)]
        def rd(u,js,nt,hf):
            r=64*(u&1)+(js*8+nt)*4+2*hf; sl=u&7
            g.lgop(f"ds_read_b64_tr_b16 a[{r}:{r+1}], v{vWOR+(8 if sl>=4 else 0)+nt} offset:{(sl&3)*SLOT+js*8192+hf*4096}",('A',u,js,nt))
        for (js,nt,hf) in RD: rd(0,js,nt,hf)
        g.e(f"""s_add_u32 s{sT0}, s{sPHO}, {WL}
        s_and_b32 s{sT0}, s{sT0}, 7
        s_lshl_b32 s{sWLO}, s{sT0}, 17
        s_add_u32 s{sT0}, s{sPHO}, {OL}
        s_and_b32 s{sT0}, s{sT0}, 7
        s_lshl_b32 s{sOLO}, s{sT0}, 11""")
        for u in range(NS):
            yv=8*len([j for j in range(u+1,min(u+OL,NS))])
            n=min(12,yv)
            if u+1<NS and u+1>=NWOP:
                yd=4*len([j for j in range(u+2,min(u+WL,NS))])
                n=min(n,yd)
            g.e(f"s_waitcnt vmcnt({n})")
            g.e("s_barrier")
            tick(u)
            G_=Gaps(64)
            if u+WL<NS:
                if u+WL==8: G_.put_post(0,S(f"s_add_u32 s{sWOB}, s{sWOB}, {8<<17}"))
                G_.put_post(1,S(f"s_add_u32 s{sKWO}, s{sWLO}, s{sWOB}"))
                G_.put_post(2,S(f"s_add_u32 m0, s{sWOFF}, {((u+WL)&7)*SLOT}"))
                G_.put_post(20,S(f"s_add_u32 s{sWLO}, s{sWLO}, {1<<17}"))
                G_.put_post(21,S(f"s_and_b32 s{sWLO}, s{sWLO}, {7<<17}"))
                for j,p in enumerate([3,19,35,51]):
                    G_.mem[p]=(lambda j=j: g.e(f"buffer_load_dwordx4 v{vWOD+j}, {sr(S_WO)}, s{sKWO} offen offset:{1024*j}{NTO} lds"))
            if u+OL<NS:
                if u+OL==8: G_.put_post(4,S(f"s_add_u32 s{sOOB}, s{sOOB}, {8<<11}"))
                G_.put_post(5,S(f"s_add_u32 s{sKO}, s{sOLO}, s{sOOB}"))
                G_.put_post(61,S(f"s_add_u32 s{sOLO}, s{sOLO}, {1<<11}"))
                G_.put_post(62,S(f"s_and_b32 s{sOLO}, s{sOLO}, {7<<11}"))
                for k,p in enumerate([7,13,23,29,39,45,55,60]):
                    G_.mem[p]=(lambda k=k,u=u: g.e(o_txt(u+OL,k)))
            if u+1<NS:
                for n_,(js,nt,hf) in enumerate(RD):
                    G_.put_mem(n_*58/32.0,lambda js=js,nt=nt,hf=hf,u=u: rd(u+1,js,nt,hf),hi=62)
            M=[]
            for js in range(2):
                for nt in range(8):
                    for rt in range(4):
                        d=OA4+(rt*8+nt)*4
                        txt=f"v_mfma_f32_16x16x32_bf16 {ar(d)}, {ar(64*(u&1)+(js*8+nt)*4)}, {vr(OF+(u&3)*32+(rt*2+js)*4)}, {'0' if (u==0 and js==0) else ar(d)}"
                        if rt==0: M.append(lambda txt=txt,u=u,js=js,nt=nt: (g.lgwait(('A',u,js,nt)), g.e(txt)))
                        else: M.append(txt)
            G_.emit(g,M)
        tick(16); tick(17); tick_store(); stamp(); dstamp(6)
        g.e("s_nop 7")
        for d in range(1,4):
            for hb in range(2):
                g.e(f"s_add_u32 s{sT1}, s{sEXW}, {(d-1)*8192+hb*4096}")
                for rr in range(2):
                    rt=2*hb+rr
                    for m in range(2):
                        g.e(f"buffer_store_dwordx4 {ar(OA4+(rt*8+2*d+m)*4)}, v{vOS}, {sr(S_O)}, s{sT1} offen offset:{(rr*2+m)*1024} sc1")
        for rt in range(4):
            for m in range(2):
                for q in range(4): g.e(f"v_accvgpr_read_b32 v{224+(rt*2+m)*4+q}, a{OA4+(rt*8+m)*4+q}")
        g.e(f"""
        v_lshrrev_b32 v3, 4, v0
        v_and_b32 v4, 15, v0
        v_lshlrev_b32 v5, 3, v3
        v_lshl_add_u32 v52, v4, 12, v5
        s_lshl_b32 s{sCNT}, s{sW}, 2
        s_add_u32 s{sCNT}, s{sCNT}, 16
        v_add_u32 v5, 1, v0
        v_xor_b32 v5, s2, v5
        v_lshlrev_b32 v5, 7, v5
        s_add_u32 s{sT0}, s{sCNT}, {FLAG_OFF}
        v_add_u32 v53, s{sT0}, v5
        s_waitcnt vmcnt(0)
        """)
        xst(11)
        flag_store(f"s{sCNT}")
        g.e(f"""
        s_mov_b32 s{sCNT}, 0
        s_mov_b64 exec, 7
        L_X_POLL:
        global_load_dword v3, v53, s[{sWS}:{sWS+1}] sc1
        s_add_u32 s{sCNT}, s{sCNT}, 1
        s_waitcnt vmcnt(0)
        v_cmp_eq_u32 vcc, s{sNONCE}, v3
        s_cmp_gt_u32 s{sCNT}, 0x40000
        s_cbranch_scc1 L_X_POLLX
        s_nop 1
        s_cmp_lg_u32 vcc_lo, 7
        s_cbranch_scc1 L_X_POLL
        L_X_POLLX:
        s_mov_b64 exec, -1
        """)
        xst(12)
        for d in range(1,4):
            g.e(f"s_xor_b32 s{sT0}, s2, {d}\ns_mul_i32 s{sT0}, s{sT0}, 98304\ns_mul_i32 s{sT1}, s{sW}, 24576\ns_add_u32 s{sT0}, s{sT0}, s{sT1}\ns_add_u32 s{sEXR}, s{sT0}, {EXCH_OFF+(d-1)*8192}")
            for hb in range(2):
                if hb==1: g.e(f"s_add_u32 s{sEXR}, s{sEXR}, 4096")
                for k in range(4):
                    g.e(f"buffer_load_dwordx4 {vr(128+((d-1)*8+hb*4+k)*4)}, v{vOS}, {sr(S_O)}, s{sEXR} offen offset:{k*1024} sc1")
        g.e("s_waitcnt vmcnt(0)")
        xst(13)
        for rt in range(4):
            if rt>0: g.e(f"s_add_u32 s{sOUTB}, s{sOUTB}, 0x10000")
            for m in range(2):
                dd=224+(rt*2+m)*4
                for d in range(3):
                    r=128+(d*8+rt*2+m)*4
                    for q in range(4): g.e(f"v_add_f32 v{dd+q}, v{dd+q}, v{r+q}")
                g.e(f"""v_cvt_pk_bf16_f32 v{dd}, v{dd}, v{dd+1}
                v_cvt_pk_bf16_f32 v{dd+1}, v{dd+2}, v{dd+3}
                buffer_store_dwordx2 v[{dd}:{dd+1}], v52, {sr(S_OUT)}, s{sOUTB} offen offset:{m*32}{opt.get("st_out","")}""")
    def phase_o2():
        dstamp(4)
        g.vm=[]; g.lg=[]
        tick(40)
        g.e(f"s_lshl_b32 s{sT0}, s{sKH}, 7")
        for dt in range(16): g.e(f"v_xor_b32 v{vWOR+dt}, s{sT0}, v{vVR+dt}")
        g.e("v_mov_b32 v1, 0")
        for r in range(64): g.e(f"v_accvgpr_write_b32 a{OACC+r}, v1")
        g.e(f"""
        s_cmp_lg_u32 s{sW}, 0
        s_cbranch_scc1 L_O_WAITB
        v_mov_b32 v1, {128*K1}
        v_mov_b32 v3, s{sNONCE}
        ds_write_b32 v1, v3
        s_mov_b32 s{sCNT}, 0
        s_mov_b64 exec, 0xffff
        L_O_POLL:
        global_load_dword v3, v{vPA}, s[{sWS}:{sWS+1}] sc1
        s_add_u32 s{sCNT}, s{sCNT}, 1
        s_waitcnt vmcnt(0)
        v_cmp_eq_u32 vcc, s{sNONCE}, v3
        s_cmp_gt_u32 s{sCNT}, 0x40000
        s_cbranch_scc1 L_O_POLLX
        s_nop 1
        s_cmp_lg_u32 vcc_lo, 0xffff
        s_cbranch_scc1 L_O_POLL
        L_O_POLLX:
        s_mov_b64 exec, -1
        s_waitcnt lgkmcnt(0)
        L_O_WAITB:
        s_barrier
        v_mov_b32 v1, {128*K1}
        ds_read_b32 v3, v1
        s_waitcnt lgkmcnt(0)
        v_readfirstlane_b32 s{sNONCE}, v3
        """)
        tick(41); dstamp(5)
        if opt.get("stamps"):
            g.e(f"s_mov_b32 s101, s{sSEGN}\ns_mov_b32 s{sSEGN}, 9"); stamp(); g.e(f"s_mov_b32 s{sSEGN}, s101")
        OL=3; WL=NWOP; OF=128; NCH=32
        def o_1(st,k,srdn,tag=None):
            rt,js=k>>1,k&1
            r=OF+st*16+(rt*2+js)*4
            g.e(f"buffer_load_dwordx4 {vr(r)}, v{vOS if rt==0 else vOS1}, {sr(srdn)}, s{sKO} offen offset:{js*1024}{NTOO}")
        for c in range(OL):
            g.e(f"s_add_u32 s{sT0}, s{sPHO}, {c}\ns_and_b32 s{sT0}, s{sT0}, 7\ns_lshl_b32 s{sT0}, s{sT0}, 11\ns_add_u32 s{sKO}, s{sT0}, s{sOOB}")
            for k in range(4): o_1(c,k,S_O)
        RD=[(js,nt,hf) for js in range(2) for nt in range(8) for hf in range(2)]
        def a_read2(u,js,nt,hf):
            r=64*(u&1)+(js*8+nt)*4+2*hf
            sl=u&7
            g.lgop(f"ds_read_b64_tr_b16 a[{r}:{r+1}], v{vWOR+(8 if sl>=4 else 0)+nt} offset:{(sl&3)*SLOT+js*8192+hf*4096}",('A',u&1,js,nt))
        for (js,nt,hf) in RD: a_read2(0,js,nt,hf)
        g.e(f"""s_add_u32 s{sT0}, s{sPHO}, {WL}
        s_and_b32 s{sT0}, s{sT0}, 7
        s_lshl_b32 s{sWLO}, s{sT0}, 17
        s_add_u32 s{sT0}, s{sPHO}, {OL}
        s_and_b32 s{sT0}, s{sT0}, 7
        s_lshl_b32 s{sOLO}, s{sT0}, 11
        s_mov_b32 s{sJ}, 0""")
        def body(u):
            g.e(f"s_waitcnt vmcnt(8)")
            g.e("s_barrier")
            if opt.get("steps"): g.e(f"s_memtime s[96:97]\ns_waitcnt lgkmcnt(0)\ns_sub_u32 s99, s96, s98\ns_mov_b32 s98, s96\nv_readlane_b32 s97, v62, {u}\ns_nop 3\ns_add_u32 s97, s97, s99\ns_nop 0\nv_writelane_b32 v62, s97, {u}"); g.lg=[]
            G_=Gaps(32)
            vp=opt.get("o_vpos",[3,7,11,15,19,23,27,31])
            if u+WL==8:
                G_.put_post(0,S(f"s_add_u32 s{sWOB}, s{sWOB}, {8<<17}\ns_cmp_lt_u32 s{sJ}, {NCH-8}\ns_cselect_b32 s{S_WON+2}, {8*MB}, 0"))
            G_.put_post(1,S(f"s_add_u32 s{sKWO}, s{sWLO}, s{sWOB}"))
            G_.put_post(2,S(f"s_add_u32 m0, s{sWOFF}, {((u+WL)&7)*SLOT}"))
            if u+OL==8:
                G_.put_post(4,S(f"s_add_u32 s{sOOB}, s{sOOB}, {8<<11}\ns_cmp_lt_u32 s{sJ}, {NCH-8}\ns_cselect_b32 s{S_ON+2}, {WS_SRD}, 0"))
            G_.put_post(5,S(f"s_add_u32 s{sKO}, s{sOLO}, s{sOOB}"))
            G_.put_post(8,S(f"s_add_u32 s{sWLO}, s{sWLO}, {1<<17}"))
            G_.put_post(9,S(f"s_and_b32 s{sWLO}, s{sWLO}, {7<<17}"))
            G_.put_post(12,S(f"s_add_u32 s{sOLO}, s{sOLO}, {1<<11}"))
            G_.put_post(13,S(f"s_and_b32 s{sOLO}, s{sOLO}, {7<<11}"))
            for j in range(4):
                G_.mem[vp[2*j]]=(lambda j=j: g.e(f"buffer_load_dwordx4 v{vWOD+j}, {sr(S_WON)}, s{sKWO} offen offset:{1024*j}{NTO} lds"))
                G_.mem[vp[2*j+1]]=(lambda j=j,u=u: o_1((u+OL)&3,j,S_ON))
            rend=opt.get("o_rend",30)
            for n_,(js,nt,hf) in enumerate(RD):
                G_.put_mem(n_*rend/32.0,lambda js=js,nt=nt,hf=hf,u=u: a_read2(u+1,js,nt,hf))
            M=[]
            for js in range(2):
                for nt in range(8):
                    for rt in range(2):
                        d=OACC+(rt*8+nt)*4
                        txt=f"v_mfma_f32_16x16x32_bf16 {ar(d)}, {ar(64*(u&1)+(js*8+nt)*4)}, {vr(OF+(u&3)*16+(rt*2+js)*4)}, {ar(d)}"
                        if rt==0: M.append(lambda txt=txt,u=u,js=js,nt=nt: (g.lgwait(('A',u&1,js,nt)), g.e(txt)))
                        else: M.append(txt)
            G_.emit(g,M)
        save=list(g.L)
        for u in range(8): body(u)
        lg_end=list(g.lg)
        g.L=save; g.lg=list(lg_end)
        g.e("s_waitcnt lgkmcnt(0)")
        if opt.get("steps"): g.e("v_mov_b32 v62, 0\ns_memtime s[98:99]\ns_waitcnt lgkmcnt(0)")
        g.label("L_O_LOOP")
        for u in range(8): body(u)
        assert g.lg==lg_end
        g.e(f"s_add_u32 s{sJ}, s{sJ}, 8\ns_cmp_lt_u32 s{sJ}, {NCH}\ns_cbranch_scc1 L_O_LOOP\ns_waitcnt lgkmcnt(0)")
        tick_store(); stamp(); dstamp(6)
        g.e("s_nop 7")
        for rt in range(2):
            if rt==1: g.e(f"s_add_u32 s{sEXW}, s{sEXW}, 4096")
            for m in range(4):
                d=OACC+(rt*8+4+m)*4
                g.e(f"buffer_store_dwordx4 {ar(d)}, v{vOS}, {sr(S_O)}, s{sEXW} offen offset:{m*1024} sc1")
        for rt in range(2):
            for m in range(4):
                for q in range(4): g.e(f"v_accvgpr_read_b32 v{128+(rt*4+m)*4+q}, a{OACC+(rt*8+m)*4+q}")
        g.e(f"""
        v_lshrrev_b32 v3, 4, v0
        v_and_b32 v4, 15, v0
        v_lshlrev_b32 v5, 3, v3
        v_lshl_add_u32 v52, v4, 12, v5
        s_lshl_b32 s{sCNT}, s{sW}, 2
        s_add_u32 s{sCNT}, s{sCNT}, 16
        s_waitcnt vmcnt(0)
        """)
        xst(11)
        flag_store(f"s{sCNT}")
        g.e(f"""
        s_xor_b32 s{sT0}, s2, 128
        s_lshl_b32 s{sT0}, s{sT0}, 7
        s_add_u32 s{sT0}, s{sT0}, {FLAG_OFF}
        s_add_u32 s{sT0}, s{sT0}, s{sCNT}
        v_mov_b32 v1, s{sT0}
        s_mov_b32 s{sCNT}, 0
        s_mov_b64 exec, 1
        L_X_POLL:
        global_load_dword v3, v1, s[{sWS}:{sWS+1}] sc1
        s_add_u32 s{sCNT}, s{sCNT}, 1
        s_waitcnt vmcnt(0)
        v_readfirstlane_b32 s{sT0}, v3
        s_cmp_gt_u32 s{sCNT}, 0x40000
        s_cbranch_scc1 L_X_POLLX
        s_cmp_lg_u32 s{sT0}, s{sNONCE}
        s_cbranch_scc1 L_X_POLL
        L_X_POLLX:
        s_mov_b64 exec, -1
        """)
        xst(12)
        for rt in range(2):
            if rt==1: g.e(f"s_add_u32 s{sEXR}, s{sEXR}, 4096")
            for m in range(4):
                r=192+(rt*4+m)*4
                g.e(f"buffer_load_dwordx4 {vr(r)}, v{vOS}, {sr(S_O)}, s{sEXR} offen offset:{m*1024} sc1")
        for rt in range(2):
            if rt==1: g.e(f"s_add_u32 s{sOUTB}, s{sOUTB}, 0x10000")
            for m in range(4):
                d=128+(rt*4+m)*4; r=192+(rt*4+m)*4
                if rt==0 and m==0:
                    g.e("s_waitcnt vmcnt(0)"); xst(13)
                for q in range(4): g.e(f"v_add_f32 v{d+q}, v{d+q}, v{r+q}")
                g.e(f"""v_cvt_pk_bf16_f32 v{d}, v{d}, v{d+1}
                v_cvt_pk_bf16_f32 v{d+1}, v{d+2}, v{d+3}
                buffer_store_dwordx2 v[{d}:{d+1}], v52, {sr(S_OUT)}, s{sOUTB} offen offset:{m*32}{opt.get("st_out","")}""")
    phase_o4() if O4 else phase_o2()
    stamp()
    if opt.get("dstamps"):
        g.e("s_waitcnt vmcnt(0)"); dstamp(7)
    if opt.get("stamps"):
        g.e("s_waitcnt vmcnt(0)")
        g.e(f"s_mov_b32 s{sSEGN}, 10")
        stamp()
    g.label("L_END")
    g.e("s_endpgm")
    return g.text()

def build(opt):
    s="; @launch grid=(256,1,1) block=(256,1,1) lds=163840\n"
    s+=""";
;
;            row sums from an extra MFMA with a ones operand; K/V stream through an 8-slot LDS ring (non-temporal loads).
;  phase O : out tile 128 x 128 over half of K (split-K 2): o fragments straight to registers, wo through the LDS ring.
;  phase X : the two K halves exchange fp32 partial tiles through the workspace, add, round to bf16, store.
;  Hand-offs between workgroups use write-through stores + per-workgroup flag words in the workspace; flags carry a
;  per-launch tag agreed through d_debug (zero at launch), so stale workspace contents never match.  Counted vmcnt waits
"""
    s+='.amdgcn_target "amdgcn-amd-amdhsa--gfx950"\n'
    s+=f".text\n.globl {KN}\n.p2align 8\n.type {KN},@function\n{KN}:\n"
    s+=gen(opt)
    s+=f""".section .rodata,"a"
.p2align 6
.amdhsa_kernel {KN}
  .amdhsa_next_free_vgpr 512
  .amdhsa_next_free_sgpr 102
  .amdhsa_accum_offset 256
  .amdhsa_group_segment_fixed_size 0
  .amdhsa_kernarg_size 104
  .amdhsa_user_sgpr_count 2
  .amdhsa_user_sgpr_kernarg_segment_ptr 1
  .amdhsa_system_sgpr_workgroup_id_x 1
.end_amdhsa_kernel
"""
    return s
if __name__=="__main__":
    opt=json.loads(sys.argv[2]) if len(sys.argv)>2 else {}
    open(sys.argv[1],"w").write(build(opt))
```

```python
import sys, struct, math, json
from gl import *
KN="concat_heads__mha_block_cached__mha_block_cached__near_ridge_kernel"
C_SCALE=struct.unpack("<I",struct.pack("<f",math.log2(math.e)/math.sqrt(128.0)))[0]
K1=1024; MB=K1*K1
EXCH_OFF=16*MB; FLAG_OFF=44*MB; STAMP_OFF=48*MB; WS_SRD=48*MB
SLOT=16384; LA=7; NPRE=3
WQBASE=48*K1; XBASE=96*K1
WO_AREA=[128*K1,144*K1,96*K1,112*K1]; WO_RB=96*K1

def gen(opt):
    opt=dict(opt); opt.setdefault('thra',4); opt.setdefault('thra_skip',3); opt.setdefault('late',1); opt.setdefault("odefer",1); opt.setdefault("qpro",1)
    g=G()
    S=lambda txt: (lambda: g.e(txt))
    NT=opt.get('nt_kv',' nt')
    NTX=opt.get("nt_x",""); NTW=opt.get("nt_wq",""); NTO=opt.get("nt_wo",""); NTOO=opt.get("nt_o"," sc1"); STO=opt.get("st_o"," sc1")
    FULL=opt.get("fullrot",0); WIN=16 if FULL else opt.get("qwin",4); KM=WIN-1
    O4=opt.get("o4",0)
    NWOP=5 if O4 else opt.get("nwop",7)
    KREG={int(k):v for k,v in opt.get("kreg",{3:3,6:4,9:5,13:6}).items()}
    KRI={c:n for n,c in enumerate(sorted(KREG.values()))}
    KPRE={int(k):v for k,v in opt.get("kpre",{10:0,12:1,14:2}).items()}
    sPA=7;sKRG=7;sSIG=3;sKRO=100;sQ1=5;sQ2=6;sQ3=4;sPOL=88;sJ=4;sLAST=5;sCNT=6
    S_X=8;S_WQ=12;S_K=16;S_V=20;S_KN=24;S_O=28;S_WO=32;S_OUT=36;S_WON=40
    sW=44;sBR=45;sH=46;sBG=47;sRB=48;sCB=49;sKH=50;sPHI=51;sPHO=52
    sWQB=53;sKX=54;sKW=55;sXT=56;sWT=57;sT0=58;sT1=59
    sCUR=60;sNXT=61;sITEM=62;sOB=63;sC=64;sWOFF=65;sXL=66;sWL=67
    sMASK=68
    sXB=70
    sNONCE=74;sWOB=75;sOOB=76;sKWO=77;sKO=78;sWLO=79;sOLO=80;sOUTB=81;sEXW=82;sEXR=83
    S_ON=84
    sSEGN=89; sWS=90; sDBG=92; sSTB=94
    vKD=8; vVD=12; vKR=14; vVR=22; vOS=38; vOS1=39; vWOD=40; vPA=44; vTCH=45; sTCH=88; vOS2=45; vOS3=63
    vXD=46; vXR=48; vWD=50; vWR=54
    TA=52; vWOR=46
    QF=64; ACC=128
    OA=128; LAcc=160; ONES=168; QCUR=172; OACC=192
    def stamp():
        if not opt.get("stamps"): return
        g.e(f"""
        s_memrealtime s[96:97]
        s_memtime s[98:99]
        s_waitcnt lgkmcnt(0)
        v_mov_b32 v2, s96
        v_mov_b32 v3, s98
        s_lshl_b32 s96, s2, 7
        s_lshl_b32 s97, s{sSEGN}, 3
        s_add_u32 s96, s96, s97
        v_mov_b32 v1, s96
        global_store_dwordx2 v1, v[2:3], s[{sSTB}:{sSTB+1}]
        s_add_u32 s{sSEGN}, s{sSEGN}, 1
        """)
        g.lg=[]
        g.vm.append('stamp') if False else None
    def dstamp(word,neg=False):
        if not opt.get("dstamps"): return
        n=f"L_DS{word}"
        g.e(f"""
        s_cmp_lg_u32 s{sW}, 0
        s_cbranch_scc1 {n}
        s_memrealtime s[96:97]
        s_waitcnt lgkmcnt(0)
        {"s_not_b32 s96, s96" if neg else ""}
        v_mov_b32 v2, s96
        v_mov_b32 v1, {word*4}
        s_mov_b64 exec, 1
        global_atomic_umax v1, v2, s[{sDBG}:{sDBG+1}]
        s_mov_b64 exec, -1
        {n}:
        """)
        g.lg=[]
    def tick(k):
        if opt.get("steps"):
            g.e(f"s_memtime s[96:97]\ns_waitcnt lgkmcnt(0)\nv_writelane_b32 v62, s96, {k}"); g.lg=[]
    def tick_store():
        if opt.get("steps"):
            g.e(f"s_lshl_b32 s96, s2, 12\ns_lshl_b32 s97, s{sSEGN}, 8\ns_add_u32 s96, s96, s97\ns_add_u32 s96, s96, {MB}\nv_lshlrev_b32 v1, 2, v0\nv_add_u32 v1, s96, v1\nglobal_store_dword v1, v62, s[{sSTB}:{sSTB+1}]")
    PH4="s_lshr_b32 s7, s6, 1\ns_add_u32 s7, s7, s%d\ns_and_b32 s%d, s7, 3"%(sBG,sPHI)
    if opt.get("stamps"): g.e("s_memrealtime s[88:89]\ns_waitcnt lgkmcnt(0)\ns_mov_b32 s101, s88")
    g.e(f"""
    s_cmp_ge_u32 s2, 256
    s_cbranch_scc1 L_END
    s_load_dwordx4 s[96:99], s[0:1], 80
    s_load_dwordx2 s[{sWS}:{sWS+1}], s[0:1], 96
    s_and_b32 s3, s2, 7                          ; xcd
    s_lshr_b32 s4, s2, 3                         ; idx
    s_lshr_b32 s{sBR}, s3, 2
    s_and_b32 s5, s3, 3
    s_lshl_b32 s5, s5, 3
    s_and_b32 s6, s4, 7
    s_add_u32 s{sH}, s5, s6
    s_lshr_b32 s{sBG}, s4, 3
    s_lshl_b32 s7, s{sBG}, 1
    s_add_u32 s7, s7, s6
    s_and_b32 s{sPHI}, s7, 7
    {"s_lshl_b32 s"+str(sPHI)+", s"+str(sPHI)+", 1" if FULL else ""}
    {PH4 if WIN==4 else ""}
    ; O mapping
    s_lshr_b32 s5, s3, 1
    s_and_b32 s5, s5, 1
    s_lshl_b32 s5, s5, 2
    s_and_b32 s6, s4, 3
    s_add_u32 s{sRB}, s5, s6
    s_and_b32 s5, s3, 1
    s_lshl_b32 s5, s5, 2
    s_lshr_b32 s7, s4, 2
    s_and_b32 s7, s7, 3
    s_add_u32 s{sCB}, s5, s7
    s_lshr_b32 s{sKH}, s4, 4
    s_add_u32 s{sPHO}, s6, s7
    s_and_b32 s{sPHO}, s{sPHO}, 3
    s_lshl_b32 s{sPHO}, s{sPHO}, 1
    s_mul_i32 s5, s{sBR}, 40
    s_add_u32 s4, s0, s5
    s_addc_u32 s5, s1, 0
    s_load_dwordx4 s[8:11], s[4:5], 0            ; x, k
    s_load_dwordx4 s[12:15], s[4:5], 16          ; v, wq
    s_load_dwordx2 s[16:17], s[4:5], 32          ; wo
    v_lshrrev_b32 v1, 6, v0
    v_and_b32 v0, 63, v0
    s_nop 0
    v_readfirstlane_b32 s{sW}, v1
    """)
    g.e(f"""
    v_lshrrev_b32 v1, 3, v0              ; r8
    v_and_b32 v2, 7, v0                  ; p8
    v_lshrrev_b32 v3, 4, v0              ; rr / g
    v_and_b32 v4, 15, v0                 ; p16 / q / key
    v_xor_b32 v5, v2, v3
    v_lshlrev_b32 v5, 4, v5
    v_lshl_add_u32 v{vXD}, v1, 11, v5
    v_xor_b32 v5, 64, v5
    v_lshl_add_u32 v5, v1, 11, v5
    v_add_u32 v{vXD+1}, {8*2048-1024}, v5
    v_lshrrev_b32 v5, 1, v4
    v_xor_b32 v5, v5, v3
    v_lshlrev_b32 v5, 4, v5
    v_lshl_add_u32 v5, v4, 7, v5
    s_lshl_b32 s{sXL}, s{sW}, 14
    s_add_u32 s{sXL}, s{sXL}, {XBASE}
    v_add_u32 v{vXR}, s{sXL}, v5
    v_xor_b32 v{vXR+1}, 64, v{vXR}
    v_and_b32 v5, 1, v3
    v_and_b32 v6, 2, v3
    v_lshl_or_b32 v5, v6, 1, v5          ; f0
    v_xor_b32 v5, v5, v4                 ; p ^ f0
    """)
    for j in range(4):
        g.e(f"""
        v_xor_b32 v6, {8*(j>>1)}, v5
        v_lshlrev_b32 v6, 4, v6
        v_lshl_add_u32 v6, v3, 13, v6
        v_add_u32 v{vWD+j}, {4*j*8192-1024*j}, v6
        """)
    g.e(f"""
    v_lshrrev_b32 v5, 2, v4              ; rp
    v_and_b32 v6, 3, v0                  ; c
    v_and_b32 v7, 1, v5
    v_and_b32 v1, 2, v5
    v_lshl_or_b32 v7, v1, 1, v7
    v_and_b32 v1, 1, v3
    v_lshl_or_b32 v7, v1, 3, v7          ; f
    v_xor_b32 v7, v7, v6                 ; c ^ f
    v_lshlrev_b32 v7, 4, v7
    v_and_b32 v1, 1, v6
    v_lshl_or_b32 v7, v1, 3, v7          ; + 8*(c&1)
    v_lshl_add_u32 v1, v3, 3, v5         ; 8kg+rp
    v_lshl_add_u32 v7, v1, 8, v7
    v_add_u32 v7, {WQBASE}, v7
    """)
    for dt in range(8):
        t,u=dt>>1,dt&1
        g.e(f"v_xor_b32 v{vWR+dt}, {(t<<6)^(u<<3)}, v7")
    for j in range(4):
        g.e(f"""
        v_add_u32 v5, {4*(j&1)}, v3
        v_lshlrev_b32 v5, 1, v5
        v_xor_b32 v5, v5, v4
        v_lshlrev_b32 v5, 4, v5
        v_lshl_add_u32 v5, v3, 11, v5
        v_add_u32 v{vWOD+j}, {4*j*2048-1024*j}, v5
        """)
    if O4:
        g.e(f"""
        v_and_b32 v5, 7, v0
        s_lshl_b32 s{sT0}, s{sBG}, 3
        v_add_u32 v5, s{sT0}, v5
        s_and_b32 s{sT0}, s2, 7
        v_lshlrev_b32 v5, 3, v5
        v_add_u32 v5, s{sT0}, v5
        v_lshlrev_b32 v5, 7, v5
        v_add_u32 v{vPA}, {FLAG_OFF}, v5
        """)
    else:
        g.e(f"""
        s_lshl_b32 s{sT0}, s{sKH}, 4
        v_add_u32 v5, s{sT0}, v4             ; h = 16kh + t
        v_lshrrev_b32 v6, 3, v5              ; h>>3
        s_lshl_b32 s{sT0}, s{sBR}, 2
        v_add_u32 v6, s{sT0}, v6             ; xcd'
        v_and_b32 v5, 7, v5
        s_lshr_b32 s{sT0}, s{sRB}, 1
        s_lshl_b32 s{sT0}, s{sT0}, 3
        v_add_u32 v5, s{sT0}, v5             ; idx'
        v_lshl_add_u32 v5, v5, 3, v6         ; wg'
        v_lshlrev_b32 v5, 7, v5
        s_mov_b32 s{sT0}, {FLAG_OFF}
        v_add_u32 v{vPA}, s{sT0}, v5
        """)
    for j in range(4):
        g.e(f"""
        v_add_u32 v5, {4*j}, v3
        v_xor_b32 v5, v5, v4
        v_lshlrev_b32 v5, 4, v5
        v_lshl_add_u32 v{vKD+j}, v3, 8, v5
        """)
    g.e(f"""
    v_xor_b32 v5, v3, v4
    v_lshlrev_b32 v5, 4, v5
    v_lshl_add_u32 v5, v4, 8, v5
    """)
    for t in range(4): g.e(f"v_xor_b32 v{vKR+t}, {t<<6}, v5\nv_add_u32 v{vKR+4+t}, 0x10000, v{vKR+t}")
    for jp in range(2):
        g.e(f"""
        v_add_u32 v5, {4*jp}, v3
        v_lshlrev_b32 v5, 1, v5
        v_xor_b32 v5, v5, v4
        v_lshlrev_b32 v5, 4, v5
        v_lshl_add_u32 v{vVD+jp}, v3, 8, v5
        """)
    g.e(f"""
    v_lshrrev_b32 v5, 2, v4              ; rp
    v_and_b32 v6, 3, v0                  ; c
    v_and_b32 v7, 1, v3
    v_lshl_add_u32 v7, v7, 2, v5         ; 4(g&1)+rp
    v_lshlrev_b32 v7, 1, v7
    v_lshrrev_b32 v1, 1, v6
    v_xor_b32 v7, v7, v1
    v_lshlrev_b32 v7, 4, v7
    v_and_b32 v1, 1, v6
    v_lshl_or_b32 v7, v1, 3, v7
    v_lshl_add_u32 v1, v3, 2, v5         ; 4g+rp
    v_lshl_add_u32 v7, v1, 8, v7
    """)
    for dt in range(8): g.e(f"v_xor_b32 v{vVR+dt}, {dt<<5}, v7\nv_add_u32 v{vVR+8+dt}, 0x10000, v{vVR+dt}")
    g.e(f"v_lshlrev_b32 v{vTCH}, 7, v0")
    g.e(f"s_and_b32 s{sT0}, s2, 3\ns_lshl_b32 s{sT0}, s{sT0}, 5\ns_lshr_b32 s{sT1}, s2, 3\ns_add_u32 s{sT0}, s{sT0}, s{sT1}\ns_lshl_b32 s{sTCH}, s{sT0}, 16\ns_lshl_b32 s{sT0}, s{sW}, 14\ns_add_u32 s{sTCH}, s{sTCH}, s{sT0}")
    g.e(f"v_lshlrev_b32 v{vOS}, 4, v0\nv_add_u32 v{vOS1}, 0x20000, v{vOS}\nv_mov_b32 v1, 0x3f803f80")
    for r in range(4): g.e(f"v_accvgpr_write_b32 a{ONES+r}, v1")
    g.e("s_waitcnt lgkmcnt(0)")
    def mk(s,lo,hi,size): g.e(f"s_mov_b32 s{s}, s{lo}\ns_and_b32 s{s+1}, s{hi}, 0xffff\ns_mov_b32 s{s+2}, {size}\ns_mov_b32 s{s+3}, 0x20000")
    g.e(f"s_mov_b32 s{sDBG}, s98\ns_mov_b32 s{sDBG+1}, s99")
    mk(S_OUT,96,97,4*MB); mk(S_WO,16,17,8*MB); mk(S_WON,16,17,8*MB); mk(S_V,12,13,64*MB)
    mk(S_K,10,11,64*MB); mk(S_KN,10,11,64*MB)
    g.e(f"s_mov_b32 s4, s14\ns_mov_b32 s5, s15\ns_and_b32 s{S_X+1}, s9, 0xffff\ns_mov_b32 s{S_X+2}, {2*MB}\ns_mov_b32 s{S_X+3}, 0x20000")
    mk(S_WQ,4,5,8*MB); mk(S_O,sWS,sWS+1,WS_SRD); mk(S_ON,sWS,sWS+1,WS_SRD)
    g.e(f"""
    s_add_u32 s{sSTB}, s{sWS}, {STAMP_OFF}
    s_addc_u32 s{sSTB+1}, s{sWS+1}, 0
    s_mov_b32 s{sSEGN}, 0
    s_lshl_b32 s{sWOFF}, s{sW}, 12
    s_add_u32 s{sWL}, s{sWOFF}, {WQBASE}
    s_lshl_b32 s{sT0}, s{sBG}, 19
    s_lshl_b32 s{sT1}, s{sW}, 15
    s_add_u32 s{sXB}, s{sT0}, s{sT1}
    s_add_u32 s{sXB+1}, s{sXB}, 0x20000
    s_add_u32 s{sXB+2}, s{sXB}, 0x40000
    s_add_u32 s{sXB+3}, s{sXB}, 0x60000
    s_lshl_b32 s{sT0}, s{sW}, 17
    s_lshl_b32 s{sT1}, s{sH}, 8
    s_add_u32 s{sWQB}, s{sT0}, s{sT1}
    """)
    if opt.get("stamps"):
        g.e(f"v_mov_b32 v2, s101\nv_mov_b32 v3, 0\ns_lshl_b32 s96, s2, 7\ns_add_u32 s96, s96, 120\nv_mov_b32 v1, s96\nglobal_store_dwordx2 v1, v[2:3], s[{sSTB}:{sSTB+1}]")
    stamp()
    dstamp(2,True)
    O4B=f"""
        s_and_b32 s{sKH}, s2, 3                      ; kq
        s_lshr_b32 s{sT0}, s2, 3
        s_and_b32 s{sCB}, s{sT0}, 7                  ; cb
        s_lshl_b32 s{sT0}, s{sBG}, 1
        s_add_u32 s{sPHO}, s{sT0}, s{sCB}
        s_and_b32 s{sPHO}, s{sPHO}, 7
        s_lshl_b32 s{sWOB}, s{sKH}, 21
        s_lshl_b32 s{sT0}, s{sW}, 15
        s_add_u32 s{sWOB}, s{sWOB}, s{sT0}
        s_lshl_b32 s{sT0}, s{sCB}, 8
        s_add_u32 s{sWOB}, s{sWOB}, s{sT0}
        s_lshl_b32 s{sT0}, s{sBG}, 2
        s_add_u32 s{sT0}, s{sT0}, s{sW}
        s_lshl_b32 s{sOOB}, s{sT0}, 19
        s_lshl_b32 s{sOUTB}, s{sT0}, 18
        s_lshl_b32 s{sT0}, s{sBR}, 23
        s_add_u32 s{sOOB}, s{sOOB}, s{sT0}
        s_lshl_b32 s{sT0}, s{sKH}, 15
        s_add_u32 s{sOOB}, s{sOOB}, s{sT0}
        s_lshl_b32 s{sT0}, s{sBR}, 11
        s_add_u32 s{sOUTB}, s{sOUTB}, s{sT0}
        s_lshl_b32 s{sT0}, s{sCB}, 8
        s_add_u32 s{sOUTB}, s{sOUTB}, s{sT0}
        s_lshl_b32 s{sT0}, s{sKH}, 6
        s_add_u32 s{sOUTB}, s{sOUTB}, s{sT0}
        s_mul_i32 s{sEXW}, s2, 98304
        s_mul_i32 s{sT0}, s{sW}, 24576
        s_add_u32 s{sEXW}, s{sEXW}, s{sT0}
        s_add_u32 s{sEXW}, s{sEXW}, {EXCH_OFF}
    """
    def late_setup():
        g.e(f"""
        s_mov_b32 s{sC}, {C_SCALE}
        s_mov_b32 s{sMASK}, 0xffff0000
        s_mov_b32 s{sMASK+1}, 0xffff0000
        s_lshl_b32 s{sT0}, s{sBG}, 24
        s_lshl_b32 s{sT1}, s{sH}, 17
        s_add_u32 s{sCUR}, s{sT0}, s{sT1}
        s_add_u32 s{sCUR}, s{sCUR}, s{sWOFF}
        s_add_u32 s{sNXT}, s{sCUR}, 0x400000
        s_lshl_b32 s{sT0}, s{sBR}, 23
        s_lshl_b32 s{sT1}, s{sBG}, 21
        s_add_u32 s{sOB}, s{sT0}, s{sT1}
        s_lshl_b32 s{sT0}, s{sW}, 17
        s_add_u32 s{sOB}, s{sOB}, s{sT0}
        s_lshl_b32 s{sT0}, s{sH}, 12
        s_add_u32 s{sOB}, s{sOB}, s{sT0}
        s_lshl_b32 s{sT0}, s{sKH}, 22
        s_lshl_b32 s{sT1}, s{sW}, 15
        s_add_u32 s{sWOB}, s{sT0}, s{sT1}
        s_lshl_b32 s{sT0}, s{sCB}, 8
        s_add_u32 s{sWOB}, s{sWOB}, s{sT0}
        s_lshl_b32 s{sT0}, s{sRB}, 3
        s_lshl_b32 s{sT1}, s{sW}, 1
        s_add_u32 s{sT0}, s{sT0}, s{sT1}            ; 8rb+2w
        s_lshl_b32 s{sOUTB}, s{sT0}, 16
        s_lshl_b32 s{sOOB}, s{sT0}, 17
        s_lshl_b32 s{sT1}, s{sBR}, 23
        s_add_u32 s{sOOB}, s{sOOB}, s{sT1}
        s_lshl_b32 s{sT1}, s{sKH}, 16
        s_add_u32 s{sOOB}, s{sOOB}, s{sT1}
        s_lshl_b32 s{sT1}, s{sBR}, 11
        s_add_u32 s{sOUTB}, s{sOUTB}, s{sT1}
        s_lshl_b32 s{sT1}, s{sCB}, 8
        s_add_u32 s{sOUTB}, s{sOUTB}, s{sT1}
        s_lshl_b32 s{sT1}, s{sKH}, 7
        s_add_u32 s{sOUTB}, s{sOUTB}, s{sT1}
        s_lshl_b32 s{sT1}, s{sW}, 13
        s_lshl_b32 s{sEXW}, s2, 15
        s_add_u32 s{sEXW}, s{sEXW}, s{sT1}
        s_add_u32 s{sEXW}, s{sEXW}, {EXCH_OFF}
        s_xor_b32 s{sEXR}, s2, 128
        s_lshl_b32 s{sEXR}, s{sEXR}, 15
        s_add_u32 s{sEXR}, s{sEXR}, s{sT1}
        s_add_u32 s{sEXR}, s{sEXR}, {EXCH_OFF}
        s_lshr_b32 s{sT0}, s2, {opt.get("krot_sh",3)}
        s_and_b32 s{sT0}, s{sT0}, 7
        s_lshl_b32 s{sKRO}, s{sT0}, 14
        {O4B if O4 else ""}
        {("s_mov_b32 s"+str(sPOL)+", s"+str(sBR)) if opt.get("polsel")==1 else ("s_xor_b32 s"+str(sPOL)+", s"+str(sBR)+", 1") if opt.get("polsel")==2 else ""}
        s_mov_b32 s{sITEM}, 0
        s_mov_b32 s{sNONCE}, 0
        s_mov_b32 s{sPA}, 0
        s_mov_b32 s{sSIG}, 0
        s_cmp_lg_u32 s{sW}, 0
        s_cbranch_scc1 L_NONCE_DONE
        s_memrealtime s[96:97]
        s_waitcnt lgkmcnt(0)
        s_or_b32 s96, s96, 1
        v_mov_b32 v4, s96
        v_mov_b32 v5, 0
        v_accvgpr_write_b32 a164, v4
        v_accvgpr_write_b32 a165, v5
        s_mov_b64 exec, 1
        global_atomic_cmpswap a166, v5, a[164:165], s[{sDBG}:{sDBG+1}] sc0
        s_mov_b64 exec, -1
        L_NONCE_DONE:
        """)
    def flag_store(off):
        g.e(f"""
        s_lshl_b32 s{sT0}, s2, 7
        s_add_u32 s{sT0}, s{sT0}, {FLAG_OFF}
        s_add_u32 s{sT0}, s{sT0}, {off}
        v_mov_b32 v1, s{sT0}
        v_mov_b32 v3, s{sNONCE}
        s_mov_b64 exec, 1
        global_store_dword v1, v3, s[{sWS}:{sWS+1}] sc1
        s_mov_b64 exec, -1
        """)
    nsig=[0]
    def pending_signal():
        nsig[0]+=1; n=nsig[0]
        g.e(f"""
        s_cmp_eq_u32 s{sSIG}, 0
        s_cbranch_scc1 L_SG{n}
        s_cmp_lg_u32 s{sW}, 0
        s_cbranch_scc1 L_SGX{n}
        s_sub_u32 s{sCNT}, s{sSIG}, 1
        s_lshl_b32 s{sCNT}, s{sCNT}, 2
        """)
        flag_store(f"s{sCNT}")
        g.e(f"L_SGX{n}:\ns_mov_b32 s{sSIG}, 0\nL_SG{n}:")
    def kv_soff(dst,base,ch):
        if opt.get("krot"):
            return f"s_add_u32 s{dst}, s{sKRO}, {ch*16384}\ns_and_b32 s{dst}, s{dst}, 0x1ffff\ns_add_u32 s{dst}, s{dst}, s{base}"
        return f"s_add_u32 s{dst}, s{base}, {ch*16384}"
    def kv_group(cc):
        if cc<8: srdn,base,vo,ch=S_K,sCUR,[vKD+j for j in range(4)],cc
        elif cc<16: srdn,base,vo,ch=S_V,sCUR,[vVD+(j&1) for j in range(4)],cc-8
        else: srdn,base,vo,ch=S_KN,sNXT,[vKD+j for j in range(4)],cc-16
        return (f"s_add_u32 m0, s{sWOFF}, {(cc&7)*SLOT}\n"+kv_soff(sT1,base,ch),
                [f"buffer_load_dwordx4 v{vo[j]}, {sr(srdn)}, s{sT1} offen offset:{1024*j}{NT} lds" for j in range(4)])
    def wo_group(c,track,srdn=S_WO):
        g.e(f"s_add_u32 s{sT1}, s{sPHO}, {c}\ns_and_b32 s{sT1}, s{sT1}, 7\ns_lshl_b32 s{sT1}, s{sT1}, 17\ns_add_u32 m0, s{sWOFF}, {(c&7)*SLOT}\ns_add_u32 s{sT1}, s{sT1}, s{sWOB}")
        for j in range(4):
            t=f"buffer_load_dwordx4 v{vWOD+j}, {sr(srdn)}, s{sT1} offen offset:{1024*j}{NTO} lds"
            g.vmop(t,('wo',c)) if track else g.e(t)
    def kidx(s,dst,shift):
        g.e(f"s_add_u32 s{sT0}, s{sPHI}, {s}\ns_and_b32 s{sT0}, s{sT0}, {KM}\ns_or_b32 s{sT0}, s{sT0}, {s&~KM&15}\ns_lshl_b32 s{dst}, s{sT0}, {shift}")
    def x_dma(s,i):
        slot=(s&1)*4+i
        g.e(f"s_add_u32 m0, s{sXL}, {slot*2048}\ns_add_u32 s{sT1}, s{sXB+i}, s{sKX}")
        for j in range(2): g.vmop(f"buffer_load_dwordx4 v{vXD+j}, {sr(S_X)}, s{sT1} offen offset:{1024*j}{NTX} lds",('x',s,i))
    def wq_dma(s):
        g.e(f"s_add_u32 m0, s{sWL}, {(s%3)*16384}\ns_add_u32 s{sT1}, s{sWQB}, s{sKW}")
        for j in range(4): g.vmop(f"buffer_load_dwordx4 v{vWD+j}, {sr(S_WQ)}, s{sT1} offen offset:{1024*j}{NTW} lds",('wq',s))
    def a_read(s,ks,dt,hf):
        r=64*(s&1)+(ks*8+dt)*4+2*hf
        g.lgop(f"ds_read_b64_tr_b16 a[{r}:{r+1}], v{vWR+dt} offset:{(s%3)*16384+ks*8192+hf*1024}",('A',s))
    def b_read(s,i,ks):
        n=s*4+i
        r=128+(n&1)*8+ks*4
        g.lgop(f"ds_read_b128 a[{r}:{r+3}], v{vXR+ks} offset:{((s&1)*4+i)*2048}",('B',s,i))
    tick(40)
    kidx(0,sKW,19); wq_dma(0)
    if opt.get("tlb"):
        late_setup()
        g.e(f"""
        v_lshlrev_b32 v1, 22, v0
        v_lshlrev_b32 v2, 20, v0
        v_mov_b32 v3, s{sOB}
        v_writelane_b32 v3, s{sOOB}, 1
        v_writelane_b32 v3, s{sEXW}, 2
        s_lshl_b32 s{sT0}, s2, 7
        s_add_u32 s{sT0}, s{sT0}, {FLAG_OFF}
        v_writelane_b32 v3, s{sT0}, 3
        s_mov_b32 m0, s{sWOFF}
        s_mov_b64 exec, 0xf
        """)
        g.vmop(f"buffer_load_dword v1, {sr(S_K)}, s{sCUR} offen{NT} lds",('tlb',))
        g.vmop(f"buffer_load_dword v1, {sr(S_V)}, s{sCUR} offen{NT} lds",('tlb',))
        g.vmop(f"buffer_load_dword v2, {sr(S_WO)}, s{sWOB} offen{NT} lds",('tlb',))
        g.vmop(f"buffer_load_dword v3, {sr(S_O)}, 0 offen{NT} lds",('tlb',))
        g.e("s_mov_b64 exec, 1")
        g.vmop(f"buffer_load_dword v1, {sr(S_OUT)}, s{sOUTB} offen{NT} lds",('tlb',))
        g.e("s_mov_b64 exec, -1")
    kidx(0,sKX,7)
    for i in range(4): x_dma(0,i)
    kidx(1,sKW,19); wq_dma(1)
    Q0=opt.get("q0fast",0)
    if not opt.get("qpro",0) and not Q0:
        kidx(1,sKX,7)
        for i in range(4): x_dma(1,i)
        kidx(2,sKW,19); wq_dma(2)
    tick(41)
    if not opt.get("tlb"): late_setup()
    tick(42)
    g.vmwait(('wq',0))
    tick(43)
    g.e("s_barrier")
    AR=[(ks,dt,hf) for ks in range(2) for dt in range(8) for hf in range(2)]
    for (ks,dt,hf) in AR: a_read(0,ks,dt,hf)
    g.vmwait(('x',0,0))
    tick(44)
    b_read(0,0,0); b_read(0,0,1)
    if opt.get("qpro",0) and not Q0:
        kidx(1,sKX,7)
        for i in range(4): x_dma(1,i)
        kidx(2,sKW,19); wq_dma(2)
    if Q0:
        g.e(f"s_add_u32 s{sT0}, s{sPHI}, 1\ns_and_b32 s{sT0}, s{sT0}, {KM}\ns_lshl_b32 s{sQ1}, s{sT0}, 7\ns_add_u32 s{sT0}, s{sPHI}, 2\ns_and_b32 s{sT0}, s{sT0}, {KM}\ns_lshl_b32 s{sQ2}, s{sT0}, 19\ns_add_u32 s{sQ2}, s{sQ2}, s{sWQB}")
    g.e(f"""s_add_u32 s{sT0}, s{sPHI}, 2
    s_and_b32 s{sT0}, s{sT0}, {KM}
    s_lshl_b32 s{sKX}, s{sT0}, 7
    s_add_u32 s{sT0}, s{sPHI}, 3
    s_and_b32 s{sT0}, s{sT0}, {KM}
    s_lshl_b32 s{sKW}, s{sT0}, 19""")
    for s in range(16):
        first=(Q0 and s==0)
        if s+1<16 and not first: g.vmwait(('wq',s+1))
        g.lgwait(('A',s))
        g.e("s_barrier")
        tick(s)
        G_=Gaps(64)
        dpos=opt.get("dpos",[2,7,12,17,23,28,34,39,45,50,56,61])
        if first:
            p=0
            for i in range(4):
                G_.put_post(p,S(f"s_add_u32 s{sQ3}, s{sXB+i}, s{sQ1}\ns_add_u32 m0, s{sXL}, {(4+i)*2048}"))
                for j in range(2):
                    G_.mem[p+1+j]=(lambda j=j,i=i: g.vmop(f"buffer_load_dwordx4 v{vXD+j}, {sr(S_X)}, s{sQ3} offen offset:{1024*j}{NTX} lds",('x',1,i)))
                p+=3
            G_.put_post(p,S(f"s_add_u32 m0, s{sWL}, {2*16384}"))
            for j in range(4):
                G_.mem[p+1+j]=(lambda j=j: g.vmop(f"buffer_load_dwordx4 v{vWD+j}, {sr(S_WQ)}, s{sQ2} offen offset:{1024*j}{NTW} lds",('wq',2)))
            dpos=[21,24,27,30,35,38,43,46,51,54,58,61]
        if s+3<16:
            if (s+3)%WIN==0: G_.put_post(0,S(f"s_add_u32 s{sWQB}, s{sWQB}, {WIN<<19}"))
            G_.put_post(dpos[0]-2,S(f"s_add_u32 s{sWT}, s{sWQB}, s{sKW}"))
            G_.put_post(dpos[0]-1,S(f"s_add_u32 m0, s{sWL}, {((s+3)%3)*16384}"))
            for j in range(4):
                G_.mem[dpos[j]]=(lambda j=j,s=s: g.vmop(f"buffer_load_dwordx4 v{vWD+j}, {sr(S_WQ)}, s{sWT} offen offset:{1024*j}{NTW} lds",('wq',s+3)))
            G_.put_post(dpos[3],S(f"s_add_u32 s{sKW}, s{sKW}, {1<<19}"))
            G_.put_post(dpos[3]+1,S(f"s_and_b32 s{sKW}, s{sKW}, {KM<<19}"))
        if s+2<16:
            for i in range(4):
                p=dpos[4+2*i]
                if (s+2)%WIN==0: G_.put_post(p-3,S(f"s_add_u32 s{sXB+i}, s{sXB+i}, {WIN*128}"))
                G_.put_post(p-2,S(f"s_add_u32 s{sXT}, s{sXB+i}, s{sKX}"))
                G_.put_post(p-1,S(f"s_add_u32 m0, s{sXL}, {((s&1)*4+i)*2048}"))
                for j in range(2):
                    G_.mem[dpos[4+2*i+j]]=(lambda j=j,s=s,i=i: g.vmop(f"buffer_load_dwordx4 v{vXD+j}, {sr(S_X)}, s{sXT} offen offset:{1024*j}{NTX} lds",('x',s+2,i)))
            G_.put_post(dpos[11],S(f"s_add_u32 s{sKX}, s{sKX}, 128"))
            G_.put_post(dpos[11]+1,S(f"s_and_b32 s{sKX}, s{sKX}, {KM<<7}"))
        if s in KPRE:
            c=KPRE[s]
            for j,p in enumerate(opt.get("kpos",[19,30,41,52])):
                G_.put_post(p-2,S(kv_soff(sT1,sCUR,c)))
                G_.put_post(p-1,S(f"s_add_u32 m0, s{sWOFF}, {c*SLOT}"))
                assert G_.mem[p] is None
                G_.mem[p]=(lambda j=j,c=c: g.vmop(f"buffer_load_dwordx4 v{vKD+j}, {sr(S_K)}, s{sT1} offen offset:{1024*j}{NT} lds",('kv',c)))
        if s in KREG:
            c=KREG[s]
            for j,p in enumerate(opt.get("kpos",[19,30,41,52])):
                if j==0: G_.put_post(p-2,S(f"s_add_u32 s{sKRG}, s{sCUR}, {c*16384}"))
                assert G_.mem[p] is None
                r=OACC+16*KRI[c]+4*j
                G_.mem[p]=(lambda j=j,r=r: g.e(f"buffer_load_dwordx4 {ar(r)}, v{vKD+j}, {sr(S_K)}, s{sKRG} offen offset:{1024*j}{NT}"))
        WT={int(k):v for k,v in opt.get("wotouch",{}).items()}
        if s in WT:
            n_=WT[s]; p=20
            assert G_.mem[p] is None
            G_.put_post(p-2,S(f"s_add_u32 s{sT1}, s{sTCH}, {n_*8192}"))
            G_.put_post(p-1,S(f"s_add_u32 m0, s{sWOFF}, {2*SLOT}"))
            G_.mem[p]=(lambda: g.vmop(f"buffer_load_dword v{vTCH}, {sr(S_WO)}, s{sT1} offen lds",('tch',)))
        for i in range(4):
            nxt=(s,i+1) if i<3 else ((s+1,0) if s+1<16 else None)
            if nxt:
                q=G_.put_mem(16*i+opt.get("bpos",4),lambda nxt=nxt: b_read(nxt[0],nxt[1],0),lo=16*i,hi=16*i+16)
                G_.put_pre(q,lambda nxt=nxt: g.vmwait(('x',)+nxt))
                G_.put_mem(q+1,lambda nxt=nxt: b_read(nxt[0],nxt[1],1),lo=q+1,hi=16*i+16)
        if first:
            G_.put_pre(31,lambda: (g.vmwait(('wq',1)), g.e("s_barrier")))
            for n_,(ks,dt,hf) in enumerate(AR):
                G_.put_mem(32+n_*28/32.0,lambda ks=ks,dt=dt,hf=hf,s=s: a_read(s+1,ks,dt,hf),lo=32,hi=64)
        elif s+1<16:
            aend=opt.get("aend",56)
            for n_,(ks,dt,hf) in enumerate(AR):
                G_.put_mem(n_*aend/32.0,lambda ks=ks,dt=dt,hf=hf,s=s: a_read(s+1,ks,dt,hf),hi=62)
        M=[]
        for i in range(4):
            n=s*4+i
            for ks in range(2):
                for dt in range(8):
                    d=ACC+(i*8+dt)*4
                    txt=f"v_mfma_f32_16x16x32_bf16 {vr(d)}, {ar(64*(s&1)+(ks*8+dt)*4)}, {ar(128+(n&1)*8+ks*4)}, {'0' if (s==0 and ks==0) else vr(d)}"
                    if ks==0 and dt==0: M.append(lambda txt=txt,s=s,i=i: (g.lgwait(('B',s,i)), g.e(txt)))
                    else: M.append(txt)
        G_.emit(g,M)
    tick(16)
    if KREG: g.e("s_waitcnt vmcnt(0)")
    g.e("s_barrier")
    if KREG:
        g.e(f"v_add_u32 v1, s{sWOFF}, v{vOS}\nv_add_u32 v3, 0x10000, v1")
        for c in sorted(KREG.values()):
            for j in range(4):
                r=OACC+16*KRI[c]+4*j
                off=c*SLOT+j*1024
                if off<65536: g.e(f"ds_write_b128 v1, {ar(r)} offset:{off}")
                else: g.e(f"ds_write_b128 v3, {ar(r)} offset:{off-65536}")
            if c==3: pass
    rest=[cc for cc in range(LA) if cc not in KPRE.values() and cc not in KREG.values()]
    late=rest[-opt.get("late",0):] if opt.get("late",0) else []
    for cc in rest:
        if cc in late: continue
        h,dm=kv_group(cc); g.e(h)
        for l in dm: g.e(l)
    for i in range(4):
        for t in range(4):
            bx=ACC+(i*8+2*t)*4; by=bx+4; F=QF+16*i+4*t
            g.e(f"""
            v_cvt_pk_bf16_f32 v56, v{bx}, v{bx+1}
            v_cvt_pk_bf16_f32 v57, v{bx+2}, v{bx+3}
            v_cvt_pk_bf16_f32 v58, v{by}, v{by+1}
            v_cvt_pk_bf16_f32 v59, v{by+2}, v{by+3}
            v_cndmask_b32 v{F}, v56, v58, s[{sMASK}:{sMASK+1}]
            v_cndmask_b32 v{F+1}, v57, v59, s[{sMASK}:{sMASK+1}]
            v_cndmask_b32 v{F+2}, v58, v56, s[{sMASK}:{sMASK+1}]
            v_cndmask_b32 v{F+3}, v59, v57, s[{sMASK}:{sMASK+1}]
            """)
    for cc in late:
        h,dm=kv_group(cc); g.e(h)
        for l in dm: g.e(l)
    if KREG: g.e("s_waitcnt lgkmcnt(0)")
    tick(17); tick_store(); stamp(); dstamp(3)
    g.label("L_ITEM")
    g.vm=[]; g.lg=[]
    tick(40)
    g.e(f"s_cmp_lt_u32 s{sITEM}, 3\ns_cselect_b32 s{S_KN+2}, {64*MB}, 0\ns_cselect_b32 s{sLAST}, 0, 1")
    for n in range(4):
        g.e(f"s_cmp_eq_u32 s{sITEM}, {n}\ns_cbranch_scc0 L_QC{n}")
        for r in range(16): g.e(f"v_accvgpr_write_b32 a{QCUR+r}, v{QF+16*n+r}")
        g.label(f"L_QC{n}")
    MX=4
    def pcalc(J):
        b=ACC+8*J
        L=[f"v_fma_f32 v{TA+r}, v{b+r}, s{sC}, -v4" for r in range(8)]
        L+=[f"v_exp_f32 v{TA+r}, v{TA+r}" for r in range(8)]
        L+=[f"v_cvt_pk_bf16_f32 v{ACC+4*J+r}, v{TA+2*r}, v{TA+2*r+1}" for r in range(4)]
        return L
    def reads(c):
        st=c&1; sl=c&7; hi=sl>=4; so=(sl&3)*SLOT; R=[]
        if c<8:
            for kt in range(4):
                for t in range(4):
                    R.append(lambda kt=kt,t=t: g.lgop(f"ds_read_b128 {ar(64*st+(kt*4+t)*4)}, v{vKR+(4 if hi else 0)+t} offset:{so+kt*4096}",('F',c,kt)))
        else:
            for js in range(2):
                for dt in range(8):
                    for hf in range(2):
                        r=64*st+(js*8+dt)*4+2*hf
                        R.append(lambda r=r,js=js,dt=dt,hf=hf: g.lgop(f"ds_read_b64_tr_b16 a[{r}:{r+1}], v{vVR+(8 if hi else 0)+dt} offset:{so+js*8192+hf*4096}",('F',c,js*8+dt)))
        return R
    g.e(f"s_waitcnt vmcnt({4*(LA-1)})\ns_barrier")
    for f in reads(0): f()
    for c in range(16):
        cc=c+LA
        if c<15: g.e(f"s_waitcnt vmcnt({4*(LA-2)})")
        if opt.get("oearly") and 9<=c<15:
            g.e(f"s_cmp_eq_u32 s{sLAST}, 1\ns_cbranch_scc1 L_TL{c}\ns_waitcnt vmcnt({opt['thra']})\nL_TL{c}:")
        elif opt.get("thra") is not None and c<15:
            if c<opt.get("thra_skip_all",0):
                if opt.get("thra_alt") is not None: g.e(f"s_waitcnt vmcnt({opt['thra_alt']})")
            elif c<opt.get("thra_skip",0):
                g.e(f"s_cmp_eq_u32 s{sITEM}, 0\ns_cbranch_scc1 L_TS{c}\ns_waitcnt vmcnt({opt['thra']})\nL_TS{c}:")
            else: g.e(f"s_waitcnt vmcnt({opt['thra']})")
        if opt.get("thr") is not None and c<15:
            g.e(f"s_bitcmp1_b32 s2, 0\ns_cbranch_scc{opt.get('thr_par',1)} L_TH{c}\ns_waitcnt vmcnt({opt['thr']})\nL_TH{c}:")
        g.e("s_barrier")
        tick(c)
        dm=[]
        if (cc<16 or cc>=16+NWOP) and opt.get("polsel"):
            h,dl=kv_group(cc); g.e(h)
            g.e(f"s_cmp_lg_u32 s{sPOL}, 0\ns_cbranch_scc1 L_PB{c}")
            for l in dl: g.e(l)
            g.e(f"s_branch L_PJ{c}\nL_PB{c}:")
            for l in dl: g.e(l.replace(NT,""))
            g.e(f"L_PJ{c}:")
        elif cc<16 or cc>=16+NWOP:
            h,dl=kv_group(cc); g.e(h); dm=[(lambda l=l: g.e(l)) for l in dl]
        else:
            k=cc-16
            g.e(f"s_cmp_eq_u32 s{sLAST}, 1\ns_cbranch_scc1 L_HO{k}")
            h,dl=kv_group(cc); g.e(h)
            if opt.get("polsel"):
                g.e(f"s_cmp_lg_u32 s{sPOL}, 0\ns_cbranch_scc1 L_PC{k}")
                for l in dl: g.e(l)
                g.e(f"s_branch L_HJ{k}\nL_PC{k}:")
                for l in dl: g.e(l.replace(NT,""))
            else:
                for l in dl: g.e(l)
            g.e(f"s_branch L_HJ{k}")
            g.label(f"L_HO{k}")
            wo_group(k,False)
            g.label(f"L_HJ{k}")
        if opt.get("oearly") and 9<=c<15:
            n_=(c-9)>>1; t0=2*((c-9)&1)
            g.e(f"s_cmp_eq_u32 s{sLAST}, 1\ns_cbranch_scc0 L_OE{c}\ns_sub_u32 s{sT0}, s{sOB}, {(3-n_)*0x80000}")
            for t in (t0,t0+1): g.e(f"buffer_store_dwordx4 {vr(QF+16*n_+4*t)}, v{vOS}, {sr(S_O)}, s{sT0} offen offset:{t*1024}{STO}")
            g.label(f"L_OE{c}")
        R=reads(c+1) if c<15 else []
        st=c&1; M=[]; VL=[]
        if c<8:
            for kt in range(4):
                T=4*c+kt; d=ACC+4*T
                for t in range(4):
                    txt=f"v_mfma_f32_16x16x32_bf16 {vr(d)}, {ar(64*st+(kt*4+t)*4)}, {ar(QCUR+4*t)}, {'0' if t==0 else vr(d)}"
                    M.append((lambda txt=txt,kt=kt,c=c: (g.lgwait(('F',c,kt)), g.e(txt))) if t==0 else txt)
            if c>0:
                for kt in range(4):
                    b=ACC+16*(c-1)+4*kt
                    if c==1: VL+=[f"v_max3_f32 v{MX+kt}, v{b}, v{b+1}, v{b+2}",f"v_max_f32 v{MX+kt}, v{MX+kt}, v{b+3}"]
                    else: VL+=[f"v_max3_f32 v{MX+kt}, v{MX+kt}, v{b}, v{b+1}",f"v_max3_f32 v{MX+kt}, v{MX+kt}, v{b+2}, v{b+3}"]
        else:
            cv=c-8
            for js in range(2):
                J=2*cv+js; P=ACC+4*J
                for dt in range(8):
                    d=OA+4*dt
                    txt=f"v_mfma_f32_16x16x32_bf16 {ar(d)}, {ar(64*st+(js*8+dt)*4)}, {vr(P)}, {'0' if J==0 else ar(d)}"
                    M.append(lambda txt=txt,c=c,k=js*8+dt: (g.lgwait(('F',c,k)), g.e(txt)))
                M.append(f"v_mfma_f32_16x16x32_bf16 {ar(LAcc)}, {ar(ONES)}, {vr(P)}, {'0' if J==0 else ar(LAcc)}")
            if cv<7:
                for J in (2*cv+2,2*cv+3): VL+=pcalc(J)
        if c<7: pat=['tv','tv','tt','d']*4
        elif c==7: pat=['ttv','tt','ttv','dtt']*4
        else: pat=['ttv','ttv','ttv','dvvvv']*4+['ttttvv','ttttvv']
        if opt.get("dfront"):
            nd=opt["dfront"]
            pat=[p.replace('d','') for p in pat]
            for q in range(4): pat[min(q*nd,len(pat)-1)]='d'+pat[min(q*nd,len(pat)-1)]
        ti=vi=di=0
        for m,p in zip(M,pat):
            m() if callable(m) else g.e(m)
            for ch in p:
                if ch=='t' and ti<len(R): R[ti](); ti+=1
                elif ch=='v' and vi<len(VL): g.e(VL[vi]); vi+=1
                elif ch=='d' and di<len(dm): dm[di](); di+=1
        while ti<len(R): R[ti](); ti+=1
        while di<len(dm): dm[di](); di+=1
        while vi<len(VL): g.e(VL[vi]); vi+=1
        if c==7:
            g.e("s_nop 7")
            for kt in range(4):
                b=ACC+16*7+4*kt
                g.e(f"v_max3_f32 v{MX+kt}, v{MX+kt}, v{b}, v{b+1}\nv_max3_f32 v{MX+kt}, v{MX+kt}, v{b+2}, v{b+3}")
            g.e(f"""
            v_max3_f32 v4, v4, v5, v6
            v_max_f32 v4, v4, v7
            v_mov_b32 v5, v4
            s_nop 1
            v_permlane16_swap_b32 v4, v5
            v_max_f32 v4, v4, v5
            v_mov_b32 v5, v4
            s_nop 1
            v_permlane32_swap_b32 v4, v5
            v_max_f32 v4, v4, v5
            v_mul_f32 v4, s{sC}, v4
            """)
            for J in (0,1):
                for l in pcalc(J): g.e(l)
    tick(16)
    g.e(f"s_nop 7\nv_accvgpr_read_b32 v4, a{LAcc}\ns_nop 0\nv_rcp_f32 v4, v4")
    if opt.get("odefer"):
        for r in range(32): g.e(f"v_accvgpr_read_b32 v{128+r}, a{OA+r}")
        for r in range(32): g.e(f"v_mul_f32 v{128+r}, v{128+r}, v4")
        for n in range(4):
            g.e(f"s_cmp_eq_u32 s{sITEM}, {n}\ns_cbranch_scc0 L_OP{n}")
            for r in range(16): g.e(f"v_cvt_pk_bf16_f32 v{QF+16*n+r}, v{128+2*r}, v{129+2*r}")
            g.label(f"L_OP{n}")
        g.e(f"s_cmp_eq_u32 s{sLAST}, 1\ns_cbranch_scc0 L_OSKIP")
        g.e(f"s_sub_u32 s{sT1}, s{sOB}, {0 if opt.get('oearly') else 3*0x80000}")
        for n in (range(3,4) if opt.get("oearly") else range(4)):
            for t in range(4):
                g.e(f"buffer_store_dwordx4 {vr(QF+16*n+4*t)}, v{vOS}, {sr(S_O)}, s{sT1} offen offset:{t*1024}{STO}")
            if n<3: g.e(f"s_add_u32 s{sT1}, s{sT1}, 0x80000")
        g.label("L_OSKIP")
    else:
        for t in range(4):
            tb=128+16*t
            for r in range(8): g.e(f"v_accvgpr_read_b32 v{tb+r}, a{OA+8*t+r}")
            for r in range(8): g.e(f"v_mul_f32 v{tb+r}, v{tb+r}, v4")
            for r in range(4): g.e(f"v_cvt_pk_bf16_f32 v{tb+8+r}, v{tb+2*r}, v{tb+2*r+1}")
            if not opt.get("no_ostore"): g.e(f"buffer_store_dwordx4 {vr(tb+8)}, v{vOS}, {sr(S_O)}, s{sOB} offen offset:{t*1024}{STO}")
    g.e(f"""
    s_add_u32 s{sCUR}, s{sCUR}, 0x400000
    s_add_u32 s{sNXT}, s{sNXT}, 0x400000
    s_add_u32 s{sOB}, s{sOB}, {0 if opt.get("osame") else 0x80000}
    s_cmp_eq_u32 s{sLAST}, 1
    s_cbranch_scc0 L_A_DONE
    s_waitcnt vmcnt(0)
    s_barrier
    s_cmp_lg_u32 s{sW}, 0
    s_cbranch_scc1 L_A_DONE
    v_accvgpr_read_b32 v1, a166
    v_accvgpr_read_b32 v3, a164
    s_nop 0
    v_readfirstlane_b32 s{sT0}, v1
    v_readfirstlane_b32 s{sT1}, v3
    s_nop 3
    s_cmp_eq_u32 s{sT0}, 0
    s_cselect_b32 s{sNONCE}, s{sT1}, s{sT0}
    """)
    flag_store(0)
    g.e(f"L_A_DONE:\ns_add_u32 s{sITEM}, s{sITEM}, 1")
    tick(17); tick_store(); stamp()
    g.e(f"s_cmp_lt_u32 s{sITEM}, 4\ns_cbranch_scc1 L_ITEM")
    def xst(i):
        if opt.get("xstamps"):
            g.e(f"s_mov_b32 s101, s{sSEGN}\ns_mov_b32 s{sSEGN}, {i}"); stamp(); g.e(f"s_mov_b32 s{sSEGN}, s101")
    def phase_o4():
        dstamp(4)
        g.vm=[]; g.lg=[]
        g.e(f"s_lshl_b32 s{sT0}, s{sKH}, 6")
        for dt in range(16): g.e(f"v_xor_b32 v{vWOR+dt}, s{sT0}, v{vVR+dt}")
        g.e(f"v_add_u32 v{vOS2}, 0x40000, v{vOS}\nv_add_u32 v{vOS3}, 0x60000, v{vOS}")
        g.e(f"""
        s_cmp_lg_u32 s{sW}, 0
        s_cbranch_scc1 L_O_WAITB
        v_mov_b32 v1, {128*K1}
        v_mov_b32 v3, s{sNONCE}
        ds_write_b32 v1, v3
        s_mov_b32 s{sCNT}, 0
        s_mov_b64 exec, 0xff
        L_O_POLL:
        global_load_dword v3, v{vPA}, s[{sWS}:{sWS+1}] sc1
        s_add_u32 s{sCNT}, s{sCNT}, 1
        s_waitcnt vmcnt(0)
        v_cmp_eq_u32 vcc, s{sNONCE}, v3
        s_cmp_gt_u32 s{sCNT}, 0x40000
        s_cbranch_scc1 L_O_POLLX
        s_nop 1
        s_cmp_lg_u32 vcc_lo, 0xff
        s_cbranch_scc1 L_O_POLL
        L_O_POLLX:
        s_mov_b64 exec, -1
        s_waitcnt lgkmcnt(0)
        L_O_WAITB:
        s_barrier
        v_mov_b32 v1, {128*K1}
        ds_read_b32 v3, v1
        s_waitcnt lgkmcnt(0)
        v_readfirstlane_b32 s{sNONCE}, v3
        """)
        dstamp(5)
        if opt.get("stamps"):
            g.e(f"s_mov_b32 s101, s{sSEGN}\ns_mov_b32 s{sSEGN}, 9"); stamp(); g.e(f"s_mov_b32 s{sSEGN}, s101")
        OL=3; WL=5; OF=128; NS=16; OA4=128
        vQ=[vOS,vOS1,vOS2,vOS3]
        def cid(j): return j&8
        def o_txt(s_,k):
            rt,js=k>>1,k&1
            r=OF+(s_&3)*32+(rt*2+js)*4
            return f"buffer_load_dwordx4 {vr(r)}, v{vQ[rt]}, {sr(S_O)}, s{sKO} offen offset:{js*1024}{NTOO}"
        for s_ in range(OL):
            g.e(f"s_add_u32 s{sT0}, s{sPHO}, {s_}\ns_and_b32 s{sT0}, s{sT0}, 7\ns_lshl_b32 s{sT0}, s{sT0}, 11\ns_add_u32 s{sKO}, s{sT0}, s{sOOB}")
            for k in range(8): g.e(o_txt(s_,k))
        RD=[(js,nt,hf) for js in range(2) for nt in range(8) for hf in range(2)]
        def rd(u,js,nt,hf):
            r=64*(u&1)+(js*8+nt)*4+2*hf; sl=u&7
            g.lgop(f"ds_read_b64_tr_b16 a[{r}:{r+1}], v{vWOR+(8 if sl>=4 else 0)+nt} offset:{(sl&3)*SLOT+js*8192+hf*4096}",('A',u,js,nt))
        for (js,nt,hf) in RD: rd(0,js,nt,hf)
        g.e(f"""s_add_u32 s{sT0}, s{sPHO}, {WL}
        s_and_b32 s{sT0}, s{sT0}, 7
        s_lshl_b32 s{sWLO}, s{sT0}, 17
        s_add_u32 s{sT0}, s{sPHO}, {OL}
        s_and_b32 s{sT0}, s{sT0}, 7
        s_lshl_b32 s{sOLO}, s{sT0}, 11""")
        for u in range(NS):
            yv=8*len([j for j in range(u+1,min(u+OL,NS))])
            n=min(12,yv)
            if u+1<NS and u+1>=NWOP:
                yd=4*len([j for j in range(u+2,min(u+WL,NS))])
                n=min(n,yd)
            g.e(f"s_waitcnt vmcnt({n})")
            g.e("s_barrier")
            tick(u)
            G_=Gaps(64)
            if u+WL<NS:
                if u+WL==8: G_.put_post(0,S(f"s_add_u32 s{sWOB}, s{sWOB}, {8<<17}"))
                G_.put_post(1,S(f"s_add_u32 s{sKWO}, s{sWLO}, s{sWOB}"))
                G_.put_post(2,S(f"s_add_u32 m0, s{sWOFF}, {((u+WL)&7)*SLOT}"))
                G_.put_post(20,S(f"s_add_u32 s{sWLO}, s{sWLO}, {1<<17}"))
                G_.put_post(21,S(f"s_and_b32 s{sWLO}, s{sWLO}, {7<<17}"))
                for j,p in enumerate([3,19,35,51]):
                    G_.mem[p]=(lambda j=j: g.e(f"buffer_load_dwordx4 v{vWOD+j}, {sr(S_WO)}, s{sKWO} offen offset:{1024*j}{NTO} lds"))
            if u+OL<NS:
                if u+OL==8: G_.put_post(4,S(f"s_add_u32 s{sOOB}, s{sOOB}, {8<<11}"))
                G_.put_post(5,S(f"s_add_u32 s{sKO}, s{sOLO}, s{sOOB}"))
                G_.put_post(61,S(f"s_add_u32 s{sOLO}, s{sOLO}, {1<<11}"))
                G_.put_post(62,S(f"s_and_b32 s{sOLO}, s{sOLO}, {7<<11}"))
                for k,p in enumerate([7,13,23,29,39,45,55,60]):
                    G_.mem[p]=(lambda k=k,u=u: g.e(o_txt(u+OL,k)))
            if u+1<NS:
                for n_,(js,nt,hf) in enumerate(RD):
                    G_.put_mem(n_*58/32.0,lambda js=js,nt=nt,hf=hf,u=u: rd(u+1,js,nt,hf),hi=62)
            M=[]
            for js in range(2):
                for nt in range(8):
                    for rt in range(4):
                        d=OA4+(rt*8+nt)*4
                        txt=f"v_mfma_f32_16x16x32_bf16 {ar(d)}, {ar(64*(u&1)+(js*8+nt)*4)}, {vr(OF+(u&3)*32+(rt*2+js)*4)}, {'0' if (u==0 and js==0) else ar(d)}"
                        if rt==0: M.append(lambda txt=txt,u=u,js=js,nt=nt: (g.lgwait(('A',u,js,nt)), g.e(txt)))
                        else: M.append(txt)
            G_.emit(g,M)
        tick(16); tick(17); tick_store(); stamp(); dstamp(6)
        g.e("s_nop 7")
        for d in range(1,4):
            for hb in range(2):
                g.e(f"s_add_u32 s{sT1}, s{sEXW}, {(d-1)*8192+hb*4096}")
                for rr in range(2):
                    rt=2*hb+rr
                    for m in range(2):
                        g.e(f"buffer_store_dwordx4 {ar(OA4+(rt*8+2*d+m)*4)}, v{vOS}, {sr(S_O)}, s{sT1} offen offset:{(rr*2+m)*1024} sc1")
        for rt in range(4):
            for m in range(2):
                for q in range(4): g.e(f"v_accvgpr_read_b32 v{224+(rt*2+m)*4+q}, a{OA4+(rt*8+m)*4+q}")
        g.e(f"""
        v_lshrrev_b32 v3, 4, v0
        v_and_b32 v4, 15, v0
        v_lshlrev_b32 v5, 3, v3
        v_lshl_add_u32 v52, v4, 12, v5
        s_lshl_b32 s{sCNT}, s{sW}, 2
        s_add_u32 s{sCNT}, s{sCNT}, 16
        v_add_u32 v5, 1, v0
        v_xor_b32 v5, s2, v5
        v_lshlrev_b32 v5, 7, v5
        s_add_u32 s{sT0}, s{sCNT}, {FLAG_OFF}
        v_add_u32 v53, s{sT0}, v5
        s_waitcnt vmcnt(0)
        """)
        xst(11)
        flag_store(f"s{sCNT}")
        g.e(f"""
        s_mov_b32 s{sCNT}, 0
        s_mov_b64 exec, 7
        L_X_POLL:
        global_load_dword v3, v53, s[{sWS}:{sWS+1}] sc1
        s_add_u32 s{sCNT}, s{sCNT}, 1
        s_waitcnt vmcnt(0)
        v_cmp_eq_u32 vcc, s{sNONCE}, v3
        s_cmp_gt_u32 s{sCNT}, 0x40000
        s_cbranch_scc1 L_X_POLLX
        s_nop 1
        s_cmp_lg_u32 vcc_lo, 7
        s_cbranch_scc1 L_X_POLL
        L_X_POLLX:
        s_mov_b64 exec, -1
        """)
        xst(12)
        for d in range(1,4):
            g.e(f"s_xor_b32 s{sT0}, s2, {d}\ns_mul_i32 s{sT0}, s{sT0}, 98304\ns_mul_i32 s{sT1}, s{sW}, 24576\ns_add_u32 s{sT0}, s{sT0}, s{sT1}\ns_add_u32 s{sEXR}, s{sT0}, {EXCH_OFF+(d-1)*8192}")
            for hb in range(2):
                if hb==1: g.e(f"s_add_u32 s{sEXR}, s{sEXR}, 4096")
                for k in range(4):
                    g.e(f"buffer_load_dwordx4 {vr(128+((d-1)*8+hb*4+k)*4)}, v{vOS}, {sr(S_O)}, s{sEXR} offen offset:{k*1024} sc1")
        g.e("s_waitcnt vmcnt(0)")
        xst(13)
        for rt in range(4):
            if rt>0: g.e(f"s_add_u32 s{sOUTB}, s{sOUTB}, 0x10000")
            for m in range(2):
                dd=224+(rt*2+m)*4
                for d in range(3):
                    r=128+(d*8+rt*2+m)*4
                    for q in range(4): g.e(f"v_add_f32 v{dd+q}, v{dd+q}, v{r+q}")
                g.e(f"""v_cvt_pk_bf16_f32 v{dd}, v{dd}, v{dd+1}
                v_cvt_pk_bf16_f32 v{dd+1}, v{dd+2}, v{dd+3}
                buffer_store_dwordx2 v[{dd}:{dd+1}], v52, {sr(S_OUT)}, s{sOUTB} offen offset:{m*32}{opt.get("st_out","")}""")
    def phase_o2():
        dstamp(4)
        g.vm=[]; g.lg=[]
        tick(40)
        g.e(f"s_lshl_b32 s{sT0}, s{sKH}, 7")
        for dt in range(16): g.e(f"v_xor_b32 v{vWOR+dt}, s{sT0}, v{vVR+dt}")
        g.e("v_mov_b32 v1, 0")
        for r in range(64): g.e(f"v_accvgpr_write_b32 a{OACC+r}, v1")
        g.e(f"""
        s_cmp_lg_u32 s{sW}, 0
        s_cbranch_scc1 L_O_WAITB
        v_mov_b32 v1, {128*K1}
        v_mov_b32 v3, s{sNONCE}
        ds_write_b32 v1, v3
        s_mov_b32 s{sCNT}, 0
        s_mov_b64 exec, 0xffff
        L_O_POLL:
        global_load_dword v3, v{vPA}, s[{sWS}:{sWS+1}] sc1
        s_add_u32 s{sCNT}, s{sCNT}, 1
        s_waitcnt vmcnt(0)
        v_cmp_eq_u32 vcc, s{sNONCE}, v3
        s_cmp_gt_u32 s{sCNT}, 0x40000
        s_cbranch_scc1 L_O_POLLX
        s_nop 1
        s_cmp_lg_u32 vcc_lo, 0xffff
        s_cbranch_scc1 L_O_POLL
        L_O_POLLX:
        s_mov_b64 exec, -1
        s_waitcnt lgkmcnt(0)
        L_O_WAITB:
        s_barrier
        v_mov_b32 v1, {128*K1}
        ds_read_b32 v3, v1
        s_waitcnt lgkmcnt(0)
        v_readfirstlane_b32 s{sNONCE}, v3
        """)
        tick(41); dstamp(5)
        if opt.get("stamps"):
            g.e(f"s_mov_b32 s101, s{sSEGN}\ns_mov_b32 s{sSEGN}, 9"); stamp(); g.e(f"s_mov_b32 s{sSEGN}, s101")
        OL=3; WL=NWOP; OF=128; NCH=32
        def o_1(st,k,srdn,tag=None):
            rt,js=k>>1,k&1
            r=OF+st*16+(rt*2+js)*4
            g.e(f"buffer_load_dwordx4 {vr(r)}, v{vOS if rt==0 else vOS1}, {sr(srdn)}, s{sKO} offen offset:{js*1024}{NTOO}")
        for c in range(OL):
            g.e(f"s_add_u32 s{sT0}, s{sPHO}, {c}\ns_and_b32 s{sT0}, s{sT0}, 7\ns_lshl_b32 s{sT0}, s{sT0}, 11\ns_add_u32 s{sKO}, s{sT0}, s{sOOB}")
            for k in range(4): o_1(c,k,S_O)
        RD=[(js,nt,hf) for js in range(2) for nt in range(8) for hf in range(2)]
        def a_read2(u,js,nt,hf):
            r=64*(u&1)+(js*8+nt)*4+2*hf
            sl=u&7
            g.lgop(f"ds_read_b64_tr_b16 a[{r}:{r+1}], v{vWOR+(8 if sl>=4 else 0)+nt} offset:{(sl&3)*SLOT+js*8192+hf*4096}",('A',u&1,js,nt))
        for (js,nt,hf) in RD: a_read2(0,js,nt,hf)
        g.e(f"""s_add_u32 s{sT0}, s{sPHO}, {WL}
        s_and_b32 s{sT0}, s{sT0}, 7
        s_lshl_b32 s{sWLO}, s{sT0}, 17
        s_add_u32 s{sT0}, s{sPHO}, {OL}
        s_and_b32 s{sT0}, s{sT0}, 7
        s_lshl_b32 s{sOLO}, s{sT0}, 11
        s_mov_b32 s{sJ}, 0""")
        def body(u):
            g.e(f"s_waitcnt vmcnt(8)")
            g.e("s_barrier")
            if opt.get("steps"): g.e(f"s_memtime s[96:97]\ns_waitcnt lgkmcnt(0)\ns_sub_u32 s99, s96, s98\ns_mov_b32 s98, s96\nv_readlane_b32 s97, v62, {u}\ns_nop 3\ns_add_u32 s97, s97, s99\ns_nop 0\nv_writelane_b32 v62, s97, {u}"); g.lg=[]
            G_=Gaps(32)
            vp=opt.get("o_vpos",[3,7,11,15,19,23,27,31])
            if u+WL==8:
                G_.put_post(0,S(f"s_add_u32 s{sWOB}, s{sWOB}, {8<<17}\ns_cmp_lt_u32 s{sJ}, {NCH-8}\ns_cselect_b32 s{S_WON+2}, {8*MB}, 0"))
            G_.put_post(1,S(f"s_add_u32 s{sKWO}, s{sWLO}, s{sWOB}"))
            G_.put_post(2,S(f"s_add_u32 m0, s{sWOFF}, {((u+WL)&7)*SLOT}"))
            if u+OL==8:
                G_.put_post(4,S(f"s_add_u32 s{sOOB}, s{sOOB}, {8<<11}\ns_cmp_lt_u32 s{sJ}, {NCH-8}\ns_cselect_b32 s{S_ON+2}, {WS_SRD}, 0"))
            G_.put_post(5,S(f"s_add_u32 s{sKO}, s{sOLO}, s{sOOB}"))
            G_.put_post(8,S(f"s_add_u32 s{sWLO}, s{sWLO}, {1<<17}"))
            G_.put_post(9,S(f"s_and_b32 s{sWLO}, s{sWLO}, {7<<17}"))
            G_.put_post(12,S(f"s_add_u32 s{sOLO}, s{sOLO}, {1<<11}"))
            G_.put_post(13,S(f"s_and_b32 s{sOLO}, s{sOLO}, {7<<11}"))
            for j in range(4):
                G_.mem[vp[2*j]]=(lambda j=j: g.e(f"buffer_load_dwordx4 v{vWOD+j}, {sr(S_WON)}, s{sKWO} offen offset:{1024*j}{NTO} lds"))
                G_.mem[vp[2*j+1]]=(lambda j=j,u=u: o_1((u+OL)&3,j,S_ON))
            rend=opt.get("o_rend",30)
            for n_,(js,nt,hf) in enumerate(RD):
                G_.put_mem(n_*rend/32.0,lambda js=js,nt=nt,hf=hf,u=u: a_read2(u+1,js,nt,hf))
            M=[]
            for js in range(2):
                for nt in range(8):
                    for rt in range(2):
                        d=OACC+(rt*8+nt)*4
                        txt=f"v_mfma_f32_16x16x32_bf16 {ar(d)}, {ar(64*(u&1)+(js*8+nt)*4)}, {vr(OF+(u&3)*16+(rt*2+js)*4)}, {ar(d)}"
                        if rt==0: M.append(lambda txt=txt,u=u,js=js,nt=nt: (g.lgwait(('A',u&1,js,nt)), g.e(txt)))
                        else: M.append(txt)
            G_.emit(g,M)
        save=list(g.L)
        for u in range(8): body(u)
        lg_end=list(g.lg)
        g.L=save; g.lg=list(lg_end)
        g.e("s_waitcnt lgkmcnt(0)")
        if opt.get("steps"): g.e("v_mov_b32 v62, 0\ns_memtime s[98:99]\ns_waitcnt lgkmcnt(0)")
        g.label("L_O_LOOP")
        for u in range(8): body(u)
        assert g.lg==lg_end
        g.e(f"s_add_u32 s{sJ}, s{sJ}, 8\ns_cmp_lt_u32 s{sJ}, {NCH}\ns_cbranch_scc1 L_O_LOOP\ns_waitcnt lgkmcnt(0)")
        tick_store(); stamp(); dstamp(6)
        g.e("s_nop 7")
        for rt in range(2):
            if rt==1: g.e(f"s_add_u32 s{sEXW}, s{sEXW}, 4096")
            for m in range(4):
                d=OACC+(rt*8+4+m)*4
                g.e(f"buffer_store_dwordx4 {ar(d)}, v{vOS}, {sr(S_O)}, s{sEXW} offen offset:{m*1024} sc1")
        for rt in range(2):
            for m in range(4):
                for q in range(4): g.e(f"v_accvgpr_read_b32 v{128+(rt*4+m)*4+q}, a{OACC+(rt*8+m)*4+q}")
        g.e(f"""
        v_lshrrev_b32 v3, 4, v0
        v_and_b32 v4, 15, v0
        v_lshlrev_b32 v5, 3, v3
        v_lshl_add_u32 v52, v4, 12, v5
        s_lshl_b32 s{sCNT}, s{sW}, 2
        s_add_u32 s{sCNT}, s{sCNT}, 16
        s_waitcnt vmcnt(0)
        """)
        xst(11)
        flag_store(f"s{sCNT}")
        g.e(f"""
        s_xor_b32 s{sT0}, s2, 128
        s_lshl_b32 s{sT0}, s{sT0}, 7
        s_add_u32 s{sT0}, s{sT0}, {FLAG_OFF}
        s_add_u32 s{sT0}, s{sT0}, s{sCNT}
        v_mov_b32 v1, s{sT0}
        s_mov_b32 s{sCNT}, 0
        s_mov_b64 exec, 1
        L_X_POLL:
        global_load_dword v3, v1, s[{sWS}:{sWS+1}] sc1
        s_add_u32 s{sCNT}, s{sCNT}, 1
        s_waitcnt vmcnt(0)
        v_readfirstlane_b32 s{sT0}, v3
        s_cmp_gt_u32 s{sCNT}, 0x40000
        s_cbranch_scc1 L_X_POLLX
        s_cmp_lg_u32 s{sT0}, s{sNONCE}
        s_cbranch_scc1 L_X_POLL
        L_X_POLLX:
        s_mov_b64 exec, -1
        """)
        xst(12)
        for rt in range(2):
            if rt==1: g.e(f"s_add_u32 s{sEXR}, s{sEXR}, 4096")
            for m in range(4):
                r=192+(rt*4+m)*4
                g.e(f"buffer_load_dwordx4 {vr(r)}, v{vOS}, {sr(S_O)}, s{sEXR} offen offset:{m*1024} sc1")
        for rt in range(2):
            if rt==1: g.e(f"s_add_u32 s{sOUTB}, s{sOUTB}, 0x10000")
            for m in range(4):
                d=128+(rt*4+m)*4; r=192+(rt*4+m)*4
                if rt==0 and m==0:
                    g.e("s_waitcnt vmcnt(0)"); xst(13)
                for q in range(4): g.e(f"v_add_f32 v{d+q}, v{d+q}, v{r+q}")
                g.e(f"""v_cvt_pk_bf16_f32 v{d}, v{d}, v{d+1}
                v_cvt_pk_bf16_f32 v{d+1}, v{d+2}, v{d+3}
                buffer_store_dwordx2 v[{d}:{d+1}], v52, {sr(S_OUT)}, s{sOUTB} offen offset:{m*32}{opt.get("st_out","")}""")
    phase_o4() if O4 else phase_o2()
    stamp()
    if opt.get("dstamps"):
        g.e("s_waitcnt vmcnt(0)"); dstamp(7)
    if opt.get("stamps"):
        g.e("s_waitcnt vmcnt(0)")
        g.e(f"s_mov_b32 s{sSEGN}, 10")
        stamp()
    g.label("L_END")
    g.e("s_endpgm")
    return g.text()

def build(opt):
    s="; @launch grid=(256,1,1) block=(256,1,1) lds=163840\n"
    s+=""";
;
;            row sums from an extra MFMA with a ones operand; K/V stream through an 8-slot LDS ring (non-temporal loads).
;  phase O : out tile 128 x 128 over half of K (split-K 2): o fragments straight to registers, wo through the LDS ring.
;  phase X : the two K halves exchange fp32 partial tiles through the workspace, add, round to bf16, store.
;  Hand-offs between workgroups use write-through stores + per-workgroup flag words in the workspace; flags carry a
;  per-launch tag agreed through d_debug (zero at launch), so stale workspace contents never match.  Counted vmcnt waits
"""
    s+='.amdgcn_target "amdgcn-amd-amdhsa--gfx950"\n'
    s+=f".text\n.globl {KN}\n.p2align 8\n.type {KN},@function\n{KN}:\n"
    s+=gen(opt)
    s+=f""".section .rodata,"a"
.p2align 6
.amdhsa_kernel {KN}
  .amdhsa_next_free_vgpr 512
  .amdhsa_next_free_sgpr 102
  .amdhsa_accum_offset 256
  .amdhsa_group_segment_fixed_size 0
  .amdhsa_kernarg_size 104
  .amdhsa_user_sgpr_count 2
  .amdhsa_user_sgpr_kernarg_segment_ptr 1
  .amdhsa_system_sgpr_workgroup_id_x 1
.end_amdhsa_kernel
"""
    return s
if __name__=="__main__":
    opt=json.loads(sys.argv[2]) if len(sys.argv)>2 else {}
    open(sys.argv[1],"w").write(build(opt))
```

```python
import sys, struct, math, json
from gl import *
KN="concat_heads__mha_block_cached__mha_block_cached__near_ridge_kernel"
C_SCALE=struct.unpack("<I",struct.pack("<f",math.log2(math.e)/math.sqrt(128.0)))[0]
K1=1024; MB=K1*K1
EXCH_OFF=16*MB; FLAG_OFF=44*MB; STAMP_OFF=48*MB; WS_SRD=48*MB
SLOT=16384; NPRE=3
WQBASE=48*K1; XBASE=96*K1
WO_AREA=[128*K1,144*K1,96*K1,112*K1]; WO_RB=96*K1

def gen(opt):
    opt=dict(opt); opt.setdefault('thra',4); opt.setdefault("thra_skip",4); opt.setdefault('late',1); opt.setdefault("odefer",1); opt.setdefault("qpro",1)
    g=G()
    S=lambda txt: (lambda: g.e(txt))
    NT=opt.get('nt_kv',' nt')
    NTX=opt.get("nt_x",""); NTW=opt.get("nt_wq",""); NTO=opt.get("nt_wo",""); NTOO=opt.get("nt_o"," sc1"); STO=opt.get("st_o"," sc1")
    FULL=opt.get("fullrot",0); WIN=16 if FULL else opt.get("qwin",4); KM=WIN-1
    LA=opt.get("la",4); PF=opt.get("pf",8)
    O4=opt.get("o4",0)
    OW=8 if O4 else opt.get("owin",8); OM=OW-1
    NWOP=5 if O4 else min(opt.get("nwop",7),LA)
    KREG={int(k):v for k,v in opt.get("kreg",{3:3,6:4,9:5,13:6}).items()}
    KRI={c:n for n,c in enumerate(sorted(KREG.values()))}
    KPRE={int(k):v for k,v in opt.get("kpre",{10:0,12:1,14:2}).items()}
    sPA=7;sKRG=7;sSIG=3;sKRO=100;sQ1=5;sQ2=6;sQ3=4;sPOL=88;sJ=4;sLAST=5;sCNT=6
    S_X=8;S_WQ=12;S_K=16;S_V=20;S_KN=24;S_O=28;S_WO=32;S_OUT=36;S_WON=40
    sW=44;sBR=45;sH=46;sBG=47;sRB=48;sCB=49;sKH=50;sPHI=51;sPHO=52
    sWQB=53;sKX=54;sKW=55;sXT=56;sWT=57;sT0=58;sT1=59
    sCUR=60;sNXT=61;sITEM=62;sOB=63;sC=64;sWOFF=65;sXL=66;sWL=67
    sMASK=68
    sXB=70
    sNONCE=74;sWOB=75;sOOB=76;sKWO=77;sKO=78;sWLO=79;sOLO=80;sOUTB=81;sEXW=82;sEXR=83
    S_ON=84
    sSEGN=89; sWS=90; sDBG=92; sSTB=94
    vKD=8; vVD=12; vKR=14; vVR=22; vOS=38; vOS1=39; vWOD=40; vPA=44; vTCH=45; sTCH=88; vOS2=45; vOS3=63
    vXD=46; vXR=48; vWD=50; vWR=54
    TA=52; vWOR=46
    QF=64; ACC=128
    OA=128; LAcc=160; ONES=168; QCUR=172; OACC=192
    def stamp():
        if not opt.get("stamps"): return
        g.e(f"""
        s_memrealtime s[96:97]
        s_memtime s[98:99]
        s_waitcnt lgkmcnt(0)
        v_mov_b32 v2, s96
        v_mov_b32 v3, s98
        s_lshl_b32 s96, s2, 7
        s_lshl_b32 s97, s{sSEGN}, 3
        s_add_u32 s96, s96, s97
        v_mov_b32 v1, s96
        global_store_dwordx2 v1, v[2:3], s[{sSTB}:{sSTB+1}]
        s_add_u32 s{sSEGN}, s{sSEGN}, 1
        """)
        g.lg=[]
        g.vm.append('stamp') if False else None
    def dstamp(word,neg=False):
        if not opt.get("dstamps"): return
        n=f"L_DS{word}"
        g.e(f"""
        s_cmp_lg_u32 s{sW}, 0
        s_cbranch_scc1 {n}
        s_memrealtime s[96:97]
        s_waitcnt lgkmcnt(0)
        {"s_not_b32 s96, s96" if neg else ""}
        v_mov_b32 v2, s96
        v_mov_b32 v1, {word*4}
        s_mov_b64 exec, 1
        global_atomic_umax v1, v2, s[{sDBG}:{sDBG+1}]
        s_mov_b64 exec, -1
        {n}:
        """)
        g.lg=[]
    def tick(k):
        if opt.get("steps"):
            g.e(f"s_memtime s[96:97]\ns_waitcnt lgkmcnt(0)\nv_writelane_b32 v62, s96, {k}"); g.lg=[]
    def tick_store():
        if opt.get("steps"):
            g.e(f"s_lshl_b32 s96, s2, 12\ns_lshl_b32 s97, s{sSEGN}, 8\ns_add_u32 s96, s96, s97\ns_add_u32 s96, s96, {MB}\nv_lshlrev_b32 v1, 2, v0\nv_add_u32 v1, s96, v1\nglobal_store_dword v1, v62, s[{sSTB}:{sSTB+1}]")
    PH4="s_lshr_b32 s7, s6, 1\ns_add_u32 s7, s7, s%d\ns_and_b32 s%d, s7, 3"%(sBG,sPHI)
    if opt.get("stamps"): g.e("s_memrealtime s[88:89]\ns_waitcnt lgkmcnt(0)\ns_mov_b32 s101, s88")
    g.e(f"""
    s_cmp_ge_u32 s2, 256
    s_cbranch_scc1 L_END
    s_load_dwordx4 s[96:99], s[0:1], 80
    s_load_dwordx2 s[{sWS}:{sWS+1}], s[0:1], 96
    s_and_b32 s3, s2, 7                          ; xcd
    s_lshr_b32 s4, s2, 3                         ; idx
    s_lshr_b32 s{sBR}, s3, 2
    s_and_b32 s5, s3, 3
    s_lshl_b32 s5, s5, 3
    s_and_b32 s6, s4, 7
    s_add_u32 s{sH}, s5, s6
    s_lshr_b32 s{sBG}, s4, 3
    s_lshl_b32 s7, s{sBG}, 1
    s_add_u32 s7, s7, s6
    s_and_b32 s{sPHI}, s7, 7
    {"s_lshl_b32 s"+str(sPHI)+", s"+str(sPHI)+", 1" if FULL else ""}
    {PH4 if WIN==4 else ""}
    ; O mapping
    s_lshr_b32 s5, s3, 1
    s_and_b32 s5, s5, 1
    s_lshl_b32 s5, s5, 2
    s_and_b32 s6, s4, 3
    s_add_u32 s{sRB}, s5, s6
    s_and_b32 s5, s3, 1
    s_lshl_b32 s5, s5, 2
    s_lshr_b32 s7, s4, 2
    s_and_b32 s7, s7, 3
    s_add_u32 s{sCB}, s5, s7
    s_lshr_b32 s{sKH}, s4, 4
    s_add_u32 s{sPHO}, s6, s7
    s_and_b32 s{sPHO}, s{sPHO}, 3
    s_lshl_b32 s{sPHO}, s{sPHO}, {1 if OW==8 else 0}
    s_mul_i32 s5, s{sBR}, 40
    s_add_u32 s4, s0, s5
    s_addc_u32 s5, s1, 0
    s_load_dwordx4 s[8:11], s[4:5], 0            ; x, k
    s_load_dwordx4 s[12:15], s[4:5], 16          ; v, wq
    s_load_dwordx2 s[16:17], s[4:5], 32          ; wo
    v_lshrrev_b32 v1, 6, v0
    v_and_b32 v0, 63, v0
    s_nop 0
    v_readfirstlane_b32 s{sW}, v1
    """)
    g.e(f"""
    v_lshrrev_b32 v1, 3, v0              ; r8
    v_and_b32 v2, 7, v0                  ; p8
    v_lshrrev_b32 v3, 4, v0              ; rr / g
    v_and_b32 v4, 15, v0                 ; p16 / q / key
    v_xor_b32 v5, v2, v3
    v_lshlrev_b32 v5, 4, v5
    v_lshl_add_u32 v{vXD}, v1, 11, v5
    v_xor_b32 v5, 64, v5
    v_lshl_add_u32 v5, v1, 11, v5
    v_add_u32 v{vXD+1}, {8*2048-1024}, v5
    v_lshrrev_b32 v5, 1, v4
    v_xor_b32 v5, v5, v3
    v_lshlrev_b32 v5, 4, v5
    v_lshl_add_u32 v5, v4, 7, v5
    s_lshl_b32 s{sXL}, s{sW}, 14
    s_add_u32 s{sXL}, s{sXL}, {XBASE}
    v_add_u32 v{vXR}, s{sXL}, v5
    v_xor_b32 v{vXR+1}, 64, v{vXR}
    v_and_b32 v5, 1, v3
    v_and_b32 v6, 2, v3
    v_lshl_or_b32 v5, v6, 1, v5          ; f0
    v_xor_b32 v5, v5, v4                 ; p ^ f0
    """)
    for j in range(4):
        g.e(f"""
        v_xor_b32 v6, {8*(j>>1)}, v5
        v_lshlrev_b32 v6, 4, v6
        v_lshl_add_u32 v6, v3, 13, v6
        v_add_u32 v{vWD+j}, {4*j*8192-1024*j}, v6
        """)
    g.e(f"""
    v_lshrrev_b32 v5, 2, v4              ; rp
    v_and_b32 v6, 3, v0                  ; c
    v_and_b32 v7, 1, v5
    v_and_b32 v1, 2, v5
    v_lshl_or_b32 v7, v1, 1, v7
    v_and_b32 v1, 1, v3
    v_lshl_or_b32 v7, v1, 3, v7          ; f
    v_xor_b32 v7, v7, v6                 ; c ^ f
    v_lshlrev_b32 v7, 4, v7
    v_and_b32 v1, 1, v6
    v_lshl_or_b32 v7, v1, 3, v7          ; + 8*(c&1)
    v_lshl_add_u32 v1, v3, 3, v5         ; 8kg+rp
    v_lshl_add_u32 v7, v1, 8, v7
    v_add_u32 v7, {WQBASE}, v7
    """)
    for dt in range(8):
        t,u=dt>>1,dt&1
        g.e(f"v_xor_b32 v{vWR+dt}, {(t<<6)^(u<<3)}, v7")
    for j in range(4):
        g.e(f"""
        v_add_u32 v5, {4*(j&1)}, v3
        v_lshlrev_b32 v5, 1, v5
        v_xor_b32 v5, v5, v4
        v_lshlrev_b32 v5, 4, v5
        v_lshl_add_u32 v5, v3, 11, v5
        v_add_u32 v{vWOD+j}, {4*j*2048-1024*j}, v5
        """)
    if O4:
        g.e(f"""
        v_and_b32 v5, 7, v0
        s_lshl_b32 s{sT0}, s{sBG}, 3
        v_add_u32 v5, s{sT0}, v5
        s_and_b32 s{sT0}, s2, 7
        v_lshlrev_b32 v5, 3, v5
        v_add_u32 v5, s{sT0}, v5
        v_lshlrev_b32 v5, 7, v5
        v_add_u32 v{vPA}, {FLAG_OFF}, v5
        """)
    else:
        g.e(f"""
        s_lshl_b32 s{sT0}, s{sKH}, 4
        v_add_u32 v5, s{sT0}, v4             ; h = 16kh + t
        v_lshrrev_b32 v6, 3, v5              ; h>>3
        s_lshl_b32 s{sT0}, s{sBR}, 2
        v_add_u32 v6, s{sT0}, v6             ; xcd'
        v_and_b32 v5, 7, v5
        s_lshr_b32 s{sT0}, s{sRB}, 1
        s_lshl_b32 s{sT0}, s{sT0}, 3
        v_add_u32 v5, s{sT0}, v5             ; idx'
        v_lshl_add_u32 v5, v5, 3, v6         ; wg'
        v_lshlrev_b32 v5, 7, v5
        s_mov_b32 s{sT0}, {FLAG_OFF}
        v_add_u32 v{vPA}, s{sT0}, v5
        """)
    for j in range(4):
        g.e(f"""
        v_add_u32 v5, {4*j}, v3
        v_xor_b32 v5, v5, v4
        v_lshlrev_b32 v5, 4, v5
        v_lshl_add_u32 v{vKD+j}, v3, 8, v5
        """)
    g.e(f"""
    v_xor_b32 v5, v3, v4
    v_lshlrev_b32 v5, 4, v5
    v_lshl_add_u32 v5, v4, 8, v5
    """)
    for t in range(4): g.e(f"v_xor_b32 v{vKR+t}, {t<<6}, v5\nv_add_u32 v{vKR+4+t}, 0x10000, v{vKR+t}")
    for jp in range(2):
        g.e(f"""
        v_add_u32 v5, {4*jp}, v3
        v_lshlrev_b32 v5, 1, v5
        v_xor_b32 v5, v5, v4
        v_lshlrev_b32 v5, 4, v5
        v_lshl_add_u32 v{vVD+jp}, v3, 8, v5
        """)
    g.e(f"""
    v_lshrrev_b32 v5, 2, v4              ; rp
    v_and_b32 v6, 3, v0                  ; c
    v_and_b32 v7, 1, v3
    v_lshl_add_u32 v7, v7, 2, v5         ; 4(g&1)+rp
    v_lshlrev_b32 v7, 1, v7
    v_lshrrev_b32 v1, 1, v6
    v_xor_b32 v7, v7, v1
    v_lshlrev_b32 v7, 4, v7
    v_and_b32 v1, 1, v6
    v_lshl_or_b32 v7, v1, 3, v7
    v_lshl_add_u32 v1, v3, 2, v5         ; 4g+rp
    v_lshl_add_u32 v7, v1, 8, v7
    """)
    for dt in range(8): g.e(f"v_xor_b32 v{vVR+dt}, {dt<<5}, v7\nv_add_u32 v{vVR+8+dt}, 0x10000, v{vVR+dt}")
    g.e(f"v_lshlrev_b32 v{vTCH}, 7, v0")
    g.e(f"s_and_b32 s{sT0}, s2, 3\ns_lshl_b32 s{sT0}, s{sT0}, 5\ns_lshr_b32 s{sT1}, s2, 3\ns_add_u32 s{sT0}, s{sT0}, s{sT1}\ns_lshl_b32 s{sTCH}, s{sT0}, 16\ns_lshl_b32 s{sT0}, s{sW}, 14\ns_add_u32 s{sTCH}, s{sTCH}, s{sT0}")
    g.e(f"v_lshlrev_b32 v{vOS}, 4, v0\nv_add_u32 v{vOS1}, 0x20000, v{vOS}\nv_mov_b32 v1, 0x3f803f80")
    for r in range(4): g.e(f"v_accvgpr_write_b32 a{ONES+r}, v1")
    g.e("s_waitcnt lgkmcnt(0)")
    def mk(s,lo,hi,size): g.e(f"s_mov_b32 s{s}, s{lo}\ns_and_b32 s{s+1}, s{hi}, 0xffff\ns_mov_b32 s{s+2}, {size}\ns_mov_b32 s{s+3}, 0x20000")
    g.e(f"s_mov_b32 s{sDBG}, s98\ns_mov_b32 s{sDBG+1}, s99")
    mk(S_OUT,96,97,4*MB); mk(S_WO,16,17,8*MB); mk(S_WON,16,17,8*MB); mk(S_V,12,13,64*MB)
    mk(S_K,10,11,64*MB); mk(S_KN,10,11,64*MB)
    g.e(f"s_mov_b32 s4, s14\ns_mov_b32 s5, s15\ns_and_b32 s{S_X+1}, s9, 0xffff\ns_mov_b32 s{S_X+2}, {2*MB}\ns_mov_b32 s{S_X+3}, 0x20000")
    mk(S_WQ,4,5,8*MB); mk(S_O,sWS,sWS+1,WS_SRD); mk(S_ON,sWS,sWS+1,WS_SRD)
    g.e(f"""
    s_add_u32 s{sSTB}, s{sWS}, {STAMP_OFF}
    s_addc_u32 s{sSTB+1}, s{sWS+1}, 0
    s_mov_b32 s{sSEGN}, 0
    s_lshl_b32 s{sWOFF}, s{sW}, 12
    s_add_u32 s{sWL}, s{sWOFF}, {WQBASE}
    s_lshl_b32 s{sT0}, s{sBG}, 19
    s_lshl_b32 s{sT1}, s{sW}, 15
    s_add_u32 s{sXB}, s{sT0}, s{sT1}
    s_add_u32 s{sXB+1}, s{sXB}, 0x20000
    s_add_u32 s{sXB+2}, s{sXB}, 0x40000
    s_add_u32 s{sXB+3}, s{sXB}, 0x60000
    s_lshl_b32 s{sT0}, s{sW}, 17
    s_lshl_b32 s{sT1}, s{sH}, 8
    s_add_u32 s{sWQB}, s{sT0}, s{sT1}
    """)
    if opt.get("stamps"):
        g.e(f"v_mov_b32 v2, s101\nv_mov_b32 v3, 0\ns_lshl_b32 s96, s2, 7\ns_add_u32 s96, s96, 120\nv_mov_b32 v1, s96\nglobal_store_dwordx2 v1, v[2:3], s[{sSTB}:{sSTB+1}]")
    stamp()
    dstamp(2,True)
    O4B=f"""
        s_and_b32 s{sKH}, s2, 3                      ; kq
        s_lshr_b32 s{sT0}, s2, 3
        s_and_b32 s{sCB}, s{sT0}, 7                  ; cb
        s_lshl_b32 s{sT0}, s{sBG}, 1
        s_add_u32 s{sPHO}, s{sT0}, s{sCB}
        s_and_b32 s{sPHO}, s{sPHO}, 7
        s_lshl_b32 s{sWOB}, s{sKH}, 21
        s_lshl_b32 s{sT0}, s{sW}, 15
        s_add_u32 s{sWOB}, s{sWOB}, s{sT0}
        s_lshl_b32 s{sT0}, s{sCB}, 8
        s_add_u32 s{sWOB}, s{sWOB}, s{sT0}
        s_lshl_b32 s{sT0}, s{sBG}, 2
        s_add_u32 s{sT0}, s{sT0}, s{sW}
        s_lshl_b32 s{sOOB}, s{sT0}, 19
        s_lshl_b32 s{sOUTB}, s{sT0}, 18
        s_lshl_b32 s{sT0}, s{sBR}, 23
        s_add_u32 s{sOOB}, s{sOOB}, s{sT0}
        s_lshl_b32 s{sT0}, s{sKH}, 15
        s_add_u32 s{sOOB}, s{sOOB}, s{sT0}
        s_lshl_b32 s{sT0}, s{sBR}, 11
        s_add_u32 s{sOUTB}, s{sOUTB}, s{sT0}
        s_lshl_b32 s{sT0}, s{sCB}, 8
        s_add_u32 s{sOUTB}, s{sOUTB}, s{sT0}
        s_lshl_b32 s{sT0}, s{sKH}, 6
        s_add_u32 s{sOUTB}, s{sOUTB}, s{sT0}
        s_mul_i32 s{sEXW}, s2, 98304
        s_mul_i32 s{sT0}, s{sW}, 24576
        s_add_u32 s{sEXW}, s{sEXW}, s{sT0}
        s_add_u32 s{sEXW}, s{sEXW}, {EXCH_OFF}
    """
    def late_setup():
        g.e(f"""
        s_mov_b32 s{sC}, {C_SCALE}
        s_mov_b32 s{sMASK}, 0xffff0000
        s_mov_b32 s{sMASK+1}, 0xffff0000
        s_lshl_b32 s{sT0}, s{sBG}, 24
        s_lshl_b32 s{sT1}, s{sH}, 17
        s_add_u32 s{sCUR}, s{sT0}, s{sT1}
        s_add_u32 s{sCUR}, s{sCUR}, s{sWOFF}
        s_add_u32 s{sNXT}, s{sCUR}, 0x400000
        s_lshl_b32 s{sT0}, s{sBR}, 23
        s_lshl_b32 s{sT1}, s{sBG}, 21
        s_add_u32 s{sOB}, s{sT0}, s{sT1}
        s_lshl_b32 s{sT0}, s{sW}, 17
        s_add_u32 s{sOB}, s{sOB}, s{sT0}
        s_lshl_b32 s{sT0}, s{sH}, 12
        s_add_u32 s{sOB}, s{sOB}, s{sT0}
        s_lshl_b32 s{sT0}, s{sKH}, 22
        s_lshl_b32 s{sT1}, s{sW}, 15
        s_add_u32 s{sWOB}, s{sT0}, s{sT1}
        s_lshl_b32 s{sT0}, s{sCB}, 8
        s_add_u32 s{sWOB}, s{sWOB}, s{sT0}
        s_lshl_b32 s{sT0}, s{sRB}, 3
        s_lshl_b32 s{sT1}, s{sW}, 1
        s_add_u32 s{sT0}, s{sT0}, s{sT1}            ; 8rb+2w
        s_lshl_b32 s{sOUTB}, s{sT0}, 16
        s_lshl_b32 s{sOOB}, s{sT0}, 17
        s_lshl_b32 s{sT1}, s{sBR}, 23
        s_add_u32 s{sOOB}, s{sOOB}, s{sT1}
        s_lshl_b32 s{sT1}, s{sKH}, 16
        s_add_u32 s{sOOB}, s{sOOB}, s{sT1}
        s_lshl_b32 s{sT1}, s{sBR}, 11
        s_add_u32 s{sOUTB}, s{sOUTB}, s{sT1}
        s_lshl_b32 s{sT1}, s{sCB}, 8
        s_add_u32 s{sOUTB}, s{sOUTB}, s{sT1}
        s_lshl_b32 s{sT1}, s{sKH}, 7
        s_add_u32 s{sOUTB}, s{sOUTB}, s{sT1}
        s_lshl_b32 s{sT1}, s{sW}, 13
        s_lshl_b32 s{sEXW}, s2, 15
        s_add_u32 s{sEXW}, s{sEXW}, s{sT1}
        s_add_u32 s{sEXW}, s{sEXW}, {EXCH_OFF}
        s_xor_b32 s{sEXR}, s2, 128
        s_lshl_b32 s{sEXR}, s{sEXR}, 15
        s_add_u32 s{sEXR}, s{sEXR}, s{sT1}
        s_add_u32 s{sEXR}, s{sEXR}, {EXCH_OFF}
        s_lshr_b32 s{sT0}, s2, {opt.get("krot_sh",3)}
        s_and_b32 s{sT0}, s{sT0}, 7
        s_lshl_b32 s{sKRO}, s{sT0}, 14
        {O4B if O4 else ""}
        {("s_mov_b32 s"+str(sPOL)+", s"+str(sBR)) if opt.get("polsel")==1 else ("s_xor_b32 s"+str(sPOL)+", s"+str(sBR)+", 1") if opt.get("polsel")==2 else ""}
        s_mov_b32 s{sITEM}, 0
        s_mov_b32 s{sNONCE}, 0
        s_mov_b32 s{sPA}, 0
        s_mov_b32 s{sSIG}, 0
        s_cmp_lg_u32 s{sW}, 0
        s_cbranch_scc1 L_NONCE_DONE
        s_memrealtime s[96:97]
        s_waitcnt lgkmcnt(0)
        s_or_b32 s96, s96, 1
        v_mov_b32 v4, s96
        v_mov_b32 v5, 0
        v_accvgpr_write_b32 a164, v4
        v_accvgpr_write_b32 a165, v5
        s_mov_b64 exec, 1
        global_atomic_cmpswap a166, v5, a[164:165], s[{sDBG}:{sDBG+1}] sc0
        s_mov_b64 exec, -1
        L_NONCE_DONE:
        """)
    def flag_store(off):
        g.e(f"""
        s_lshl_b32 s{sT0}, s2, 7
        s_add_u32 s{sT0}, s{sT0}, {FLAG_OFF}
        s_add_u32 s{sT0}, s{sT0}, {off}
        v_mov_b32 v1, s{sT0}
        v_mov_b32 v3, s{sNONCE}
        s_mov_b64 exec, 1
        global_store_dword v1, v3, s[{sWS}:{sWS+1}] sc1
        s_mov_b64 exec, -1
        """)
    nsig=[0]
    def pending_signal():
        nsig[0]+=1; n=nsig[0]
        g.e(f"""
        s_cmp_eq_u32 s{sSIG}, 0
        s_cbranch_scc1 L_SG{n}
        s_cmp_lg_u32 s{sW}, 0
        s_cbranch_scc1 L_SGX{n}
        s_sub_u32 s{sCNT}, s{sSIG}, 1
        s_lshl_b32 s{sCNT}, s{sCNT}, 2
        """)
        flag_store(f"s{sCNT}")
        g.e(f"L_SGX{n}:\ns_mov_b32 s{sSIG}, 0\nL_SG{n}:")
    def kv_soff(dst,base,ch):
        if opt.get("krot"):
            return f"s_add_u32 s{dst}, s{sKRO}, {ch*16384}\ns_and_b32 s{dst}, s{dst}, 0x1ffff\ns_add_u32 s{dst}, s{dst}, s{base}"
        return f"s_add_u32 s{dst}, s{base}, {ch*16384}"
    def kv_group(cc):
        if cc<8: srdn,base,vo,ch=S_K,sCUR,[vKD+j for j in range(4)],cc
        elif cc<16: srdn,base,vo,ch=S_V,sCUR,[vVD+(j&1) for j in range(4)],cc-8
        else: srdn,base,vo,ch=S_KN,sNXT,[vKD+j for j in range(4)],cc-16
        return (f"s_add_u32 m0, s{sWOFF}, {(cc&7)*SLOT}\n"+kv_soff(sT1,base,ch),
                [f"buffer_load_dwordx4 v{vo[j]}, {sr(srdn)}, s{sT1} offen offset:{1024*j}{NT} lds" for j in range(4)])
    def wo_group(c,track,srdn=S_WO):
        g.e(f"s_add_u32 s{sT1}, s{sPHO}, {c}\ns_and_b32 s{sT1}, s{sT1}, {OM}\ns_or_b32 s{sT1}, s{sT1}, {c&~OM}\ns_lshl_b32 s{sT1}, s{sT1}, 17\ns_add_u32 m0, s{sWOFF}, {(c&7)*SLOT}\ns_add_u32 s{sT1}, s{sT1}, s{sWOB}")
        for j in range(4):
            t=f"buffer_load_dwordx4 v{vWOD+j}, {sr(srdn)}, s{sT1} offen offset:{1024*j}{NTO} lds"
            g.vmop(t,('wo',c)) if track else g.e(t)
    def kidx(s,dst,shift):
        g.e(f"s_add_u32 s{sT0}, s{sPHI}, {s}\ns_and_b32 s{sT0}, s{sT0}, {KM}\ns_or_b32 s{sT0}, s{sT0}, {s&~KM&15}\ns_lshl_b32 s{dst}, s{sT0}, {shift}")
    def x_dma(s,i):
        slot=(s&1)*4+i
        g.e(f"s_add_u32 m0, s{sXL}, {slot*2048}\ns_add_u32 s{sT1}, s{sXB+i}, s{sKX}")
        for j in range(2): g.vmop(f"buffer_load_dwordx4 v{vXD+j}, {sr(S_X)}, s{sT1} offen offset:{1024*j}{NTX} lds",('x',s,i))
    def wq_dma(s):
        g.e(f"s_add_u32 m0, s{sWL}, {(s%3)*16384}\ns_add_u32 s{sT1}, s{sWQB}, s{sKW}")
        for j in range(4): g.vmop(f"buffer_load_dwordx4 v{vWD+j}, {sr(S_WQ)}, s{sT1} offen offset:{1024*j}{NTW} lds",('wq',s))
    def a_read(s,ks,dt,hf):
        r=64*(s&1)+(ks*8+dt)*4+2*hf
        g.lgop(f"ds_read_b64_tr_b16 a[{r}:{r+1}], v{vWR+dt} offset:{(s%3)*16384+ks*8192+hf*1024}",('A',s))
    def b_read(s,i,ks):
        n=s*4+i
        r=128+(n&1)*8+ks*4
        g.lgop(f"ds_read_b128 a[{r}:{r+3}], v{vXR+ks} offset:{((s&1)*4+i)*2048}",('B',s,i))
    tick(40)
    kidx(0,sKW,19); wq_dma(0)
    if opt.get("tlb"):
        late_setup()
        g.e(f"""
        v_lshlrev_b32 v1, 22, v0
        v_lshlrev_b32 v2, 20, v0
        v_mov_b32 v3, s{sOB}
        v_writelane_b32 v3, s{sOOB}, 1
        v_writelane_b32 v3, s{sEXW}, 2
        s_lshl_b32 s{sT0}, s2, 7
        s_add_u32 s{sT0}, s{sT0}, {FLAG_OFF}
        v_writelane_b32 v3, s{sT0}, 3
        s_mov_b32 m0, s{sWOFF}
        s_mov_b64 exec, 0xf
        """)
        g.vmop(f"buffer_load_dword v1, {sr(S_K)}, s{sCUR} offen{NT} lds",('tlb',))
        g.vmop(f"buffer_load_dword v1, {sr(S_V)}, s{sCUR} offen{NT} lds",('tlb',))
        g.vmop(f"buffer_load_dword v2, {sr(S_WO)}, s{sWOB} offen{NT} lds",('tlb',))
        g.vmop(f"buffer_load_dword v3, {sr(S_O)}, 0 offen{NT} lds",('tlb',))
        g.e("s_mov_b64 exec, 1")
        g.vmop(f"buffer_load_dword v1, {sr(S_OUT)}, s{sOUTB} offen{NT} lds",('tlb',))
        g.e("s_mov_b64 exec, -1")
    kidx(0,sKX,7)
    for i in range(4): x_dma(0,i)
    kidx(1,sKW,19); wq_dma(1)
    Q0=opt.get("q0fast",0)
    if not opt.get("qpro",0) and not Q0:
        kidx(1,sKX,7)
        for i in range(4): x_dma(1,i)
        kidx(2,sKW,19); wq_dma(2)
    tick(41)
    if not opt.get("tlb"): late_setup()
    tick(42)
    g.vmwait(('wq',0))
    tick(43)
    g.e("s_barrier")
    AR=[(ks,dt,hf) for ks in range(2) for dt in range(8) for hf in range(2)]
    for (ks,dt,hf) in AR: a_read(0,ks,dt,hf)
    g.vmwait(('x',0,0))
    tick(44)
    b_read(0,0,0); b_read(0,0,1)
    if opt.get("qpro",0) and not Q0:
        kidx(1,sKX,7)
        for i in range(4): x_dma(1,i)
        kidx(2,sKW,19); wq_dma(2)
    if Q0:
        g.e(f"s_add_u32 s{sT0}, s{sPHI}, 1\ns_and_b32 s{sT0}, s{sT0}, {KM}\ns_lshl_b32 s{sQ1}, s{sT0}, 7\ns_add_u32 s{sT0}, s{sPHI}, 2\ns_and_b32 s{sT0}, s{sT0}, {KM}\ns_lshl_b32 s{sQ2}, s{sT0}, 19\ns_add_u32 s{sQ2}, s{sQ2}, s{sWQB}")
    g.e(f"""s_add_u32 s{sT0}, s{sPHI}, 2
    s_and_b32 s{sT0}, s{sT0}, {KM}
    s_lshl_b32 s{sKX}, s{sT0}, 7
    s_add_u32 s{sT0}, s{sPHI}, 3
    s_and_b32 s{sT0}, s{sT0}, {KM}
    s_lshl_b32 s{sKW}, s{sT0}, 19""")
    for s in range(16):
        first=(Q0 and s==0)
        if s+1<16 and not first: g.vmwait(('wq',s+1))
        g.lgwait(('A',s))
        g.e("s_barrier")
        tick(s)
        G_=Gaps(64)
        dpos=opt.get("dpos",[2,7,12,17,23,28,34,39,45,50,56,61])
        if first:
            p=0
            for i in range(4):
                G_.put_post(p,S(f"s_add_u32 s{sQ3}, s{sXB+i}, s{sQ1}\ns_add_u32 m0, s{sXL}, {(4+i)*2048}"))
                for j in range(2):
                    G_.mem[p+1+j]=(lambda j=j,i=i: g.vmop(f"buffer_load_dwordx4 v{vXD+j}, {sr(S_X)}, s{sQ3} offen offset:{1024*j}{NTX} lds",('x',1,i)))
                p+=3
            G_.put_post(p,S(f"s_add_u32 m0, s{sWL}, {2*16384}"))
            for j in range(4):
                G_.mem[p+1+j]=(lambda j=j: g.vmop(f"buffer_load_dwordx4 v{vWD+j}, {sr(S_WQ)}, s{sQ2} offen offset:{1024*j}{NTW} lds",('wq',2)))
            dpos=[21,24,27,30,35,38,43,46,51,54,58,61]
        if s+3<16:
            if (s+3)%WIN==0: G_.put_post(0,S(f"s_add_u32 s{sWQB}, s{sWQB}, {WIN<<19}"))
            G_.put_post(dpos[0]-2,S(f"s_add_u32 s{sWT}, s{sWQB}, s{sKW}"))
            G_.put_post(dpos[0]-1,S(f"s_add_u32 m0, s{sWL}, {((s+3)%3)*16384}"))
            for j in range(4):
                G_.mem[dpos[j]]=(lambda j=j,s=s: g.vmop(f"buffer_load_dwordx4 v{vWD+j}, {sr(S_WQ)}, s{sWT} offen offset:{1024*j}{NTW} lds",('wq',s+3)))
            G_.put_post(dpos[3],S(f"s_add_u32 s{sKW}, s{sKW}, {1<<19}"))
            G_.put_post(dpos[3]+1,S(f"s_and_b32 s{sKW}, s{sKW}, {KM<<19}"))
        if s+2<16:
            for i in range(4):
                p=dpos[4+2*i]
                if (s+2)%WIN==0: G_.put_post(p-3,S(f"s_add_u32 s{sXB+i}, s{sXB+i}, {WIN*128}"))
                G_.put_post(p-2,S(f"s_add_u32 s{sXT}, s{sXB+i}, s{sKX}"))
                G_.put_post(p-1,S(f"s_add_u32 m0, s{sXL}, {((s&1)*4+i)*2048}"))
                for j in range(2):
                    G_.mem[dpos[4+2*i+j]]=(lambda j=j,s=s,i=i: g.vmop(f"buffer_load_dwordx4 v{vXD+j}, {sr(S_X)}, s{sXT} offen offset:{1024*j}{NTX} lds",('x',s+2,i)))
            G_.put_post(dpos[11],S(f"s_add_u32 s{sKX}, s{sKX}, 128"))
            G_.put_post(dpos[11]+1,S(f"s_and_b32 s{sKX}, s{sKX}, {KM<<7}"))
        if s in KPRE:
            c=KPRE[s]
            for j,p in enumerate(opt.get("kpos",[19,30,41,52])):
                G_.put_post(p-2,S(kv_soff(sT1,sCUR,c)))
                G_.put_post(p-1,S(f"s_add_u32 m0, s{sWOFF}, {c*SLOT}"))
                assert G_.mem[p] is None
                G_.mem[p]=(lambda j=j,c=c: g.vmop(f"buffer_load_dwordx4 v{vKD+j}, {sr(S_K)}, s{sT1} offen offset:{1024*j}{NT} lds",('kv',c)))
        if s in KREG:
            c=KREG[s]
            for j,p in enumerate(opt.get("kpos",[19,30,41,52])):
                if j==0: G_.put_post(p-2,S(f"s_add_u32 s{sKRG}, s{sCUR}, {c*16384}"))
                assert G_.mem[p] is None
                r=OACC+16*KRI[c]+4*j
                G_.mem[p]=(lambda j=j,r=r: g.e(f"buffer_load_dwordx4 {ar(r)}, v{vKD+j}, {sr(S_K)}, s{sKRG} offen offset:{1024*j}{NT}"))
        WT={int(k):v for k,v in opt.get("wotouch",{}).items()}
        if s in WT:
            n_=WT[s]; p=20
            assert G_.mem[p] is None
            G_.put_post(p-2,S(f"s_add_u32 s{sT1}, s{sTCH}, {n_*8192}"))
            G_.put_post(p-1,S(f"s_add_u32 m0, s{sWOFF}, {2*SLOT}"))
            G_.mem[p]=(lambda: g.vmop(f"buffer_load_dword v{vTCH}, {sr(S_WO)}, s{sT1} offen lds",('tch',)))
        for i in range(4):
            nxt=(s,i+1) if i<3 else ((s+1,0) if s+1<16 else None)
            if nxt:
                q=G_.put_mem(16*i+opt.get("bpos",4),lambda nxt=nxt: b_read(nxt[0],nxt[1],0),lo=16*i,hi=16*i+16)
                G_.put_pre(q,lambda nxt=nxt: g.vmwait(('x',)+nxt))
                G_.put_mem(q+1,lambda nxt=nxt: b_read(nxt[0],nxt[1],1),lo=q+1,hi=16*i+16)
        if first:
            G_.put_pre(31,lambda: (g.vmwait(('wq',1)), g.e("s_barrier")))
            for n_,(ks,dt,hf) in enumerate(AR):
                G_.put_mem(32+n_*28/32.0,lambda ks=ks,dt=dt,hf=hf,s=s: a_read(s+1,ks,dt,hf),lo=32,hi=64)
        elif s+1<16:
            aend=opt.get("aend",56)
            for n_,(ks,dt,hf) in enumerate(AR):
                G_.put_mem(n_*aend/32.0,lambda ks=ks,dt=dt,hf=hf,s=s: a_read(s+1,ks,dt,hf),hi=62)
        M=[]
        for i in range(4):
            n=s*4+i
            for ks in range(2):
                for dt in range(8):
                    d=ACC+(i*8+dt)*4
                    txt=f"v_mfma_f32_16x16x32_bf16 {vr(d)}, {ar(64*(s&1)+(ks*8+dt)*4)}, {ar(128+(n&1)*8+ks*4)}, {'0' if (s==0 and ks==0) else vr(d)}"
                    if ks==0 and dt==0: M.append(lambda txt=txt,s=s,i=i: (g.lgwait(('B',s,i)), g.e(txt)))
                    else: M.append(txt)
        G_.emit(g,M)
    tick(16)
    if KREG: g.e("s_waitcnt vmcnt(0)")
    g.e("s_barrier")
    if KREG:
        g.e(f"v_add_u32 v1, s{sWOFF}, v{vOS}\nv_add_u32 v3, 0x10000, v1")
        for c in sorted(KREG.values()):
            for j in range(4):
                r=OACC+16*KRI[c]+4*j
                off=c*SLOT+j*1024
                if off<65536: g.e(f"ds_write_b128 v1, {ar(r)} offset:{off}")
                else: g.e(f"ds_write_b128 v3, {ar(r)} offset:{off-65536}")
            if c==3: pass
    rest=[cc for cc in range(PF) if cc not in KPRE.values() and cc not in KREG.values()]
    late=rest[-opt.get("late",0):] if opt.get("late",0) else []
    for cc in rest:
        if cc in late: continue
        h,dm=kv_group(cc); g.e(h)
        for l in dm: g.e(l)
    for i in range(4):
        for t in range(4):
            bx=ACC+(i*8+2*t)*4; by=bx+4; F=QF+16*i+4*t
            g.e(f"""
            v_cvt_pk_bf16_f32 v56, v{bx}, v{bx+1}
            v_cvt_pk_bf16_f32 v57, v{bx+2}, v{bx+3}
            v_cvt_pk_bf16_f32 v58, v{by}, v{by+1}
            v_cvt_pk_bf16_f32 v59, v{by+2}, v{by+3}
            v_cndmask_b32 v{F}, v56, v58, s[{sMASK}:{sMASK+1}]
            v_cndmask_b32 v{F+1}, v57, v59, s[{sMASK}:{sMASK+1}]
            v_cndmask_b32 v{F+2}, v58, v56, s[{sMASK}:{sMASK+1}]
            v_cndmask_b32 v{F+3}, v59, v57, s[{sMASK}:{sMASK+1}]
            """)
    for cc in late:
        h,dm=kv_group(cc); g.e(h)
        for l in dm: g.e(l)
    if KREG: g.e("s_waitcnt lgkmcnt(0)")
    tick(17); tick_store(); stamp(); dstamp(3)
    g.label("L_ITEM")
    g.vm=[]; g.lg=[]
    tick(40)
    g.e(f"s_cmp_lt_u32 s{sITEM}, 3\ns_cselect_b32 s{S_KN+2}, {64*MB}, 0\ns_cselect_b32 s{sLAST}, 0, 1")
    for n in range(4):
        g.e(f"s_cmp_eq_u32 s{sITEM}, {n}\ns_cbranch_scc0 L_QC{n}")
        for r in range(16): g.e(f"v_accvgpr_write_b32 a{QCUR+r}, v{QF+16*n+r}")
        g.label(f"L_QC{n}")
    MX=4
    def pcalc(J):
        b=ACC+8*J
        L=[f"v_fma_f32 v{TA+r}, v{b+r}, s{sC}, -v4" for r in range(8)]
        L+=[f"v_exp_f32 v{TA+r}, v{TA+r}" for r in range(8)]
        L+=[f"v_cvt_pk_bf16_f32 v{ACC+4*J+r}, v{TA+2*r}, v{TA+2*r+1}" for r in range(4)]
        return L
    def reads(c):
        st=c&1; sl=c&7; hi=sl>=4; so=(sl&3)*SLOT; R=[]
        if c<8:
            for kt in range(4):
                for t in range(4):
                    R.append(lambda kt=kt,t=t: g.lgop(f"ds_read_b128 {ar(64*st+(kt*4+t)*4)}, v{vKR+(4 if hi else 0)+t} offset:{so+kt*4096}",('F',c,kt)))
        else:
            for js in range(2):
                for dt in range(8):
                    for hf in range(2):
                        r=64*st+(js*8+dt)*4+2*hf
                        R.append(lambda r=r,js=js,dt=dt,hf=hf: g.lgop(f"ds_read_b64_tr_b16 a[{r}:{r+1}], v{vVR+(8 if hi else 0)+dt} offset:{so+js*8192+hf*4096}",('F',c,js*8+dt)))
        return R
    g.e(f"s_waitcnt vmcnt({4*(LA-1)})\ns_barrier")
    for f in reads(0): f()
    for c in range(16):
        cc=c+LA
        if c<15: g.e(f"s_waitcnt vmcnt({4*(LA-2)})")
        if (opt.get("oearly") and 9<=c<15) or (opt.get("thra_last") is not None and opt["thra_last"]<=c<15 and c>=opt.get("thra_skip",0)):
            g.e(f"s_cmp_eq_u32 s{sLAST}, 1\ns_cbranch_scc1 L_TL{c}\ns_waitcnt vmcnt({opt['thra']})\nL_TL{c}:")
        elif opt.get("thra") is not None and c<15:
            if c<opt.get("thra_skip_all",0):
                if opt.get("thra_alt") is not None: g.e(f"s_waitcnt vmcnt({opt['thra_alt']})")
            elif c<opt.get("thra_skip",0):
                g.e(f"s_cmp_eq_u32 s{sITEM}, 0\ns_cbranch_scc1 L_TS{c}\ns_waitcnt vmcnt({opt['thra']})\nL_TS{c}:")
            else: g.e(f"s_waitcnt vmcnt({opt['thra']})")
        if opt.get("thr") is not None and c<15:
            g.e(f"s_bitcmp1_b32 s2, 0\ns_cbranch_scc{opt.get('thr_par',1)} L_TH{c}\ns_waitcnt vmcnt({opt['thr']})\nL_TH{c}:")
        g.e("s_barrier")
        tick(c)
        dm=[]
        if (cc<16 or cc>=16+NWOP) and opt.get("polsel"):
            h,dl=kv_group(cc); g.e(h)
            g.e(f"s_cmp_lg_u32 s{sPOL}, 0\ns_cbranch_scc1 L_PB{c}")
            for l in dl: g.e(l)
            g.e(f"s_branch L_PJ{c}\nL_PB{c}:")
            for l in dl: g.e(l.replace(NT,""))
            g.e(f"L_PJ{c}:")
        elif cc<PF:
            h,dl=kv_group(cc); g.e(f"s_cmp_eq_u32 s{sITEM}, 0\ns_cbranch_scc1 L_PS{c}"); g.e(h)
            for l in dl: g.e(l)
            g.label(f"L_PS{c}")
        elif cc<16 or cc>=16+NWOP:
            h,dl=kv_group(cc); g.e(h); dm=[(lambda l=l: g.e(l)) for l in dl]
        else:
            k=cc-16
            g.e(f"s_cmp_eq_u32 s{sLAST}, 1\ns_cbranch_scc1 L_HO{k}")
            h,dl=kv_group(cc); g.e(h)
            if opt.get("polsel"):
                g.e(f"s_cmp_lg_u32 s{sPOL}, 0\ns_cbranch_scc1 L_PC{k}")
                for l in dl: g.e(l)
                g.e(f"s_branch L_HJ{k}\nL_PC{k}:")
                for l in dl: g.e(l.replace(NT,""))
            else:
                for l in dl: g.e(l)
            g.e(f"s_branch L_HJ{k}")
            g.label(f"L_HO{k}")
            wo_group(k,False)
            g.label(f"L_HJ{k}")
        if opt.get("oearly") and 9<=c<15:
            n_=(c-9)>>1; t0=2*((c-9)&1)
            g.e(f"s_cmp_eq_u32 s{sLAST}, 1\ns_cbranch_scc0 L_OE{c}\ns_sub_u32 s{sT0}, s{sOB}, {(3-n_)*0x80000}")
            for t in (t0,t0+1): g.e(f"buffer_store_dwordx4 {vr(QF+16*n_+4*t)}, v{vOS}, {sr(S_O)}, s{sT0} offen offset:{t*1024}{STO}")
            g.label(f"L_OE{c}")
        R=reads(c+1) if c<15 else []
        st=c&1; M=[]; VL=[]
        if c<8:
            for kt in range(4):
                T=4*c+kt; d=ACC+4*T
                for t in range(4):
                    txt=f"v_mfma_f32_16x16x32_bf16 {vr(d)}, {ar(64*st+(kt*4+t)*4)}, {ar(QCUR+4*t)}, {'0' if t==0 else vr(d)}"
                    M.append((lambda txt=txt,kt=kt,c=c: (g.lgwait(('F',c,kt)), g.e(txt))) if t==0 else txt)
            if c>0:
                for kt in range(4):
                    b=ACC+16*(c-1)+4*kt
                    if c==1: VL+=[f"v_max3_f32 v{MX+kt}, v{b}, v{b+1}, v{b+2}",f"v_max_f32 v{MX+kt}, v{MX+kt}, v{b+3}"]
                    else: VL+=[f"v_max3_f32 v{MX+kt}, v{MX+kt}, v{b}, v{b+1}",f"v_max3_f32 v{MX+kt}, v{MX+kt}, v{b+2}, v{b+3}"]
        else:
            cv=c-8
            for js in range(2):
                J=2*cv+js; P=ACC+4*J
                for dt in range(8):
                    d=OA+4*dt
                    txt=f"v_mfma_f32_16x16x32_bf16 {ar(d)}, {ar(64*st+(js*8+dt)*4)}, {vr(P)}, {'0' if J==0 else ar(d)}"
                    M.append(lambda txt=txt,c=c,k=js*8+dt: (g.lgwait(('F',c,k)), g.e(txt)))
                M.append(f"v_mfma_f32_16x16x32_bf16 {ar(LAcc)}, {ar(ONES)}, {vr(P)}, {'0' if J==0 else ar(LAcc)}")
            if cv<7:
                for J in (2*cv+2,2*cv+3): VL+=pcalc(J)
        if c<7: pat=['tv','tv','tt','d']*4
        elif c==7: pat=['ttv','tt','ttv','dtt']*4
        else: pat=['ttv','ttv','ttv','dvvvv']*4+['ttttvv','ttttvv']
        if opt.get("dfront"):
            nd=opt["dfront"]
            pat=[p.replace('d','') for p in pat]
            for q in range(4): pat[min(q*nd,len(pat)-1)]='d'+pat[min(q*nd,len(pat)-1)]
        ti=vi=di=0
        for m,p in zip(M,pat):
            m() if callable(m) else g.e(m)
            for ch in p:
                if ch=='t' and ti<len(R): R[ti](); ti+=1
                elif ch=='v' and vi<len(VL): g.e(VL[vi]); vi+=1
                elif ch=='d' and di<len(dm): dm[di](); di+=1
        while ti<len(R): R[ti](); ti+=1
        while di<len(dm): dm[di](); di+=1
        while vi<len(VL): g.e(VL[vi]); vi+=1
        if c==7:
            g.e("s_nop 7")
            for kt in range(4):
                b=ACC+16*7+4*kt
                g.e(f"v_max3_f32 v{MX+kt}, v{MX+kt}, v{b}, v{b+1}\nv_max3_f32 v{MX+kt}, v{MX+kt}, v{b+2}, v{b+3}")
            g.e(f"""
            v_max3_f32 v4, v4, v5, v6
            v_max_f32 v4, v4, v7
            v_mov_b32 v5, v4
            s_nop 1
            v_permlane16_swap_b32 v4, v5
            v_max_f32 v4, v4, v5
            v_mov_b32 v5, v4
            s_nop 1
            v_permlane32_swap_b32 v4, v5
            v_max_f32 v4, v4, v5
            v_mul_f32 v4, s{sC}, v4
            """)
            for J in (0,1):
                for l in pcalc(J): g.e(l)
    tick(16)
    g.e(f"s_nop 7\nv_accvgpr_read_b32 v4, a{LAcc}\ns_nop 0\nv_rcp_f32 v4, v4")
    if opt.get("odefer"):
        for r in range(32): g.e(f"v_accvgpr_read_b32 v{128+r}, a{OA+r}")
        for r in range(32): g.e(f"v_mul_f32 v{128+r}, v{128+r}, v4")
        for n in range(4):
            g.e(f"s_cmp_eq_u32 s{sITEM}, {n}\ns_cbranch_scc0 L_OP{n}")
            for r in range(16): g.e(f"v_cvt_pk_bf16_f32 v{QF+16*n+r}, v{128+2*r}, v{129+2*r}")
            g.label(f"L_OP{n}")
        g.e(f"s_cmp_eq_u32 s{sLAST}, 1\ns_cbranch_scc0 L_OSKIP")
        g.e(f"s_sub_u32 s{sT1}, s{sOB}, {0 if opt.get('oearly') else 3*0x80000}")
        for n in (range(3,4) if opt.get("oearly") else range(4)):
            for t in range(4):
                g.e(f"buffer_store_dwordx4 {vr(QF+16*n+4*t)}, v{vOS}, {sr(S_O)}, s{sT1} offen offset:{t*1024}{STO}")
            if n<3: g.e(f"s_add_u32 s{sT1}, s{sT1}, 0x80000")
        g.label("L_OSKIP")
    else:
        for t in range(4):
            tb=128+16*t
            for r in range(8): g.e(f"v_accvgpr_read_b32 v{tb+r}, a{OA+8*t+r}")
            for r in range(8): g.e(f"v_mul_f32 v{tb+r}, v{tb+r}, v4")
            for r in range(4): g.e(f"v_cvt_pk_bf16_f32 v{tb+8+r}, v{tb+2*r}, v{tb+2*r+1}")
            if not opt.get("no_ostore"): g.e(f"buffer_store_dwordx4 {vr(tb+8)}, v{vOS}, {sr(S_O)}, s{sOB} offen offset:{t*1024}{STO}")
    g.e(f"""
    s_add_u32 s{sCUR}, s{sCUR}, 0x400000
    s_add_u32 s{sNXT}, s{sNXT}, 0x400000
    s_add_u32 s{sOB}, s{sOB}, {0 if opt.get("osame") else 0x80000}
    s_cmp_eq_u32 s{sLAST}, 1
    s_cbranch_scc0 L_A_DONE
    s_waitcnt vmcnt(0)
    s_barrier
    s_cmp_lg_u32 s{sW}, 0
    s_cbranch_scc1 L_A_DONE
    v_accvgpr_read_b32 v1, a166
    v_accvgpr_read_b32 v3, a164
    s_nop 0
    v_readfirstlane_b32 s{sT0}, v1
    v_readfirstlane_b32 s{sT1}, v3
    s_nop 3
    s_cmp_eq_u32 s{sT0}, 0
    s_cselect_b32 s{sNONCE}, s{sT1}, s{sT0}
    """)
    flag_store(0)
    g.e(f"L_A_DONE:\ns_add_u32 s{sITEM}, s{sITEM}, 1")
    tick(17); tick_store(); stamp()
    g.e(f"s_cmp_lt_u32 s{sITEM}, 4\ns_cbranch_scc1 L_ITEM")
    def xst(i):
        if opt.get("xstamps"):
            g.e(f"s_mov_b32 s101, s{sSEGN}\ns_mov_b32 s{sSEGN}, {i}"); stamp(); g.e(f"s_mov_b32 s{sSEGN}, s101")
    def phase_o4():
        dstamp(4)
        g.vm=[]; g.lg=[]
        g.e(f"s_lshl_b32 s{sT0}, s{sKH}, 6")
        for dt in range(16): g.e(f"v_xor_b32 v{vWOR+dt}, s{sT0}, v{vVR+dt}")
        g.e(f"v_add_u32 v{vOS2}, 0x40000, v{vOS}\nv_add_u32 v{vOS3}, 0x60000, v{vOS}")
        g.e(f"""
        s_cmp_lg_u32 s{sW}, 0
        s_cbranch_scc1 L_O_WAITB
        v_mov_b32 v1, {128*K1}
        v_mov_b32 v3, s{sNONCE}
        ds_write_b32 v1, v3
        s_mov_b32 s{sCNT}, 0
        s_mov_b64 exec, 0xff
        L_O_POLL:
        global_load_dword v3, v{vPA}, s[{sWS}:{sWS+1}] sc1
        s_add_u32 s{sCNT}, s{sCNT}, 1
        s_waitcnt vmcnt(0)
        v_cmp_eq_u32 vcc, s{sNONCE}, v3
        s_cmp_gt_u32 s{sCNT}, 0x40000
        s_cbranch_scc1 L_O_POLLX
        s_nop 1
        s_cmp_lg_u32 vcc_lo, 0xff
        s_cbranch_scc1 L_O_POLL
        L_O_POLLX:
        s_mov_b64 exec, -1
        s_waitcnt lgkmcnt(0)
        L_O_WAITB:
        s_barrier
        v_mov_b32 v1, {128*K1}
        ds_read_b32 v3, v1
        s_waitcnt lgkmcnt(0)
        v_readfirstlane_b32 s{sNONCE}, v3
        """)
        dstamp(5)
        if opt.get("stamps"):
            g.e(f"s_mov_b32 s101, s{sSEGN}\ns_mov_b32 s{sSEGN}, 9"); stamp(); g.e(f"s_mov_b32 s{sSEGN}, s101")
        OL=3; WL=5; OF=128; NS=16; OA4=128
        vQ=[vOS,vOS1,vOS2,vOS3]
        def cid(j): return j&8
        def o_txt(s_,k):
            rt,js=k>>1,k&1
            r=OF+(s_&3)*32+(rt*2+js)*4
            return f"buffer_load_dwordx4 {vr(r)}, v{vQ[rt]}, {sr(S_O)}, s{sKO} offen offset:{js*1024}{NTOO}"
        for s_ in range(OL):
            g.e(f"s_add_u32 s{sT0}, s{sPHO}, {s_}\ns_and_b32 s{sT0}, s{sT0}, 7\ns_lshl_b32 s{sT0}, s{sT0}, 11\ns_add_u32 s{sKO}, s{sT0}, s{sOOB}")
            for k in range(8): g.e(o_txt(s_,k))
        RD=[(js,nt,hf) for js in range(2) for nt in range(8) for hf in range(2)]
        def rd(u,js,nt,hf):
            r=64*(u&1)+(js*8+nt)*4+2*hf; sl=u&7
            g.lgop(f"ds_read_b64_tr_b16 a[{r}:{r+1}], v{vWOR+(8 if sl>=4 else 0)+nt} offset:{(sl&3)*SLOT+js*8192+hf*4096}",('A',u,js,nt))
        for (js,nt,hf) in RD: rd(0,js,nt,hf)
        g.e(f"""s_add_u32 s{sT0}, s{sPHO}, {WL}
        s_and_b32 s{sT0}, s{sT0}, 7
        s_lshl_b32 s{sWLO}, s{sT0}, 17
        s_add_u32 s{sT0}, s{sPHO}, {OL}
        s_and_b32 s{sT0}, s{sT0}, 7
        s_lshl_b32 s{sOLO}, s{sT0}, 11""")
        for u in range(NS):
            yv=8*len([j for j in range(u+1,min(u+OL,NS))])
            n=min(12,yv)
            if u+1<NS and u+1>=NWOP:
                yd=4*len([j for j in range(u+2,min(u+WL,NS))])
                n=min(n,yd)
            g.e(f"s_waitcnt vmcnt({n})")
            g.e("s_barrier")
            tick(u)
            G_=Gaps(64)
            if u+WL<NS:
                if u+WL==8: G_.put_post(0,S(f"s_add_u32 s{sWOB}, s{sWOB}, {8<<17}"))
                G_.put_post(1,S(f"s_add_u32 s{sKWO}, s{sWLO}, s{sWOB}"))
                G_.put_post(2,S(f"s_add_u32 m0, s{sWOFF}, {((u+WL)&7)*SLOT}"))
                G_.put_post(20,S(f"s_add_u32 s{sWLO}, s{sWLO}, {1<<17}"))
                G_.put_post(21,S(f"s_and_b32 s{sWLO}, s{sWLO}, {7<<17}"))
                for j,p in enumerate([3,19,35,51]):
                    G_.mem[p]=(lambda j=j: g.e(f"buffer_load_dwordx4 v{vWOD+j}, {sr(S_WO)}, s{sKWO} offen offset:{1024*j}{NTO} lds"))
            if u+OL<NS:
                if u+OL==8: G_.put_post(4,S(f"s_add_u32 s{sOOB}, s{sOOB}, {8<<11}"))
                G_.put_post(5,S(f"s_add_u32 s{sKO}, s{sOLO}, s{sOOB}"))
                G_.put_post(61,S(f"s_add_u32 s{sOLO}, s{sOLO}, {1<<11}"))
                G_.put_post(62,S(f"s_and_b32 s{sOLO}, s{sOLO}, {7<<11}"))
                for k,p in enumerate([7,13,23,29,39,45,55,60]):
                    G_.mem[p]=(lambda k=k,u=u: g.e(o_txt(u+OL,k)))
            if u+1<NS:
                for n_,(js,nt,hf) in enumerate(RD):
                    G_.put_mem(n_*58/32.0,lambda js=js,nt=nt,hf=hf,u=u: rd(u+1,js,nt,hf),hi=62)
            M=[]
            for js in range(2):
                for nt in range(8):
                    for rt in range(4):
                        d=OA4+(rt*8+nt)*4
                        txt=f"v_mfma_f32_16x16x32_bf16 {ar(d)}, {ar(64*(u&1)+(js*8+nt)*4)}, {vr(OF+(u&3)*32+(rt*2+js)*4)}, {'0' if (u==0 and js==0) else ar(d)}"
                        if rt==0: M.append(lambda txt=txt,u=u,js=js,nt=nt: (g.lgwait(('A',u,js,nt)), g.e(txt)))
                        else: M.append(txt)
            G_.emit(g,M)
        tick(16); tick(17); tick_store(); stamp(); dstamp(6)
        g.e("s_nop 7")
        for d in range(1,4):
            for hb in range(2):
                g.e(f"s_add_u32 s{sT1}, s{sEXW}, {(d-1)*8192+hb*4096}")
                for rr in range(2):
                    rt=2*hb+rr
                    for m in range(2):
                        g.e(f"buffer_store_dwordx4 {ar(OA4+(rt*8+2*d+m)*4)}, v{vOS}, {sr(S_O)}, s{sT1} offen offset:{(rr*2+m)*1024} sc1")
        for rt in range(4):
            for m in range(2):
                for q in range(4): g.e(f"v_accvgpr_read_b32 v{224+(rt*2+m)*4+q}, a{OA4+(rt*8+m)*4+q}")
        g.e(f"""
        v_lshrrev_b32 v3, 4, v0
        v_and_b32 v4, 15, v0
        v_lshlrev_b32 v5, 3, v3
        v_lshl_add_u32 v52, v4, 12, v5
        s_lshl_b32 s{sCNT}, s{sW}, 2
        s_add_u32 s{sCNT}, s{sCNT}, 16
        v_add_u32 v5, 1, v0
        v_xor_b32 v5, s2, v5
        v_lshlrev_b32 v5, 7, v5
        s_add_u32 s{sT0}, s{sCNT}, {FLAG_OFF}
        v_add_u32 v53, s{sT0}, v5
        s_waitcnt vmcnt(0)
        """)
        xst(11)
        flag_store(f"s{sCNT}")
        g.e(f"""
        s_mov_b32 s{sCNT}, 0
        s_mov_b64 exec, 7
        L_X_POLL:
        global_load_dword v3, v53, s[{sWS}:{sWS+1}] sc1
        s_add_u32 s{sCNT}, s{sCNT}, 1
        s_waitcnt vmcnt(0)
        v_cmp_eq_u32 vcc, s{sNONCE}, v3
        s_cmp_gt_u32 s{sCNT}, 0x40000
        s_cbranch_scc1 L_X_POLLX
        s_nop 1
        s_cmp_lg_u32 vcc_lo, 7
        s_cbranch_scc1 L_X_POLL
        L_X_POLLX:
        s_mov_b64 exec, -1
        """)
        xst(12)
        for d in range(1,4):
            g.e(f"s_xor_b32 s{sT0}, s2, {d}\ns_mul_i32 s{sT0}, s{sT0}, 98304\ns_mul_i32 s{sT1}, s{sW}, 24576\ns_add_u32 s{sT0}, s{sT0}, s{sT1}\ns_add_u32 s{sEXR}, s{sT0}, {EXCH_OFF+(d-1)*8192}")
            for hb in range(2):
                if hb==1: g.e(f"s_add_u32 s{sEXR}, s{sEXR}, 4096")
                for k in range(4):
                    g.e(f"buffer_load_dwordx4 {vr(128+((d-1)*8+hb*4+k)*4)}, v{vOS}, {sr(S_O)}, s{sEXR} offen offset:{k*1024} sc1")
        g.e("s_waitcnt vmcnt(0)")
        xst(13)
        for rt in range(4):
            if rt>0: g.e(f"s_add_u32 s{sOUTB}, s{sOUTB}, 0x10000")
            for m in range(2):
                dd=224+(rt*2+m)*4
                for d in range(3):
                    r=128+(d*8+rt*2+m)*4
                    for q in range(4): g.e(f"v_add_f32 v{dd+q}, v{dd+q}, v{r+q}")
                g.e(f"""v_cvt_pk_bf16_f32 v{dd}, v{dd}, v{dd+1}
                v_cvt_pk_bf16_f32 v{dd+1}, v{dd+2}, v{dd+3}
                buffer_store_dwordx2 v[{dd}:{dd+1}], v52, {sr(S_OUT)}, s{sOUTB} offen offset:{m*32}{opt.get("st_out","")}""")
    def phase_o2():
        dstamp(4)
        g.vm=[]; g.lg=[]
        tick(40)
        g.e(f"s_lshl_b32 s{sT0}, s{sKH}, 7")
        for dt in range(16): g.e(f"v_xor_b32 v{vWOR+dt}, s{sT0}, v{vVR+dt}")
        g.e("v_mov_b32 v1, 0")
        for r in range(64): g.e(f"v_accvgpr_write_b32 a{OACC+r}, v1")
        g.e(f"""
        s_cmp_lg_u32 s{sW}, 0
        s_cbranch_scc1 L_O_WAITB
        v_mov_b32 v1, {128*K1}
        v_mov_b32 v3, s{sNONCE}
        ds_write_b32 v1, v3
        s_mov_b32 s{sCNT}, 0
        s_mov_b64 exec, 0xffff
        L_O_POLL:
        global_load_dword v3, v{vPA}, s[{sWS}:{sWS+1}] sc1
        s_add_u32 s{sCNT}, s{sCNT}, 1
        s_waitcnt vmcnt(0)
        v_cmp_eq_u32 vcc, s{sNONCE}, v3
        s_cmp_gt_u32 s{sCNT}, 0x40000
        s_cbranch_scc1 L_O_POLLX
        s_nop 1
        s_cmp_lg_u32 vcc_lo, 0xffff
        s_cbranch_scc1 L_O_POLL
        L_O_POLLX:
        s_mov_b64 exec, -1
        s_waitcnt lgkmcnt(0)
        L_O_WAITB:
        s_barrier
        v_mov_b32 v1, {128*K1}
        ds_read_b32 v3, v1
        s_waitcnt lgkmcnt(0)
        v_readfirstlane_b32 s{sNONCE}, v3
        """)
        tick(41); dstamp(5)
        if opt.get("stamps"):
            g.e(f"s_mov_b32 s101, s{sSEGN}\ns_mov_b32 s{sSEGN}, 9"); stamp(); g.e(f"s_mov_b32 s{sSEGN}, s101")
        OL=3; WL=NWOP; OF=128; NCH=32
        def o_1(st,k,srdn,tag=None):
            rt,js=k>>1,k&1
            r=OF+st*16+(rt*2+js)*4
            g.e(f"buffer_load_dwordx4 {vr(r)}, v{vOS if rt==0 else vOS1}, {sr(srdn)}, s{sKO} offen offset:{js*1024}{NTOO}")
        for c in range(OL):
            g.e(f"s_add_u32 s{sT0}, s{sPHO}, {c}\ns_and_b32 s{sT0}, s{sT0}, {OM}\ns_lshl_b32 s{sT0}, s{sT0}, 11\ns_add_u32 s{sKO}, s{sT0}, s{sOOB}")
            for k in range(4): o_1(c,k,S_O)
        RD=[(js,nt,hf) for js in range(2) for nt in range(8) for hf in range(2)]
        def a_read2(u,js,nt,hf):
            r=64*(u&1)+(js*8+nt)*4+2*hf
            sl=u&7
            g.lgop(f"ds_read_b64_tr_b16 a[{r}:{r+1}], v{vWOR+(8 if sl>=4 else 0)+nt} offset:{(sl&3)*SLOT+js*8192+hf*4096}",('A',u&1,js,nt))
        for (js,nt,hf) in RD: a_read2(0,js,nt,hf)
        g.e(f"""s_add_u32 s{sT0}, s{sPHO}, {WL}
        s_and_b32 s{sT0}, s{sT0}, {OM}
        s_lshl_b32 s{sWLO}, s{sT0}, 17
        s_add_u32 s{sT0}, s{sPHO}, {OL}
        s_and_b32 s{sT0}, s{sT0}, {OM}
        s_lshl_b32 s{sOLO}, s{sT0}, 11
        s_add_u32 s{sWOB}, s{sWOB}, {(WL&~OM)<<17}
        s_add_u32 s{sOOB}, s{sOOB}, {((OL-1)&~OM)<<11}
        s_mov_b32 s{sJ}, 0""")
        def body(u):
            g.e(f"s_waitcnt vmcnt(8)")
            g.e("s_barrier")
            if opt.get("steps"): g.e(f"s_memtime s[96:97]\ns_waitcnt lgkmcnt(0)\ns_sub_u32 s99, s96, s98\ns_mov_b32 s98, s96\nv_readlane_b32 s97, v62, {u}\ns_nop 3\ns_add_u32 s97, s97, s99\ns_nop 0\nv_writelane_b32 v62, s97, {u}"); g.lg=[]
            G_=Gaps(32)
            vp=opt.get("o_vpos",[3,7,11,15,19,23,27,31])
            if u+WL==8:
                G_.put_post(0,S(f"s_add_u32 s{sWOB}, s{sWOB}, {OW<<17}\ns_cmp_lt_u32 s{sJ}, {NCH-8}\ns_cselect_b32 s{S_WON+2}, {8*MB}, 0"))
            elif (u+WL)%OW==0:
                G_.put_post(0,S(f"s_add_u32 s{sWOB}, s{sWOB}, {OW<<17}"))
            G_.put_post(1,S(f"s_add_u32 s{sKWO}, s{sWLO}, s{sWOB}"))
            G_.put_post(2,S(f"s_add_u32 m0, s{sWOFF}, {((u+WL)&7)*SLOT}"))
            if u+OL==8:
                G_.put_post(4,S(f"s_add_u32 s{sOOB}, s{sOOB}, {OW<<11}\ns_cmp_lt_u32 s{sJ}, {NCH-8}\ns_cselect_b32 s{S_ON+2}, {WS_SRD}, 0"))
            elif (u+OL)%OW==0:
                G_.put_post(4,S(f"s_add_u32 s{sOOB}, s{sOOB}, {OW<<11}"))
            G_.put_post(5,S(f"s_add_u32 s{sKO}, s{sOLO}, s{sOOB}"))
            G_.put_post(8,S(f"s_add_u32 s{sWLO}, s{sWLO}, {1<<17}"))
            G_.put_post(9,S(f"s_and_b32 s{sWLO}, s{sWLO}, {OM<<17}"))
            G_.put_post(12,S(f"s_add_u32 s{sOLO}, s{sOLO}, {1<<11}"))
            G_.put_post(13,S(f"s_and_b32 s{sOLO}, s{sOLO}, {OM<<11}"))
            for j in range(4):
                G_.mem[vp[2*j]]=(lambda j=j: g.e(f"buffer_load_dwordx4 v{vWOD+j}, {sr(S_WON)}, s{sKWO} offen offset:{1024*j}{NTO} lds"))
                G_.mem[vp[2*j+1]]=(lambda j=j,u=u: o_1((u+OL)&3,j,S_ON))
            rend=opt.get("o_rend",30)
            for n_,(js,nt,hf) in enumerate(RD):
                G_.put_mem(n_*rend/32.0,lambda js=js,nt=nt,hf=hf,u=u: a_read2(u+1,js,nt,hf))
            M=[]
            for js in range(2):
                for nt in range(8):
                    for rt in range(2):
                        d=OACC+(rt*8+nt)*4
                        txt=f"v_mfma_f32_16x16x32_bf16 {ar(d)}, {ar(64*(u&1)+(js*8+nt)*4)}, {vr(OF+(u&3)*16+(rt*2+js)*4)}, {ar(d)}"
                        if rt==0: M.append(lambda txt=txt,u=u,js=js,nt=nt: (g.lgwait(('A',u&1,js,nt)), g.e(txt)))
                        else: M.append(txt)
            G_.emit(g,M)
        save=list(g.L)
        for u in range(8): body(u)
        lg_end=list(g.lg)
        g.L=save; g.lg=list(lg_end)
        g.e("s_waitcnt lgkmcnt(0)")
        if opt.get("steps"): g.e("v_mov_b32 v62, 0\ns_memtime s[98:99]\ns_waitcnt lgkmcnt(0)")
        g.label("L_O_LOOP")
        for u in range(8): body(u)
        assert g.lg==lg_end
        g.e(f"s_add_u32 s{sJ}, s{sJ}, 8\ns_cmp_lt_u32 s{sJ}, {NCH}\ns_cbranch_scc1 L_O_LOOP\ns_waitcnt lgkmcnt(0)")
        tick_store(); stamp(); dstamp(6)
        g.e("s_nop 7")
        for rt in range(2):
            if rt==1: g.e(f"s_add_u32 s{sEXW}, s{sEXW}, 4096")
            for m in range(4):
                d=OACC+(rt*8+4+m)*4
                g.e(f"buffer_store_dwordx4 {ar(d)}, v{vOS}, {sr(S_O)}, s{sEXW} offen offset:{m*1024} sc1")
        for rt in range(2):
            for m in range(4):
                for q in range(4): g.e(f"v_accvgpr_read_b32 v{128+(rt*4+m)*4+q}, a{OACC+(rt*8+m)*4+q}")
        g.e(f"""
        v_lshrrev_b32 v3, 4, v0
        v_and_b32 v4, 15, v0
        v_lshlrev_b32 v5, 3, v3
        v_lshl_add_u32 v52, v4, 12, v5
        s_lshl_b32 s{sCNT}, s{sW}, 2
        s_add_u32 s{sCNT}, s{sCNT}, 16
        s_waitcnt vmcnt(0)
        """)
        xst(11)
        flag_store(f"s{sCNT}")
        g.e(f"""
        s_xor_b32 s{sT0}, s2, 128
        s_lshl_b32 s{sT0}, s{sT0}, 7
        s_add_u32 s{sT0}, s{sT0}, {FLAG_OFF}
        s_add_u32 s{sT0}, s{sT0}, s{sCNT}
        v_mov_b32 v1, s{sT0}
        s_mov_b32 s{sCNT}, 0
        s_mov_b64 exec, 1
        L_X_POLL:
        global_load_dword v3, v1, s[{sWS}:{sWS+1}] sc1
        s_add_u32 s{sCNT}, s{sCNT}, 1
        s_waitcnt vmcnt(0)
        v_readfirstlane_b32 s{sT0}, v3
        s_cmp_gt_u32 s{sCNT}, 0x40000
        s_cbranch_scc1 L_X_POLLX
        s_cmp_lg_u32 s{sT0}, s{sNONCE}
        s_cbranch_scc1 L_X_POLL
        L_X_POLLX:
        s_mov_b64 exec, -1
        """)
        xst(12)
        for rt in range(2):
            if rt==1: g.e(f"s_add_u32 s{sEXR}, s{sEXR}, 4096")
            for m in range(4):
                r=192+(rt*4+m)*4
                g.e(f"buffer_load_dwordx4 {vr(r)}, v{vOS}, {sr(S_O)}, s{sEXR} offen offset:{m*1024} sc1")
        for rt in range(2):
            if rt==1: g.e(f"s_add_u32 s{sOUTB}, s{sOUTB}, 0x10000")
            for m in range(4):
                d=128+(rt*4+m)*4; r=192+(rt*4+m)*4
                if rt==0 and m==0:
                    g.e("s_waitcnt vmcnt(0)"); xst(13)
                for q in range(4): g.e(f"v_add_f32 v{d+q}, v{d+q}, v{r+q}")
                g.e(f"""v_cvt_pk_bf16_f32 v{d}, v{d}, v{d+1}
                v_cvt_pk_bf16_f32 v{d+1}, v{d+2}, v{d+3}
                buffer_store_dwordx2 v[{d}:{d+1}], v52, {sr(S_OUT)}, s{sOUTB} offen offset:{m*32}{opt.get("st_out","")}""")
    phase_o4() if O4 else phase_o2()
    stamp()
    if opt.get("dstamps"):
        g.e("s_waitcnt vmcnt(0)"); dstamp(7)
    if opt.get("stamps"):
        g.e("s_waitcnt vmcnt(0)")
        g.e(f"s_mov_b32 s{sSEGN}, 10")
        stamp()
    g.label("L_END")
    g.e("s_endpgm")
    return g.text()

def build(opt):
    s="; @launch grid=(256,1,1) block=(256,1,1) lds=163840\n"
    s+=""";
;
;            row sums from an extra MFMA with a ones operand; K/V stream through an 8-slot LDS ring (non-temporal loads).
;  phase O : out tile 128 x 128 over half of K (split-K 2): o fragments straight to registers, wo through the LDS ring.
;  phase X : the two K halves exchange fp32 partial tiles through the workspace, add, round to bf16, store.
;  Hand-offs between workgroups use write-through stores + per-workgroup flag words in the workspace; flags carry a
;  per-launch tag agreed through d_debug (zero at launch), so stale workspace contents never match.  Counted vmcnt waits
"""
    s+='.amdgcn_target "amdgcn-amd-amdhsa--gfx950"\n'
    s+=f".text\n.globl {KN}\n.p2align 8\n.type {KN},@function\n{KN}:\n"
    s+=gen(opt)
    s+=f""".section .rodata,"a"
.p2align 6
.amdhsa_kernel {KN}
  .amdhsa_next_free_vgpr 512
  .amdhsa_next_free_sgpr 102
  .amdhsa_accum_offset 256
  .amdhsa_group_segment_fixed_size 0
  .amdhsa_kernarg_size 104
  .amdhsa_user_sgpr_count 2
  .amdhsa_user_sgpr_kernarg_segment_ptr 1
  .amdhsa_system_sgpr_workgroup_id_x 1
.end_amdhsa_kernel
"""
    return s
if __name__=="__main__":
    opt=json.loads(sys.argv[2]) if len(sys.argv)>2 else {}
    open(sys.argv[1],"w").write(build(opt))
```

```python
import sys, struct, math, json
from gl import *
KN="concat_heads__mha_block_cached__mha_block_cached__near_ridge_kernel"
C_SCALE=struct.unpack("<I",struct.pack("<f",math.log2(math.e)/math.sqrt(128.0)))[0]
K1=1024; MB=K1*K1
EXCH_OFF=16*MB; FLAG_OFF=44*MB; STAMP_OFF=48*MB; WS_SRD=48*MB
SLOT=16384; NPRE=3
WQBASE=48*K1; XBASE=96*K1
WO_AREA=[128*K1,144*K1,96*K1,112*K1]; WO_RB=96*K1

def gen(opt):
    opt=dict(opt); opt.setdefault('thra',4); opt.setdefault("thra_skip",4); opt.setdefault('late',1); opt.setdefault("odefer",1); opt.setdefault("qpro",1); opt.setdefault("olate",1)
    g=G()
    S=lambda txt: (lambda: g.e(txt))
    NT=opt.get('nt_kv',' nt')
    NTX=opt.get("nt_x",""); NTW=opt.get("nt_wq",""); NTO=opt.get("nt_wo",""); NTOO=opt.get("nt_o"," sc1"); STO=opt.get("st_o"," sc1")
    FULL=opt.get("fullrot",0); WIN=16 if FULL else opt.get("qwin",4); KM=WIN-1
    LA=opt.get("la",4); PF=opt.get("pf",8)
    O4=opt.get("o4",0)
    OW=8 if O4 else opt.get("owin",8); OM=OW-1
    NWOP=5 if O4 else min(opt.get("nwop",7),LA)
    KREG={int(k):v for k,v in opt.get("kreg",{3:3,6:4,9:5,13:6}).items()}
    KRI={c:n for n,c in enumerate(sorted(KREG.values()))}
    KPRE={int(k):v for k,v in opt.get("kpre",{10:0,12:1,14:2}).items()}
    sPA=7;sKRG=7;sSIG=3;sKRO=100;sQ1=5;sQ2=6;sQ3=4;sPOL=88;sJ=4;sLAST=5;sCNT=6
    S_X=8;S_WQ=12;S_K=16;S_V=20;S_KN=24;S_O=28;S_WO=32;S_OUT=36;S_WON=40
    sW=44;sBR=45;sH=46;sBG=47;sRB=48;sCB=49;sKH=50;sPHI=51;sPHO=52
    sWQB=53;sKX=54;sKW=55;sXT=56;sWT=57;sT0=58;sT1=59
    sCUR=60;sNXT=61;sITEM=62;sOB=63;sC=64;sWOFF=65;sXL=66;sWL=67
    sMASK=68
    sXB=70
    sNONCE=74;sWOB=75;sOOB=76;sKWO=77;sKO=78;sWLO=79;sOLO=80;sOUTB=81;sEXW=82;sEXR=83
    S_ON=84
    sSEGN=89; sWS=90; sDBG=92; sSTB=94
    vKD=8; vVD=12; vKR=14; vVR=22; vOS=38; vOS1=39; vWOD=40; vPA=44; vTCH=45; sTCH=88; vOS2=45; vOS3=63
    vXD=46; vXR=48; vWD=50; vWR=54
    TA=52; vWOR=46
    QF=64; ACC=128
    OA=128; LAcc=160; ONES=168; QCUR=172; OACC=192
    def stamp():
        if not opt.get("stamps"): return
        g.e(f"""
        s_memrealtime s[96:97]
        s_memtime s[98:99]
        s_waitcnt lgkmcnt(0)
        v_mov_b32 v2, s96
        v_mov_b32 v3, s98
        s_lshl_b32 s96, s2, 7
        s_lshl_b32 s97, s{sSEGN}, 3
        s_add_u32 s96, s96, s97
        v_mov_b32 v1, s96
        global_store_dwordx2 v1, v[2:3], s[{sSTB}:{sSTB+1}]
        s_add_u32 s{sSEGN}, s{sSEGN}, 1
        """)
        g.lg=[]
        g.vm.append('stamp') if False else None
    def dstamp(word,neg=False):
        if not opt.get("dstamps"): return
        n=f"L_DS{word}"
        g.e(f"""
        s_cmp_lg_u32 s{sW}, 0
        s_cbranch_scc1 {n}
        s_memrealtime s[96:97]
        s_waitcnt lgkmcnt(0)
        {"s_not_b32 s96, s96" if neg else ""}
        v_mov_b32 v2, s96
        v_mov_b32 v1, {word*4}
        s_mov_b64 exec, 1
        global_atomic_umax v1, v2, s[{sDBG}:{sDBG+1}]
        s_mov_b64 exec, -1
        {n}:
        """)
        g.lg=[]
    def tick(k):
        if opt.get("steps"):
            g.e(f"s_memtime s[96:97]\ns_waitcnt lgkmcnt(0)\nv_writelane_b32 v62, s96, {k}"); g.lg=[]
    def tick_store():
        if opt.get("steps"):
            g.e(f"s_lshl_b32 s96, s2, 12\ns_lshl_b32 s97, s{sSEGN}, 8\ns_add_u32 s96, s96, s97\ns_add_u32 s96, s96, {MB}\nv_lshlrev_b32 v1, 2, v0\nv_add_u32 v1, s96, v1\nglobal_store_dword v1, v62, s[{sSTB}:{sSTB+1}]")
    PH4="s_lshr_b32 s7, s6, 1\ns_add_u32 s7, s7, s%d\ns_and_b32 s%d, s7, 3"%(sBG,sPHI)
    if opt.get("stamps"): g.e("s_memrealtime s[88:89]\ns_waitcnt lgkmcnt(0)\ns_mov_b32 s101, s88")
    g.e(f"""
    s_cmp_ge_u32 s2, 256
    s_cbranch_scc1 L_END
    s_load_dwordx4 s[96:99], s[0:1], 80
    s_load_dwordx2 s[{sWS}:{sWS+1}], s[0:1], 96
    s_and_b32 s3, s2, 7                          ; xcd
    s_lshr_b32 s4, s2, 3                         ; idx
    s_lshr_b32 s{sBR}, s3, 2
    s_and_b32 s5, s3, 3
    s_lshl_b32 s5, s5, 3
    s_and_b32 s6, s4, 7
    s_add_u32 s{sH}, s5, s6
    s_lshr_b32 s{sBG}, s4, 3
    s_lshl_b32 s7, s{sBG}, 1
    s_add_u32 s7, s7, s6
    s_and_b32 s{sPHI}, s7, 7
    {"s_lshl_b32 s"+str(sPHI)+", s"+str(sPHI)+", 1" if FULL else ""}
    {PH4 if WIN==4 else ""}
    ; O mapping
    s_lshr_b32 s5, s3, 1
    s_and_b32 s5, s5, 1
    s_lshl_b32 s5, s5, 2
    s_and_b32 s6, s4, 3
    s_add_u32 s{sRB}, s5, s6
    s_and_b32 s5, s3, 1
    s_lshl_b32 s5, s5, 2
    s_lshr_b32 s7, s4, 2
    s_and_b32 s7, s7, 3
    s_add_u32 s{sCB}, s5, s7
    s_lshr_b32 s{sKH}, s4, 4
    s_add_u32 s{sPHO}, s6, s7
    s_and_b32 s{sPHO}, s{sPHO}, 3
    s_lshl_b32 s{sPHO}, s{sPHO}, {1 if OW==8 else 0}
    s_mul_i32 s5, s{sBR}, 40
    s_add_u32 s4, s0, s5
    s_addc_u32 s5, s1, 0
    s_load_dwordx4 s[8:11], s[4:5], 0            ; x, k
    s_load_dwordx4 s[12:15], s[4:5], 16          ; v, wq
    s_load_dwordx2 s[16:17], s[4:5], 32          ; wo
    v_lshrrev_b32 v1, 6, v0
    v_and_b32 v0, 63, v0
    s_nop 0
    v_readfirstlane_b32 s{sW}, v1
    """)
    g.e(f"""
    v_lshrrev_b32 v1, 3, v0              ; r8
    v_and_b32 v2, 7, v0                  ; p8
    v_lshrrev_b32 v3, 4, v0              ; rr / g
    v_and_b32 v4, 15, v0                 ; p16 / q / key
    v_xor_b32 v5, v2, v3
    v_lshlrev_b32 v5, 4, v5
    v_lshl_add_u32 v{vXD}, v1, 11, v5
    v_xor_b32 v5, 64, v5
    v_lshl_add_u32 v5, v1, 11, v5
    v_add_u32 v{vXD+1}, {8*2048-1024}, v5
    v_lshrrev_b32 v5, 1, v4
    v_xor_b32 v5, v5, v3
    v_lshlrev_b32 v5, 4, v5
    v_lshl_add_u32 v5, v4, 7, v5
    s_lshl_b32 s{sXL}, s{sW}, 14
    s_add_u32 s{sXL}, s{sXL}, {XBASE}
    v_add_u32 v{vXR}, s{sXL}, v5
    v_xor_b32 v{vXR+1}, 64, v{vXR}
    v_and_b32 v5, 1, v3
    v_and_b32 v6, 2, v3
    v_lshl_or_b32 v5, v6, 1, v5          ; f0
    v_xor_b32 v5, v5, v4                 ; p ^ f0
    """)
    for j in range(4):
        g.e(f"""
        v_xor_b32 v6, {8*(j>>1)}, v5
        v_lshlrev_b32 v6, 4, v6
        v_lshl_add_u32 v6, v3, 13, v6
        v_add_u32 v{vWD+j}, {4*j*8192-1024*j}, v6
        """)
    g.e(f"""
    v_lshrrev_b32 v5, 2, v4              ; rp
    v_and_b32 v6, 3, v0                  ; c
    v_and_b32 v7, 1, v5
    v_and_b32 v1, 2, v5
    v_lshl_or_b32 v7, v1, 1, v7
    v_and_b32 v1, 1, v3
    v_lshl_or_b32 v7, v1, 3, v7          ; f
    v_xor_b32 v7, v7, v6                 ; c ^ f
    v_lshlrev_b32 v7, 4, v7
    v_and_b32 v1, 1, v6
    v_lshl_or_b32 v7, v1, 3, v7          ; + 8*(c&1)
    v_lshl_add_u32 v1, v3, 3, v5         ; 8kg+rp
    v_lshl_add_u32 v7, v1, 8, v7
    v_add_u32 v7, {WQBASE}, v7
    """)
    for dt in range(8):
        t,u=dt>>1,dt&1
        g.e(f"v_xor_b32 v{vWR+dt}, {(t<<6)^(u<<3)}, v7")
    for j in range(4):
        g.e(f"""
        v_add_u32 v5, {4*(j&1)}, v3
        v_lshlrev_b32 v5, 1, v5
        v_xor_b32 v5, v5, v4
        v_lshlrev_b32 v5, 4, v5
        v_lshl_add_u32 v5, v3, 11, v5
        v_add_u32 v{vWOD+j}, {4*j*2048-1024*j}, v5
        """)
    if O4:
        g.e(f"""
        v_and_b32 v5, 7, v0
        s_lshl_b32 s{sT0}, s{sBG}, 3
        v_add_u32 v5, s{sT0}, v5
        s_and_b32 s{sT0}, s2, 7
        v_lshlrev_b32 v5, 3, v5
        v_add_u32 v5, s{sT0}, v5
        v_lshlrev_b32 v5, 7, v5
        v_add_u32 v{vPA}, {FLAG_OFF}, v5
        """)
    else:
        g.e(f"""
        s_lshl_b32 s{sT0}, s{sKH}, 4
        v_add_u32 v5, s{sT0}, v4             ; h = 16kh + t
        v_lshrrev_b32 v6, 3, v5              ; h>>3
        s_lshl_b32 s{sT0}, s{sBR}, 2
        v_add_u32 v6, s{sT0}, v6             ; xcd'
        v_and_b32 v5, 7, v5
        s_lshr_b32 s{sT0}, s{sRB}, 1
        s_lshl_b32 s{sT0}, s{sT0}, 3
        v_add_u32 v5, s{sT0}, v5             ; idx'
        v_lshl_add_u32 v5, v5, 3, v6         ; wg'
        v_lshlrev_b32 v5, 7, v5
        s_mov_b32 s{sT0}, {FLAG_OFF}
        v_add_u32 v{vPA}, s{sT0}, v5
        """)
    for j in range(4):
        g.e(f"""
        v_add_u32 v5, {4*j}, v3
        v_xor_b32 v5, v5, v4
        v_lshlrev_b32 v5, 4, v5
        v_lshl_add_u32 v{vKD+j}, v3, 8, v5
        """)
    g.e(f"""
    v_xor_b32 v5, v3, v4
    v_lshlrev_b32 v5, 4, v5
    v_lshl_add_u32 v5, v4, 8, v5
    """)
    for t in range(4): g.e(f"v_xor_b32 v{vKR+t}, {t<<6}, v5\nv_add_u32 v{vKR+4+t}, 0x10000, v{vKR+t}")
    for jp in range(2):
        g.e(f"""
        v_add_u32 v5, {4*jp}, v3
        v_lshlrev_b32 v5, 1, v5
        v_xor_b32 v5, v5, v4
        v_lshlrev_b32 v5, 4, v5
        v_lshl_add_u32 v{vVD+jp}, v3, 8, v5
        """)
    g.e(f"""
    v_lshrrev_b32 v5, 2, v4              ; rp
    v_and_b32 v6, 3, v0                  ; c
    v_and_b32 v7, 1, v3
    v_lshl_add_u32 v7, v7, 2, v5         ; 4(g&1)+rp
    v_lshlrev_b32 v7, 1, v7
    v_lshrrev_b32 v1, 1, v6
    v_xor_b32 v7, v7, v1
    v_lshlrev_b32 v7, 4, v7
    v_and_b32 v1, 1, v6
    v_lshl_or_b32 v7, v1, 3, v7
    v_lshl_add_u32 v1, v3, 2, v5         ; 4g+rp
    v_lshl_add_u32 v7, v1, 8, v7
    """)
    for dt in range(8): g.e(f"v_xor_b32 v{vVR+dt}, {dt<<5}, v7\nv_add_u32 v{vVR+8+dt}, 0x10000, v{vVR+dt}")
    g.e(f"v_lshlrev_b32 v{vTCH}, 7, v0")
    g.e(f"s_and_b32 s{sT0}, s2, 3\ns_lshl_b32 s{sT0}, s{sT0}, 5\ns_lshr_b32 s{sT1}, s2, 3\ns_add_u32 s{sT0}, s{sT0}, s{sT1}\ns_lshl_b32 s{sTCH}, s{sT0}, 16\ns_lshl_b32 s{sT0}, s{sW}, 14\ns_add_u32 s{sTCH}, s{sTCH}, s{sT0}")
    g.e(f"v_lshlrev_b32 v{vOS}, 4, v0\nv_add_u32 v{vOS1}, 0x20000, v{vOS}\nv_mov_b32 v1, 0x3f803f80")
    for r in range(4): g.e(f"v_accvgpr_write_b32 a{ONES+r}, v1")
    g.e("s_waitcnt lgkmcnt(0)")
    def mk(s,lo,hi,size): g.e(f"s_mov_b32 s{s}, s{lo}\ns_and_b32 s{s+1}, s{hi}, 0xffff\ns_mov_b32 s{s+2}, {size}\ns_mov_b32 s{s+3}, 0x20000")
    g.e(f"s_mov_b32 s{sDBG}, s98\ns_mov_b32 s{sDBG+1}, s99")
    mk(S_OUT,96,97,4*MB); mk(S_WO,16,17,8*MB); mk(S_WON,16,17,8*MB); mk(S_V,12,13,64*MB)
    mk(S_K,10,11,64*MB); mk(S_KN,10,11,64*MB)
    g.e(f"s_mov_b32 s4, s14\ns_mov_b32 s5, s15\ns_and_b32 s{S_X+1}, s9, 0xffff\ns_mov_b32 s{S_X+2}, {2*MB}\ns_mov_b32 s{S_X+3}, 0x20000")
    mk(S_WQ,4,5,8*MB); mk(S_O,sWS,sWS+1,WS_SRD); mk(S_ON,sWS,sWS+1,WS_SRD)
    g.e(f"""
    s_add_u32 s{sSTB}, s{sWS}, {STAMP_OFF}
    s_addc_u32 s{sSTB+1}, s{sWS+1}, 0
    s_mov_b32 s{sSEGN}, 0
    s_lshl_b32 s{sWOFF}, s{sW}, 12
    s_add_u32 s{sWL}, s{sWOFF}, {WQBASE}
    s_lshl_b32 s{sT0}, s{sBG}, 19
    s_lshl_b32 s{sT1}, s{sW}, 15
    s_add_u32 s{sXB}, s{sT0}, s{sT1}
    s_add_u32 s{sXB+1}, s{sXB}, 0x20000
    s_add_u32 s{sXB+2}, s{sXB}, 0x40000
    s_add_u32 s{sXB+3}, s{sXB}, 0x60000
    s_lshl_b32 s{sT0}, s{sW}, 17
    s_lshl_b32 s{sT1}, s{sH}, 8
    s_add_u32 s{sWQB}, s{sT0}, s{sT1}
    """)
    if opt.get("stamps"):
        g.e(f"v_mov_b32 v2, s101\nv_mov_b32 v3, 0\ns_lshl_b32 s96, s2, 7\ns_add_u32 s96, s96, 120\nv_mov_b32 v1, s96\nglobal_store_dwordx2 v1, v[2:3], s[{sSTB}:{sSTB+1}]")
    stamp()
    dstamp(2,True)
    O4B=f"""
        s_and_b32 s{sKH}, s2, 3                      ; kq
        s_lshr_b32 s{sT0}, s2, 3
        s_and_b32 s{sCB}, s{sT0}, 7                  ; cb
        s_lshl_b32 s{sT0}, s{sBG}, 1
        s_add_u32 s{sPHO}, s{sT0}, s{sCB}
        s_and_b32 s{sPHO}, s{sPHO}, 7
        s_lshl_b32 s{sWOB}, s{sKH}, 21
        s_lshl_b32 s{sT0}, s{sW}, 15
        s_add_u32 s{sWOB}, s{sWOB}, s{sT0}
        s_lshl_b32 s{sT0}, s{sCB}, 8
        s_add_u32 s{sWOB}, s{sWOB}, s{sT0}
        s_lshl_b32 s{sT0}, s{sBG}, 2
        s_add_u32 s{sT0}, s{sT0}, s{sW}
        s_lshl_b32 s{sOOB}, s{sT0}, 19
        s_lshl_b32 s{sOUTB}, s{sT0}, 18
        s_lshl_b32 s{sT0}, s{sBR}, 23
        s_add_u32 s{sOOB}, s{sOOB}, s{sT0}
        s_lshl_b32 s{sT0}, s{sKH}, 15
        s_add_u32 s{sOOB}, s{sOOB}, s{sT0}
        s_lshl_b32 s{sT0}, s{sBR}, 11
        s_add_u32 s{sOUTB}, s{sOUTB}, s{sT0}
        s_lshl_b32 s{sT0}, s{sCB}, 8
        s_add_u32 s{sOUTB}, s{sOUTB}, s{sT0}
        s_lshl_b32 s{sT0}, s{sKH}, 6
        s_add_u32 s{sOUTB}, s{sOUTB}, s{sT0}
        s_mul_i32 s{sEXW}, s2, 98304
        s_mul_i32 s{sT0}, s{sW}, 24576
        s_add_u32 s{sEXW}, s{sEXW}, s{sT0}
        s_add_u32 s{sEXW}, s{sEXW}, {EXCH_OFF}
    """
    def late_setup():
        g.e(f"""
        s_mov_b32 s{sC}, {C_SCALE}
        s_mov_b32 s{sMASK}, 0xffff0000
        s_mov_b32 s{sMASK+1}, 0xffff0000
        s_lshl_b32 s{sT0}, s{sBG}, 24
        s_lshl_b32 s{sT1}, s{sH}, 17
        s_add_u32 s{sCUR}, s{sT0}, s{sT1}
        s_add_u32 s{sCUR}, s{sCUR}, s{sWOFF}
        s_add_u32 s{sNXT}, s{sCUR}, 0x400000
        s_lshl_b32 s{sT0}, s{sBR}, 23
        s_lshl_b32 s{sT1}, s{sBG}, 21
        s_add_u32 s{sOB}, s{sT0}, s{sT1}
        s_lshl_b32 s{sT0}, s{sW}, 17
        s_add_u32 s{sOB}, s{sOB}, s{sT0}
        s_lshl_b32 s{sT0}, s{sH}, 12
        s_add_u32 s{sOB}, s{sOB}, s{sT0}
        s_lshl_b32 s{sT0}, s{sKH}, 22
        s_lshl_b32 s{sT1}, s{sW}, 15
        s_add_u32 s{sWOB}, s{sT0}, s{sT1}
        s_lshl_b32 s{sT0}, s{sCB}, 8
        s_add_u32 s{sWOB}, s{sWOB}, s{sT0}
        s_lshl_b32 s{sT0}, s{sRB}, 3
        s_lshl_b32 s{sT1}, s{sW}, 1
        s_add_u32 s{sT0}, s{sT0}, s{sT1}            ; 8rb+2w
        s_lshl_b32 s{sOUTB}, s{sT0}, 16
        s_lshl_b32 s{sOOB}, s{sT0}, 17
        s_lshl_b32 s{sT1}, s{sBR}, 23
        s_add_u32 s{sOOB}, s{sOOB}, s{sT1}
        s_lshl_b32 s{sT1}, s{sKH}, 16
        s_add_u32 s{sOOB}, s{sOOB}, s{sT1}
        s_lshl_b32 s{sT1}, s{sBR}, 11
        s_add_u32 s{sOUTB}, s{sOUTB}, s{sT1}
        s_lshl_b32 s{sT1}, s{sCB}, 8
        s_add_u32 s{sOUTB}, s{sOUTB}, s{sT1}
        s_lshl_b32 s{sT1}, s{sKH}, 7
        s_add_u32 s{sOUTB}, s{sOUTB}, s{sT1}
        s_lshl_b32 s{sT1}, s{sW}, 13
        s_lshl_b32 s{sEXW}, s2, 15
        s_add_u32 s{sEXW}, s{sEXW}, s{sT1}
        s_add_u32 s{sEXW}, s{sEXW}, {EXCH_OFF}
        s_xor_b32 s{sEXR}, s2, 128
        s_lshl_b32 s{sEXR}, s{sEXR}, 15
        s_add_u32 s{sEXR}, s{sEXR}, s{sT1}
        s_add_u32 s{sEXR}, s{sEXR}, {EXCH_OFF}
        s_lshr_b32 s{sT0}, s2, {opt.get("krot_sh",3)}
        s_and_b32 s{sT0}, s{sT0}, 7
        s_lshl_b32 s{sKRO}, s{sT0}, 14
        {O4B if O4 else ""}
        {("s_mov_b32 s"+str(sPOL)+", s"+str(sBR)) if opt.get("polsel")==1 else ("s_xor_b32 s"+str(sPOL)+", s"+str(sBR)+", 1") if opt.get("polsel")==2 else ""}
        s_mov_b32 s{sITEM}, 0
        s_mov_b32 s{sNONCE}, 0
        s_mov_b32 s{sPA}, 0
        s_mov_b32 s{sSIG}, 0
        s_cmp_lg_u32 s{sW}, 0
        s_cbranch_scc1 L_NONCE_DONE
        s_memrealtime s[96:97]
        s_waitcnt lgkmcnt(0)
        s_or_b32 s96, s96, 1
        v_mov_b32 v4, s96
        v_mov_b32 v5, 0
        v_accvgpr_write_b32 a164, v4
        v_accvgpr_write_b32 a165, v5
        s_mov_b64 exec, 1
        global_atomic_cmpswap a166, v5, a[164:165], s[{sDBG}:{sDBG+1}] sc0
        s_mov_b64 exec, -1
        L_NONCE_DONE:
        """)
    def flag_store(off):
        g.e(f"""
        s_lshl_b32 s{sT0}, s2, 7
        s_add_u32 s{sT0}, s{sT0}, {FLAG_OFF}
        s_add_u32 s{sT0}, s{sT0}, {off}
        v_mov_b32 v1, s{sT0}
        v_mov_b32 v3, s{sNONCE}
        s_mov_b64 exec, 1
        global_store_dword v1, v3, s[{sWS}:{sWS+1}] sc1
        s_mov_b64 exec, -1
        """)
    nsig=[0]
    def pending_signal():
        nsig[0]+=1; n=nsig[0]
        g.e(f"""
        s_cmp_eq_u32 s{sSIG}, 0
        s_cbranch_scc1 L_SG{n}
        s_cmp_lg_u32 s{sW}, 0
        s_cbranch_scc1 L_SGX{n}
        s_sub_u32 s{sCNT}, s{sSIG}, 1
        s_lshl_b32 s{sCNT}, s{sCNT}, 2
        """)
        flag_store(f"s{sCNT}")
        g.e(f"L_SGX{n}:\ns_mov_b32 s{sSIG}, 0\nL_SG{n}:")
    def kv_soff(dst,base,ch):
        if opt.get("krot"):
            return f"s_add_u32 s{dst}, s{sKRO}, {ch*16384}\ns_and_b32 s{dst}, s{dst}, 0x1ffff\ns_add_u32 s{dst}, s{dst}, s{base}"
        return f"s_add_u32 s{dst}, s{base}, {ch*16384}"
    def kv_group(cc):
        if cc<8: srdn,base,vo,ch=S_K,sCUR,[vKD+j for j in range(4)],cc
        elif cc<16: srdn,base,vo,ch=S_V,sCUR,[vVD+(j&1) for j in range(4)],cc-8
        else: srdn,base,vo,ch=S_KN,sNXT,[vKD+j for j in range(4)],cc-16
        return (f"s_add_u32 m0, s{sWOFF}, {(cc&7)*SLOT}\n"+kv_soff(sT1,base,ch),
                [f"buffer_load_dwordx4 v{vo[j]}, {sr(srdn)}, s{sT1} offen offset:{1024*j}{NT} lds" for j in range(4)])
    def wo_group(c,track,srdn=S_WO):
        g.e(f"s_add_u32 s{sT1}, s{sPHO}, {c}\ns_and_b32 s{sT1}, s{sT1}, {OM}\ns_or_b32 s{sT1}, s{sT1}, {c&~OM}\ns_lshl_b32 s{sT1}, s{sT1}, 17\ns_add_u32 m0, s{sWOFF}, {(c&7)*SLOT}\ns_add_u32 s{sT1}, s{sT1}, s{sWOB}")
        for j in range(4):
            t=f"buffer_load_dwordx4 v{vWOD+j}, {sr(srdn)}, s{sT1} offen offset:{1024*j}{NTO} lds"
            g.vmop(t,('wo',c)) if track else g.e(t)
    def kidx(s,dst,shift):
        g.e(f"s_add_u32 s{sT0}, s{sPHI}, {s}\ns_and_b32 s{sT0}, s{sT0}, {KM}\ns_or_b32 s{sT0}, s{sT0}, {s&~KM&15}\ns_lshl_b32 s{dst}, s{sT0}, {shift}")
    def x_dma(s,i):
        slot=(s&1)*4+i
        g.e(f"s_add_u32 m0, s{sXL}, {slot*2048}\ns_add_u32 s{sT1}, s{sXB+i}, s{sKX}")
        for j in range(2): g.vmop(f"buffer_load_dwordx4 v{vXD+j}, {sr(S_X)}, s{sT1} offen offset:{1024*j}{NTX} lds",('x',s,i))
    def wq_dma(s):
        g.e(f"s_add_u32 m0, s{sWL}, {(s%3)*16384}\ns_add_u32 s{sT1}, s{sWQB}, s{sKW}")
        for j in range(4): g.vmop(f"buffer_load_dwordx4 v{vWD+j}, {sr(S_WQ)}, s{sT1} offen offset:{1024*j}{NTW} lds",('wq',s))
    def a_read(s,ks,dt,hf):
        r=64*(s&1)+(ks*8+dt)*4+2*hf
        g.lgop(f"ds_read_b64_tr_b16 a[{r}:{r+1}], v{vWR+dt} offset:{(s%3)*16384+ks*8192+hf*1024}",('A',s))
    def b_read(s,i,ks):
        n=s*4+i
        r=128+(n&1)*8+ks*4
        g.lgop(f"ds_read_b128 a[{r}:{r+3}], v{vXR+ks} offset:{((s&1)*4+i)*2048}",('B',s,i))
    tick(40)
    kidx(0,sKW,19); wq_dma(0)
    if opt.get("tlb"):
        late_setup()
        g.e(f"""
        v_lshlrev_b32 v1, 22, v0
        v_lshlrev_b32 v2, 20, v0
        v_mov_b32 v3, s{sOB}
        v_writelane_b32 v3, s{sOOB}, 1
        v_writelane_b32 v3, s{sEXW}, 2
        s_lshl_b32 s{sT0}, s2, 7
        s_add_u32 s{sT0}, s{sT0}, {FLAG_OFF}
        v_writelane_b32 v3, s{sT0}, 3
        s_mov_b32 m0, s{sWOFF}
        s_mov_b64 exec, 0xf
        """)
        g.vmop(f"buffer_load_dword v1, {sr(S_K)}, s{sCUR} offen{NT} lds",('tlb',))
        g.vmop(f"buffer_load_dword v1, {sr(S_V)}, s{sCUR} offen{NT} lds",('tlb',))
        g.vmop(f"buffer_load_dword v2, {sr(S_WO)}, s{sWOB} offen{NT} lds",('tlb',))
        g.vmop(f"buffer_load_dword v3, {sr(S_O)}, 0 offen{NT} lds",('tlb',))
        g.e("s_mov_b64 exec, 1")
        g.vmop(f"buffer_load_dword v1, {sr(S_OUT)}, s{sOUTB} offen{NT} lds",('tlb',))
        g.e("s_mov_b64 exec, -1")
    kidx(0,sKX,7)
    for i in range(4): x_dma(0,i)
    kidx(1,sKW,19); wq_dma(1)
    Q0=opt.get("q0fast",0)
    if not opt.get("qpro",0) and not Q0:
        kidx(1,sKX,7)
        for i in range(4): x_dma(1,i)
        kidx(2,sKW,19); wq_dma(2)
    tick(41)
    if not opt.get("tlb"): late_setup()
    tick(42)
    g.vmwait(('wq',0))
    tick(43)
    g.e("s_barrier")
    AR=[(ks,dt,hf) for ks in range(2) for dt in range(8) for hf in range(2)]
    for (ks,dt,hf) in AR: a_read(0,ks,dt,hf)
    g.vmwait(('x',0,0))
    tick(44)
    b_read(0,0,0); b_read(0,0,1)
    if opt.get("qpro",0) and not Q0:
        kidx(1,sKX,7)
        for i in range(4): x_dma(1,i)
        kidx(2,sKW,19); wq_dma(2)
    if Q0:
        g.e(f"s_add_u32 s{sT0}, s{sPHI}, 1\ns_and_b32 s{sT0}, s{sT0}, {KM}\ns_lshl_b32 s{sQ1}, s{sT0}, 7\ns_add_u32 s{sT0}, s{sPHI}, 2\ns_and_b32 s{sT0}, s{sT0}, {KM}\ns_lshl_b32 s{sQ2}, s{sT0}, 19\ns_add_u32 s{sQ2}, s{sQ2}, s{sWQB}")
    g.e(f"""s_add_u32 s{sT0}, s{sPHI}, 2
    s_and_b32 s{sT0}, s{sT0}, {KM}
    s_lshl_b32 s{sKX}, s{sT0}, 7
    s_add_u32 s{sT0}, s{sPHI}, 3
    s_and_b32 s{sT0}, s{sT0}, {KM}
    s_lshl_b32 s{sKW}, s{sT0}, 19""")
    for s in range(16):
        first=(Q0 and s==0)
        if s+1<16 and not first: g.vmwait(('wq',s+1))
        g.lgwait(('A',s))
        g.e("s_barrier")
        tick(s)
        G_=Gaps(64)
        dpos=opt.get("dpos",[2,7,12,17,23,28,34,39,45,50,56,61])
        if first:
            p=0
            for i in range(4):
                G_.put_post(p,S(f"s_add_u32 s{sQ3}, s{sXB+i}, s{sQ1}\ns_add_u32 m0, s{sXL}, {(4+i)*2048}"))
                for j in range(2):
                    G_.mem[p+1+j]=(lambda j=j,i=i: g.vmop(f"buffer_load_dwordx4 v{vXD+j}, {sr(S_X)}, s{sQ3} offen offset:{1024*j}{NTX} lds",('x',1,i)))
                p+=3
            G_.put_post(p,S(f"s_add_u32 m0, s{sWL}, {2*16384}"))
            for j in range(4):
                G_.mem[p+1+j]=(lambda j=j: g.vmop(f"buffer_load_dwordx4 v{vWD+j}, {sr(S_WQ)}, s{sQ2} offen offset:{1024*j}{NTW} lds",('wq',2)))
            dpos=[21,24,27,30,35,38,43,46,51,54,58,61]
        if s+3<16:
            if (s+3)%WIN==0: G_.put_post(0,S(f"s_add_u32 s{sWQB}, s{sWQB}, {WIN<<19}"))
            G_.put_post(dpos[0]-2,S(f"s_add_u32 s{sWT}, s{sWQB}, s{sKW}"))
            G_.put_post(dpos[0]-1,S(f"s_add_u32 m0, s{sWL}, {((s+3)%3)*16384}"))
            for j in range(4):
                G_.mem[dpos[j]]=(lambda j=j,s=s: g.vmop(f"buffer_load_dwordx4 v{vWD+j}, {sr(S_WQ)}, s{sWT} offen offset:{1024*j}{NTW} lds",('wq',s+3)))
            G_.put_post(dpos[3],S(f"s_add_u32 s{sKW}, s{sKW}, {1<<19}"))
            G_.put_post(dpos[3]+1,S(f"s_and_b32 s{sKW}, s{sKW}, {KM<<19}"))
        if s+2<16:
            for i in range(4):
                p=dpos[4+2*i]
                if (s+2)%WIN==0: G_.put_post(p-3,S(f"s_add_u32 s{sXB+i}, s{sXB+i}, {WIN*128}"))
                G_.put_post(p-2,S(f"s_add_u32 s{sXT}, s{sXB+i}, s{sKX}"))
                G_.put_post(p-1,S(f"s_add_u32 m0, s{sXL}, {((s&1)*4+i)*2048}"))
                for j in range(2):
                    G_.mem[dpos[4+2*i+j]]=(lambda j=j,s=s,i=i: g.vmop(f"buffer_load_dwordx4 v{vXD+j}, {sr(S_X)}, s{sXT} offen offset:{1024*j}{NTX} lds",('x',s+2,i)))
            G_.put_post(dpos[11],S(f"s_add_u32 s{sKX}, s{sKX}, 128"))
            G_.put_post(dpos[11]+1,S(f"s_and_b32 s{sKX}, s{sKX}, {KM<<7}"))
        if s in KPRE:
            c=KPRE[s]
            for j,p in enumerate(opt.get("kpos",[19,30,41,52])):
                G_.put_post(p-2,S(kv_soff(sT1,sCUR,c)))
                G_.put_post(p-1,S(f"s_add_u32 m0, s{sWOFF}, {c*SLOT}"))
                assert G_.mem[p] is None
                G_.mem[p]=(lambda j=j,c=c: g.vmop(f"buffer_load_dwordx4 v{vKD+j}, {sr(S_K)}, s{sT1} offen offset:{1024*j}{NT} lds",('kv',c)))
        if s in KREG:
            c=KREG[s]
            for j,p in enumerate(opt.get("kpos",[19,30,41,52])):
                if j==0: G_.put_post(p-2,S(f"s_add_u32 s{sKRG}, s{sCUR}, {c*16384}"))
                assert G_.mem[p] is None
                r=OACC+16*KRI[c]+4*j
                G_.mem[p]=(lambda j=j,r=r: g.e(f"buffer_load_dwordx4 {ar(r)}, v{vKD+j}, {sr(S_K)}, s{sKRG} offen offset:{1024*j}{NT}"))
        WT={int(k):v for k,v in opt.get("wotouch",{}).items()}
        if s in WT:
            n_=WT[s]; p=20
            assert G_.mem[p] is None
            G_.put_post(p-2,S(f"s_add_u32 s{sT1}, s{sTCH}, {n_*8192}"))
            G_.put_post(p-1,S(f"s_add_u32 m0, s{sWOFF}, {2*SLOT}"))
            G_.mem[p]=(lambda: g.vmop(f"buffer_load_dword v{vTCH}, {sr(S_WO)}, s{sT1} offen lds",('tch',)))
        for i in range(4):
            nxt=(s,i+1) if i<3 else ((s+1,0) if s+1<16 else None)
            if nxt:
                q=G_.put_mem(16*i+opt.get("bpos",4),lambda nxt=nxt: b_read(nxt[0],nxt[1],0),lo=16*i,hi=16*i+16)
                G_.put_pre(q,lambda nxt=nxt: g.vmwait(('x',)+nxt))
                G_.put_mem(q+1,lambda nxt=nxt: b_read(nxt[0],nxt[1],1),lo=q+1,hi=16*i+16)
        if first:
            G_.put_pre(31,lambda: (g.vmwait(('wq',1)), g.e("s_barrier")))
            for n_,(ks,dt,hf) in enumerate(AR):
                G_.put_mem(32+n_*28/32.0,lambda ks=ks,dt=dt,hf=hf,s=s: a_read(s+1,ks,dt,hf),lo=32,hi=64)
        elif s+1<16:
            aend=opt.get("aend",56)
            for n_,(ks,dt,hf) in enumerate(AR):
                G_.put_mem(n_*aend/32.0,lambda ks=ks,dt=dt,hf=hf,s=s: a_read(s+1,ks,dt,hf),hi=62)
        M=[]
        for i in range(4):
            n=s*4+i
            for ks in range(2):
                for dt in range(8):
                    d=ACC+(i*8+dt)*4
                    txt=f"v_mfma_f32_16x16x32_bf16 {vr(d)}, {ar(64*(s&1)+(ks*8+dt)*4)}, {ar(128+(n&1)*8+ks*4)}, {'0' if (s==0 and ks==0) else vr(d)}"
                    if ks==0 and dt==0: M.append(lambda txt=txt,s=s,i=i: (g.lgwait(('B',s,i)), g.e(txt)))
                    else: M.append(txt)
        G_.emit(g,M)
    tick(16)
    if KREG: g.e("s_waitcnt vmcnt(0)")
    g.e("s_barrier")
    if KREG:
        g.e(f"v_add_u32 v1, s{sWOFF}, v{vOS}\nv_add_u32 v3, 0x10000, v1")
        for c in sorted(KREG.values()):
            for j in range(4):
                r=OACC+16*KRI[c]+4*j
                off=c*SLOT+j*1024
                if off<65536: g.e(f"ds_write_b128 v1, {ar(r)} offset:{off}")
                else: g.e(f"ds_write_b128 v3, {ar(r)} offset:{off-65536}")
            if c==3: pass
    rest=[cc for cc in range(PF) if cc not in KPRE.values() and cc not in KREG.values()]
    late=rest[-opt.get("late",0):] if opt.get("late",0) else []
    for cc in rest:
        if cc in late: continue
        h,dm=kv_group(cc); g.e(h)
        for l in dm: g.e(l)
    for i in range(4):
        for t in range(4):
            bx=ACC+(i*8+2*t)*4; by=bx+4; F=QF+16*i+4*t
            g.e(f"""
            v_cvt_pk_bf16_f32 v56, v{bx}, v{bx+1}
            v_cvt_pk_bf16_f32 v57, v{bx+2}, v{bx+3}
            v_cvt_pk_bf16_f32 v58, v{by}, v{by+1}
            v_cvt_pk_bf16_f32 v59, v{by+2}, v{by+3}
            v_cndmask_b32 v{F}, v56, v58, s[{sMASK}:{sMASK+1}]
            v_cndmask_b32 v{F+1}, v57, v59, s[{sMASK}:{sMASK+1}]
            v_cndmask_b32 v{F+2}, v58, v56, s[{sMASK}:{sMASK+1}]
            v_cndmask_b32 v{F+3}, v59, v57, s[{sMASK}:{sMASK+1}]
            """)
    for cc in late:
        h,dm=kv_group(cc); g.e(h)
        for l in dm: g.e(l)
    if KREG: g.e("s_waitcnt lgkmcnt(0)")
    tick(17); tick_store(); stamp(); dstamp(3)
    g.label("L_ITEM")
    g.vm=[]; g.lg=[]
    tick(40)
    g.e(f"s_cmp_lt_u32 s{sITEM}, 3\ns_cselect_b32 s{S_KN+2}, {64*MB}, 0\ns_cselect_b32 s{sLAST}, 0, 1")
    for n in range(4):
        g.e(f"s_cmp_eq_u32 s{sITEM}, {n}\ns_cbranch_scc0 L_QC{n}")
        for r in range(16): g.e(f"v_accvgpr_write_b32 a{QCUR+r}, v{QF+16*n+r}")
        g.label(f"L_QC{n}")
    MX=4
    def pcalc(J):
        b=ACC+8*J
        L=[f"v_fma_f32 v{TA+r}, v{b+r}, s{sC}, -v4" for r in range(8)]
        L+=[f"v_exp_f32 v{TA+r}, v{TA+r}" for r in range(8)]
        L+=[f"v_cvt_pk_bf16_f32 v{ACC+4*J+r}, v{TA+2*r}, v{TA+2*r+1}" for r in range(4)]
        return L
    def reads(c):
        st=c&1; sl=c&7; hi=sl>=4; so=(sl&3)*SLOT; R=[]
        if c<8:
            for kt in range(4):
                for t in range(4):
                    R.append(lambda kt=kt,t=t: g.lgop(f"ds_read_b128 {ar(64*st+(kt*4+t)*4)}, v{vKR+(4 if hi else 0)+t} offset:{so+kt*4096}",('F',c,kt)))
        else:
            for js in range(2):
                for dt in range(8):
                    for hf in range(2):
                        r=64*st+(js*8+dt)*4+2*hf
                        R.append(lambda r=r,js=js,dt=dt,hf=hf: g.lgop(f"ds_read_b64_tr_b16 a[{r}:{r+1}], v{vVR+(8 if hi else 0)+dt} offset:{so+js*8192+hf*4096}",('F',c,js*8+dt)))
        return R
    g.e(f"s_waitcnt vmcnt({4*(LA-1)})\ns_barrier")
    for f in reads(0): f()
    for c in range(16):
        cc=c+LA
        if c<15: g.e(f"s_waitcnt vmcnt({4*(LA-2)})")
        if (opt.get("oearly") and 9<=c<15) or (opt.get("thra_last") is not None and opt["thra_last"]<=c<15 and c>=opt.get("thra_skip",0)):
            g.e(f"s_cmp_eq_u32 s{sLAST}, 1\ns_cbranch_scc1 L_TL{c}\ns_waitcnt vmcnt({opt['thra']})\nL_TL{c}:")
        elif opt.get("thra") is not None and c<15:
            if c<opt.get("thra_skip_all",0):
                if opt.get("thra_alt") is not None: g.e(f"s_waitcnt vmcnt({opt['thra_alt']})")
            elif c<opt.get("thra_skip",0):
                g.e(f"s_cmp_eq_u32 s{sITEM}, 0\ns_cbranch_scc1 L_TS{c}\ns_waitcnt vmcnt({opt['thra']})\nL_TS{c}:")
            else: g.e(f"s_waitcnt vmcnt({opt['thra']})")
        if opt.get("thr") is not None and c<15:
            g.e(f"s_bitcmp1_b32 s2, 0\ns_cbranch_scc{opt.get('thr_par',1)} L_TH{c}\ns_waitcnt vmcnt({opt['thr']})\nL_TH{c}:")
        g.e("s_barrier")
        tick(c)
        dm=[]
        if (cc<16 or cc>=16+NWOP) and opt.get("polsel"):
            h,dl=kv_group(cc); g.e(h)
            g.e(f"s_cmp_lg_u32 s{sPOL}, 0\ns_cbranch_scc1 L_PB{c}")
            for l in dl: g.e(l)
            g.e(f"s_branch L_PJ{c}\nL_PB{c}:")
            for l in dl: g.e(l.replace(NT,""))
            g.e(f"L_PJ{c}:")
        elif cc<PF:
            h,dl=kv_group(cc); g.e(f"s_cmp_eq_u32 s{sITEM}, 0\ns_cbranch_scc1 L_PS{c}"); g.e(h)
            for l in dl: g.e(l)
            g.label(f"L_PS{c}")
        elif cc<16 or cc>=16+NWOP:
            h,dl=kv_group(cc); g.e(h); dm=[(lambda l=l: g.e(l)) for l in dl]
        else:
            k=cc-16
            g.e(f"s_cmp_eq_u32 s{sLAST}, 1\ns_cbranch_scc1 L_HO{k}")
            h,dl=kv_group(cc); g.e(h)
            if opt.get("polsel"):
                g.e(f"s_cmp_lg_u32 s{sPOL}, 0\ns_cbranch_scc1 L_PC{k}")
                for l in dl: g.e(l)
                g.e(f"s_branch L_HJ{k}\nL_PC{k}:")
                for l in dl: g.e(l.replace(NT,""))
            else:
                for l in dl: g.e(l)
            g.e(f"s_branch L_HJ{k}")
            g.label(f"L_HO{k}")
            wo_group(k,False)
            g.label(f"L_HJ{k}")
        if opt.get("oearly") and 9<=c<15:
            n_=(c-9)>>1; t0=2*((c-9)&1)
            g.e(f"s_cmp_eq_u32 s{sLAST}, 1\ns_cbranch_scc0 L_OE{c}\ns_sub_u32 s{sT0}, s{sOB}, {(3-n_)*0x80000}")
            for t in (t0,t0+1): g.e(f"buffer_store_dwordx4 {vr(QF+16*n_+4*t)}, v{vOS}, {sr(S_O)}, s{sT0} offen offset:{t*1024}{STO}")
            g.label(f"L_OE{c}")
        if opt.get("olate") and c in (14,15):
            g.e(f"s_cmp_eq_u32 s{sLAST}, 1\ns_cbranch_scc0 L_OL{c}")
            for q in range(6*(c-14),6*(c-14)+6):
                n_,t=q>>2,q&3
                if t==0 or q==6*(c-14): g.e(f"s_sub_u32 s{sT0}, s{sOB}, {(3-n_)*0x80000}")
                g.e(f"buffer_store_dwordx4 {vr(QF+16*n_+4*t)}, v{vOS}, {sr(S_O)}, s{sT0} offen offset:{t*1024}{STO}")
            g.label(f"L_OL{c}")
        R=reads(c+1) if c<15 else []
        st=c&1; M=[]; VL=[]
        if c<8:
            for kt in range(4):
                T=4*c+kt; d=ACC+4*T
                for t in range(4):
                    txt=f"v_mfma_f32_16x16x32_bf16 {vr(d)}, {ar(64*st+(kt*4+t)*4)}, {ar(QCUR+4*t)}, {'0' if t==0 else vr(d)}"
                    M.append((lambda txt=txt,kt=kt,c=c: (g.lgwait(('F',c,kt)), g.e(txt))) if t==0 else txt)
            if c>0:
                for kt in range(4):
                    b=ACC+16*(c-1)+4*kt
                    if c==1: VL+=[f"v_max3_f32 v{MX+kt}, v{b}, v{b+1}, v{b+2}",f"v_max_f32 v{MX+kt}, v{MX+kt}, v{b+3}"]
                    else: VL+=[f"v_max3_f32 v{MX+kt}, v{MX+kt}, v{b}, v{b+1}",f"v_max3_f32 v{MX+kt}, v{MX+kt}, v{b+2}, v{b+3}"]
        else:
            cv=c-8
            for js in range(2):
                J=2*cv+js; P=ACC+4*J
                for dt in range(8):
                    d=OA+4*dt
                    txt=f"v_mfma_f32_16x16x32_bf16 {ar(d)}, {ar(64*st+(js*8+dt)*4)}, {vr(P)}, {'0' if J==0 else ar(d)}"
                    M.append(lambda txt=txt,c=c,k=js*8+dt: (g.lgwait(('F',c,k)), g.e(txt)))
                M.append(f"v_mfma_f32_16x16x32_bf16 {ar(LAcc)}, {ar(ONES)}, {vr(P)}, {'0' if J==0 else ar(LAcc)}")
            if cv<7:
                for J in (2*cv+2,2*cv+3): VL+=pcalc(J)
        if c<7: pat=['tv','tv','tt','d']*4
        elif c==7: pat=['ttv','tt','ttv','dtt']*4
        else: pat=['ttv','ttv','ttv','dvvvv']*4+['ttttvv','ttttvv']
        if opt.get("dfront"):
            nd=opt["dfront"]
            pat=[p.replace('d','') for p in pat]
            for q in range(4): pat[min(q*nd,len(pat)-1)]='d'+pat[min(q*nd,len(pat)-1)]
        ti=vi=di=0
        for m,p in zip(M,pat):
            m() if callable(m) else g.e(m)
            for ch in p:
                if ch=='t' and ti<len(R): R[ti](); ti+=1
                elif ch=='v' and vi<len(VL): g.e(VL[vi]); vi+=1
                elif ch=='d' and di<len(dm): dm[di](); di+=1
        while ti<len(R): R[ti](); ti+=1
        while di<len(dm): dm[di](); di+=1
        while vi<len(VL): g.e(VL[vi]); vi+=1
        if c==7:
            g.e("s_nop 7")
            for kt in range(4):
                b=ACC+16*7+4*kt
                g.e(f"v_max3_f32 v{MX+kt}, v{MX+kt}, v{b}, v{b+1}\nv_max3_f32 v{MX+kt}, v{MX+kt}, v{b+2}, v{b+3}")
            g.e(f"""
            v_max3_f32 v4, v4, v5, v6
            v_max_f32 v4, v4, v7
            v_mov_b32 v5, v4
            s_nop 1
            v_permlane16_swap_b32 v4, v5
            v_max_f32 v4, v4, v5
            v_mov_b32 v5, v4
            s_nop 1
            v_permlane32_swap_b32 v4, v5
            v_max_f32 v4, v4, v5
            v_mul_f32 v4, s{sC}, v4
            """)
            for J in (0,1):
                for l in pcalc(J): g.e(l)
    tick(16)
    g.e(f"s_nop 7\nv_accvgpr_read_b32 v4, a{LAcc}\ns_nop 0\nv_rcp_f32 v4, v4")
    if opt.get("odefer"):
        for r in range(32): g.e(f"v_accvgpr_read_b32 v{128+r}, a{OA+r}")
        for r in range(32): g.e(f"v_mul_f32 v{128+r}, v{128+r}, v4")
        for n in range(4):
            g.e(f"s_cmp_eq_u32 s{sITEM}, {n}\ns_cbranch_scc0 L_OP{n}")
            for r in range(16): g.e(f"v_cvt_pk_bf16_f32 v{QF+16*n+r}, v{128+2*r}, v{129+2*r}")
            g.label(f"L_OP{n}")
        g.e(f"s_cmp_eq_u32 s{sLAST}, 1\ns_cbranch_scc0 L_OSKIP")
        g.e(f"s_sub_u32 s{sT1}, s{sOB}, {0 if (opt.get('oearly') or opt.get('olate')) else 3*0x80000}")
        for n in (range(3,4) if (opt.get("oearly") or opt.get("olate")) else range(4)):
            for t in range(4):
                g.e(f"buffer_store_dwordx4 {vr(QF+16*n+4*t)}, v{vOS}, {sr(S_O)}, s{sT1} offen offset:{t*1024}{STO}")
            if n<3: g.e(f"s_add_u32 s{sT1}, s{sT1}, 0x80000")
        g.label("L_OSKIP")
    else:
        for t in range(4):
            tb=128+16*t
            for r in range(8): g.e(f"v_accvgpr_read_b32 v{tb+r}, a{OA+8*t+r}")
            for r in range(8): g.e(f"v_mul_f32 v{tb+r}, v{tb+r}, v4")
            for r in range(4): g.e(f"v_cvt_pk_bf16_f32 v{tb+8+r}, v{tb+2*r}, v{tb+2*r+1}")
            if not opt.get("no_ostore"): g.e(f"buffer_store_dwordx4 {vr(tb+8)}, v{vOS}, {sr(S_O)}, s{sOB} offen offset:{t*1024}{STO}")
    g.e(f"""
    s_add_u32 s{sCUR}, s{sCUR}, 0x400000
    s_add_u32 s{sNXT}, s{sNXT}, 0x400000
    s_add_u32 s{sOB}, s{sOB}, {0 if opt.get("osame") else 0x80000}
    s_cmp_eq_u32 s{sLAST}, 1
    s_cbranch_scc0 L_A_DONE
    s_waitcnt vmcnt(0)
    s_barrier
    s_cmp_lg_u32 s{sW}, 0
    s_cbranch_scc1 L_A_DONE
    v_accvgpr_read_b32 v1, a166
    v_accvgpr_read_b32 v3, a164
    s_nop 0
    v_readfirstlane_b32 s{sT0}, v1
    v_readfirstlane_b32 s{sT1}, v3
    s_nop 3
    s_cmp_eq_u32 s{sT0}, 0
    s_cselect_b32 s{sNONCE}, s{sT1}, s{sT0}
    """)
    flag_store(0)
    g.e(f"L_A_DONE:\ns_add_u32 s{sITEM}, s{sITEM}, 1")
    tick(17); tick_store(); stamp()
    g.e(f"s_cmp_lt_u32 s{sITEM}, 4\ns_cbranch_scc1 L_ITEM")
    def xst(i):
        if opt.get("xstamps"):
            g.e(f"s_mov_b32 s101, s{sSEGN}\ns_mov_b32 s{sSEGN}, {i}"); stamp(); g.e(f"s_mov_b32 s{sSEGN}, s101")
    def phase_o4():
        dstamp(4)
        g.vm=[]; g.lg=[]
        g.e(f"s_lshl_b32 s{sT0}, s{sKH}, 6")
        for dt in range(16): g.e(f"v_xor_b32 v{vWOR+dt}, s{sT0}, v{vVR+dt}")
        g.e(f"v_add_u32 v{vOS2}, 0x40000, v{vOS}\nv_add_u32 v{vOS3}, 0x60000, v{vOS}")
        g.e(f"""
        s_cmp_lg_u32 s{sW}, 0
        s_cbranch_scc1 L_O_WAITB
        v_mov_b32 v1, {128*K1}
        v_mov_b32 v3, s{sNONCE}
        ds_write_b32 v1, v3
        s_mov_b32 s{sCNT}, 0
        s_mov_b64 exec, 0xff
        L_O_POLL:
        global_load_dword v3, v{vPA}, s[{sWS}:{sWS+1}] sc1
        s_add_u32 s{sCNT}, s{sCNT}, 1
        s_waitcnt vmcnt(0)
        v_cmp_eq_u32 vcc, s{sNONCE}, v3
        s_cmp_gt_u32 s{sCNT}, 0x40000
        s_cbranch_scc1 L_O_POLLX
        s_nop 1
        s_cmp_lg_u32 vcc_lo, 0xff
        s_cbranch_scc1 L_O_POLL
        L_O_POLLX:
        s_mov_b64 exec, -1
        s_waitcnt lgkmcnt(0)
        L_O_WAITB:
        s_barrier
        v_mov_b32 v1, {128*K1}
        ds_read_b32 v3, v1
        s_waitcnt lgkmcnt(0)
        v_readfirstlane_b32 s{sNONCE}, v3
        """)
        dstamp(5)
        if opt.get("stamps"):
            g.e(f"s_mov_b32 s101, s{sSEGN}\ns_mov_b32 s{sSEGN}, 9"); stamp(); g.e(f"s_mov_b32 s{sSEGN}, s101")
        OL=3; WL=5; OF=128; NS=16; OA4=128
        vQ=[vOS,vOS1,vOS2,vOS3]
        def cid(j): return j&8
        def o_txt(s_,k):
            rt,js=k>>1,k&1
            r=OF+(s_&3)*32+(rt*2+js)*4
            return f"buffer_load_dwordx4 {vr(r)}, v{vQ[rt]}, {sr(S_O)}, s{sKO} offen offset:{js*1024}{NTOO}"
        for s_ in range(OL):
            g.e(f"s_add_u32 s{sT0}, s{sPHO}, {s_}\ns_and_b32 s{sT0}, s{sT0}, 7\ns_lshl_b32 s{sT0}, s{sT0}, 11\ns_add_u32 s{sKO}, s{sT0}, s{sOOB}")
            for k in range(8): g.e(o_txt(s_,k))
        RD=[(js,nt,hf) for js in range(2) for nt in range(8) for hf in range(2)]
        def rd(u,js,nt,hf):
            r=64*(u&1)+(js*8+nt)*4+2*hf; sl=u&7
            g.lgop(f"ds_read_b64_tr_b16 a[{r}:{r+1}], v{vWOR+(8 if sl>=4 else 0)+nt} offset:{(sl&3)*SLOT+js*8192+hf*4096}",('A',u,js,nt))
        for (js,nt,hf) in RD: rd(0,js,nt,hf)
        g.e(f"""s_add_u32 s{sT0}, s{sPHO}, {WL}
        s_and_b32 s{sT0}, s{sT0}, 7
        s_lshl_b32 s{sWLO}, s{sT0}, 17
        s_add_u32 s{sT0}, s{sPHO}, {OL}
        s_and_b32 s{sT0}, s{sT0}, 7
        s_lshl_b32 s{sOLO}, s{sT0}, 11""")
        for u in range(NS):
            yv=8*len([j for j in range(u+1,min(u+OL,NS))])
            n=min(12,yv)
            if u+1<NS and u+1>=NWOP:
                yd=4*len([j for j in range(u+2,min(u+WL,NS))])
                n=min(n,yd)
            g.e(f"s_waitcnt vmcnt({n})")
            g.e("s_barrier")
            tick(u)
            G_=Gaps(64)
            if u+WL<NS:
                if u+WL==8: G_.put_post(0,S(f"s_add_u32 s{sWOB}, s{sWOB}, {8<<17}"))
                G_.put_post(1,S(f"s_add_u32 s{sKWO}, s{sWLO}, s{sWOB}"))
                G_.put_post(2,S(f"s_add_u32 m0, s{sWOFF}, {((u+WL)&7)*SLOT}"))
                G_.put_post(20,S(f"s_add_u32 s{sWLO}, s{sWLO}, {1<<17}"))
                G_.put_post(21,S(f"s_and_b32 s{sWLO}, s{sWLO}, {7<<17}"))
                for j,p in enumerate([3,19,35,51]):
                    G_.mem[p]=(lambda j=j: g.e(f"buffer_load_dwordx4 v{vWOD+j}, {sr(S_WO)}, s{sKWO} offen offset:{1024*j}{NTO} lds"))
            if u+OL<NS:
                if u+OL==8: G_.put_post(4,S(f"s_add_u32 s{sOOB}, s{sOOB}, {8<<11}"))
                G_.put_post(5,S(f"s_add_u32 s{sKO}, s{sOLO}, s{sOOB}"))
                G_.put_post(61,S(f"s_add_u32 s{sOLO}, s{sOLO}, {1<<11}"))
                G_.put_post(62,S(f"s_and_b32 s{sOLO}, s{sOLO}, {7<<11}"))
                for k,p in enumerate([7,13,23,29,39,45,55,60]):
                    G_.mem[p]=(lambda k=k,u=u: g.e(o_txt(u+OL,k)))
            if u+1<NS:
                for n_,(js,nt,hf) in enumerate(RD):
                    G_.put_mem(n_*58/32.0,lambda js=js,nt=nt,hf=hf,u=u: rd(u+1,js,nt,hf),hi=62)
            M=[]
            for js in range(2):
                for nt in range(8):
                    for rt in range(4):
                        d=OA4+(rt*8+nt)*4
                        txt=f"v_mfma_f32_16x16x32_bf16 {ar(d)}, {ar(64*(u&1)+(js*8+nt)*4)}, {vr(OF+(u&3)*32+(rt*2+js)*4)}, {'0' if (u==0 and js==0) else ar(d)}"
                        if rt==0: M.append(lambda txt=txt,u=u,js=js,nt=nt: (g.lgwait(('A',u,js,nt)), g.e(txt)))
                        else: M.append(txt)
            G_.emit(g,M)
        tick(16); tick(17); tick_store(); stamp(); dstamp(6)
        g.e("s_nop 7")
        for d in range(1,4):
            for hb in range(2):
                g.e(f"s_add_u32 s{sT1}, s{sEXW}, {(d-1)*8192+hb*4096}")
                for rr in range(2):
                    rt=2*hb+rr
                    for m in range(2):
                        g.e(f"buffer_store_dwordx4 {ar(OA4+(rt*8+2*d+m)*4)}, v{vOS}, {sr(S_O)}, s{sT1} offen offset:{(rr*2+m)*1024} sc1")
        for rt in range(4):
            for m in range(2):
                for q in range(4): g.e(f"v_accvgpr_read_b32 v{224+(rt*2+m)*4+q}, a{OA4+(rt*8+m)*4+q}")
        g.e(f"""
        v_lshrrev_b32 v3, 4, v0
        v_and_b32 v4, 15, v0
        v_lshlrev_b32 v5, 3, v3
        v_lshl_add_u32 v52, v4, 12, v5
        s_lshl_b32 s{sCNT}, s{sW}, 2
        s_add_u32 s{sCNT}, s{sCNT}, 16
        v_add_u32 v5, 1, v0
        v_xor_b32 v5, s2, v5
        v_lshlrev_b32 v5, 7, v5
        s_add_u32 s{sT0}, s{sCNT}, {FLAG_OFF}
        v_add_u32 v53, s{sT0}, v5
        s_waitcnt vmcnt(0)
        """)
        xst(11)
        flag_store(f"s{sCNT}")
        g.e(f"""
        s_mov_b32 s{sCNT}, 0
        s_mov_b64 exec, 7
        L_X_POLL:
        global_load_dword v3, v53, s[{sWS}:{sWS+1}] sc1
        s_add_u32 s{sCNT}, s{sCNT}, 1
        s_waitcnt vmcnt(0)
        v_cmp_eq_u32 vcc, s{sNONCE}, v3
        s_cmp_gt_u32 s{sCNT}, 0x40000
        s_cbranch_scc1 L_X_POLLX
        s_nop 1
        s_cmp_lg_u32 vcc_lo, 7
        s_cbranch_scc1 L_X_POLL
        L_X_POLLX:
        s_mov_b64 exec, -1
        """)
        xst(12)
        for d in range(1,4):
            g.e(f"s_xor_b32 s{sT0}, s2, {d}\ns_mul_i32 s{sT0}, s{sT0}, 98304\ns_mul_i32 s{sT1}, s{sW}, 24576\ns_add_u32 s{sT0}, s{sT0}, s{sT1}\ns_add_u32 s{sEXR}, s{sT0}, {EXCH_OFF+(d-1)*8192}")
            for hb in range(2):
                if hb==1: g.e(f"s_add_u32 s{sEXR}, s{sEXR}, 4096")
                for k in range(4):
                    g.e(f"buffer_load_dwordx4 {vr(128+((d-1)*8+hb*4+k)*4)}, v{vOS}, {sr(S_O)}, s{sEXR} offen offset:{k*1024} sc1")
        g.e("s_waitcnt vmcnt(0)")
        xst(13)
        for rt in range(4):
            if rt>0: g.e(f"s_add_u32 s{sOUTB}, s{sOUTB}, 0x10000")
            for m in range(2):
                dd=224+(rt*2+m)*4
                for d in range(3):
                    r=128+(d*8+rt*2+m)*4
                    for q in range(4): g.e(f"v_add_f32 v{dd+q}, v{dd+q}, v{r+q}")
                g.e(f"""v_cvt_pk_bf16_f32 v{dd}, v{dd}, v{dd+1}
                v_cvt_pk_bf16_f32 v{dd+1}, v{dd+2}, v{dd+3}
                buffer_store_dwordx2 v[{dd}:{dd+1}], v52, {sr(S_OUT)}, s{sOUTB} offen offset:{m*32}{opt.get("st_out","")}""")
    def phase_o2():
        dstamp(4)
        g.vm=[]; g.lg=[]
        tick(40)
        g.e(f"s_lshl_b32 s{sT0}, s{sKH}, 7")
        for dt in range(16): g.e(f"v_xor_b32 v{vWOR+dt}, s{sT0}, v{vVR+dt}")
        g.e("v_mov_b32 v1, 0")
        for r in range(64): g.e(f"v_accvgpr_write_b32 a{OACC+r}, v1")
        g.e(f"""
        s_cmp_lg_u32 s{sW}, 0
        s_cbranch_scc1 L_O_WAITB
        v_mov_b32 v1, {128*K1}
        v_mov_b32 v3, s{sNONCE}
        ds_write_b32 v1, v3
        s_mov_b32 s{sCNT}, 0
        s_mov_b64 exec, 0xffff
        L_O_POLL:
        global_load_dword v3, v{vPA}, s[{sWS}:{sWS+1}] sc1
        s_add_u32 s{sCNT}, s{sCNT}, 1
        s_waitcnt vmcnt(0)
        v_cmp_eq_u32 vcc, s{sNONCE}, v3
        s_cmp_gt_u32 s{sCNT}, 0x40000
        s_cbranch_scc1 L_O_POLLX
        s_nop 1
        s_cmp_lg_u32 vcc_lo, 0xffff
        s_cbranch_scc1 L_O_POLL
        L_O_POLLX:
        s_mov_b64 exec, -1
        s_waitcnt lgkmcnt(0)
        L_O_WAITB:
        s_barrier
        v_mov_b32 v1, {128*K1}
        ds_read_b32 v3, v1
        s_waitcnt lgkmcnt(0)
        v_readfirstlane_b32 s{sNONCE}, v3
        """)
        tick(41); dstamp(5)
        if opt.get("stamps"):
            g.e(f"s_mov_b32 s101, s{sSEGN}\ns_mov_b32 s{sSEGN}, 9"); stamp(); g.e(f"s_mov_b32 s{sSEGN}, s101")
        OL=3; WL=NWOP; OF=128; NCH=32
        def o_1(st,k,srdn,tag=None):
            rt,js=k>>1,k&1
            r=OF+st*16+(rt*2+js)*4
            g.e(f"buffer_load_dwordx4 {vr(r)}, v{vOS if rt==0 else vOS1}, {sr(srdn)}, s{sKO} offen offset:{js*1024}{NTOO}")
        for c in range(OL):
            g.e(f"s_add_u32 s{sT0}, s{sPHO}, {c}\ns_and_b32 s{sT0}, s{sT0}, {OM}\ns_lshl_b32 s{sT0}, s{sT0}, 11\ns_add_u32 s{sKO}, s{sT0}, s{sOOB}")
            for k in range(4): o_1(c,k,S_O)
        RD=[(js,nt,hf) for js in range(2) for nt in range(8) for hf in range(2)]
        def a_read2(u,js,nt,hf):
            r=64*(u&1)+(js*8+nt)*4+2*hf
            sl=u&7
            g.lgop(f"ds_read_b64_tr_b16 a[{r}:{r+1}], v{vWOR+(8 if sl>=4 else 0)+nt} offset:{(sl&3)*SLOT+js*8192+hf*4096}",('A',u&1,js,nt))
        for (js,nt,hf) in RD: a_read2(0,js,nt,hf)
        g.e(f"""s_add_u32 s{sT0}, s{sPHO}, {WL}
        s_and_b32 s{sT0}, s{sT0}, {OM}
        s_lshl_b32 s{sWLO}, s{sT0}, 17
        s_add_u32 s{sT0}, s{sPHO}, {OL}
        s_and_b32 s{sT0}, s{sT0}, {OM}
        s_lshl_b32 s{sOLO}, s{sT0}, 11
        s_add_u32 s{sWOB}, s{sWOB}, {(WL&~OM)<<17}
        s_add_u32 s{sOOB}, s{sOOB}, {((OL-1)&~OM)<<11}
        s_mov_b32 s{sJ}, 0""")
        def body(u):
            g.e(f"s_waitcnt vmcnt(8)")
            g.e("s_barrier")
            if opt.get("steps"): g.e(f"s_memtime s[96:97]\ns_waitcnt lgkmcnt(0)\ns_sub_u32 s99, s96, s98\ns_mov_b32 s98, s96\nv_readlane_b32 s97, v62, {u}\ns_nop 3\ns_add_u32 s97, s97, s99\ns_nop 0\nv_writelane_b32 v62, s97, {u}"); g.lg=[]
            G_=Gaps(32)
            vp=opt.get("o_vpos",[3,7,11,15,19,23,27,31])
            if u+WL==8:
                G_.put_post(0,S(f"s_add_u32 s{sWOB}, s{sWOB}, {OW<<17}\ns_cmp_lt_u32 s{sJ}, {NCH-8}\ns_cselect_b32 s{S_WON+2}, {8*MB}, 0"))
            elif (u+WL)%OW==0:
                G_.put_post(0,S(f"s_add_u32 s{sWOB}, s{sWOB}, {OW<<17}"))
            G_.put_post(1,S(f"s_add_u32 s{sKWO}, s{sWLO}, s{sWOB}"))
            G_.put_post(2,S(f"s_add_u32 m0, s{sWOFF}, {((u+WL)&7)*SLOT}"))
            if u+OL==8:
                G_.put_post(4,S(f"s_add_u32 s{sOOB}, s{sOOB}, {OW<<11}\ns_cmp_lt_u32 s{sJ}, {NCH-8}\ns_cselect_b32 s{S_ON+2}, {WS_SRD}, 0"))
            elif (u+OL)%OW==0:
                G_.put_post(4,S(f"s_add_u32 s{sOOB}, s{sOOB}, {OW<<11}"))
            G_.put_post(5,S(f"s_add_u32 s{sKO}, s{sOLO}, s{sOOB}"))
            G_.put_post(8,S(f"s_add_u32 s{sWLO}, s{sWLO}, {1<<17}"))
            G_.put_post(9,S(f"s_and_b32 s{sWLO}, s{sWLO}, {OM<<17}"))
            G_.put_post(12,S(f"s_add_u32 s{sOLO}, s{sOLO}, {1<<11}"))
            G_.put_post(13,S(f"s_and_b32 s{sOLO}, s{sOLO}, {OM<<11}"))
            for j in range(4):
                G_.mem[vp[2*j]]=(lambda j=j: g.e(f"buffer_load_dwordx4 v{vWOD+j}, {sr(S_WON)}, s{sKWO} offen offset:{1024*j}{NTO} lds"))
                G_.mem[vp[2*j+1]]=(lambda j=j,u=u: o_1((u+OL)&3,j,S_ON))
            rend=opt.get("o_rend",30)
            for n_,(js,nt,hf) in enumerate(RD):
                G_.put_mem(n_*rend/32.0,lambda js=js,nt=nt,hf=hf,u=u: a_read2(u+1,js,nt,hf))
            M=[]
            for js in range(2):
                for nt in range(8):
                    for rt in range(2):
                        d=OACC+(rt*8+nt)*4
                        txt=f"v_mfma_f32_16x16x32_bf16 {ar(d)}, {ar(64*(u&1)+(js*8+nt)*4)}, {vr(OF+(u&3)*16+(rt*2+js)*4)}, {ar(d)}"
                        if rt==0: M.append(lambda txt=txt,u=u,js=js,nt=nt: (g.lgwait(('A',u&1,js,nt)), g.e(txt)))
                        else: M.append(txt)
            G_.emit(g,M)
        save=list(g.L)
        for u in range(8): body(u)
        lg_end=list(g.lg)
        g.L=save; g.lg=list(lg_end)
        g.e("s_waitcnt lgkmcnt(0)")
        if opt.get("steps"): g.e("v_mov_b32 v62, 0\ns_memtime s[98:99]\ns_waitcnt lgkmcnt(0)")
        g.label("L_O_LOOP")
        for u in range(8): body(u)
        assert g.lg==lg_end
        g.e(f"s_add_u32 s{sJ}, s{sJ}, 8\ns_cmp_lt_u32 s{sJ}, {NCH}\ns_cbranch_scc1 L_O_LOOP\ns_waitcnt lgkmcnt(0)")
        tick_store(); stamp(); dstamp(6)
        g.e("s_nop 7")
        for rt in range(2):
            if rt==1: g.e(f"s_add_u32 s{sEXW}, s{sEXW}, 4096")
            for m in range(4):
                d=OACC+(rt*8+4+m)*4
                g.e(f"buffer_store_dwordx4 {ar(d)}, v{vOS}, {sr(S_O)}, s{sEXW} offen offset:{m*1024} sc1")
        for rt in range(2):
            for m in range(4):
                for q in range(4): g.e(f"v_accvgpr_read_b32 v{128+(rt*4+m)*4+q}, a{OACC+(rt*8+m)*4+q}")
        g.e(f"""
        v_lshrrev_b32 v3, 4, v0
        v_and_b32 v4, 15, v0
        v_lshlrev_b32 v5, 3, v3
        v_lshl_add_u32 v52, v4, 12, v5
        s_lshl_b32 s{sCNT}, s{sW}, 2
        s_add_u32 s{sCNT}, s{sCNT}, 16
        s_waitcnt vmcnt(0)
        """)
        xst(11)
        flag_store(f"s{sCNT}")
        g.e(f"""
        s_xor_b32 s{sT0}, s2, 128
        s_lshl_b32 s{sT0}, s{sT0}, 7
        s_add_u32 s{sT0}, s{sT0}, {FLAG_OFF}
        s_add_u32 s{sT0}, s{sT0}, s{sCNT}
        v_mov_b32 v1, s{sT0}
        s_mov_b32 s{sCNT}, 0
        s_mov_b64 exec, 1
        L_X_POLL:
        global_load_dword v3, v1, s[{sWS}:{sWS+1}] sc1
        s_add_u32 s{sCNT}, s{sCNT}, 1
        s_waitcnt vmcnt(0)
        v_readfirstlane_b32 s{sT0}, v3
        s_cmp_gt_u32 s{sCNT}, 0x40000
        s_cbranch_scc1 L_X_POLLX
        s_cmp_lg_u32 s{sT0}, s{sNONCE}
        s_cbranch_scc1 L_X_POLL
        L_X_POLLX:
        s_mov_b64 exec, -1
        """)
        xst(12)
        for rt in range(2):
            if rt==1: g.e(f"s_add_u32 s{sEXR}, s{sEXR}, 4096")
            for m in range(4):
                r=192+(rt*4+m)*4
                g.e(f"buffer_load_dwordx4 {vr(r)}, v{vOS}, {sr(S_O)}, s{sEXR} offen offset:{m*1024} sc1")
        for rt in range(2):
            if rt==1: g.e(f"s_add_u32 s{sOUTB}, s{sOUTB}, 0x10000")
            for m in range(4):
                d=128+(rt*4+m)*4; r=192+(rt*4+m)*4
                if rt==0 and m==0:
                    g.e("s_waitcnt vmcnt(0)"); xst(13)
                for q in range(4): g.e(f"v_add_f32 v{d+q}, v{d+q}, v{r+q}")
                g.e(f"""v_cvt_pk_bf16_f32 v{d}, v{d}, v{d+1}
                v_cvt_pk_bf16_f32 v{d+1}, v{d+2}, v{d+3}
                buffer_store_dwordx2 v[{d}:{d+1}], v52, {sr(S_OUT)}, s{sOUTB} offen offset:{m*32}{opt.get("st_out","")}""")
    phase_o4() if O4 else phase_o2()
    stamp()
    if opt.get("dstamps"):
        g.e("s_waitcnt vmcnt(0)"); dstamp(7)
    if opt.get("stamps"):
        g.e("s_waitcnt vmcnt(0)")
        g.e(f"s_mov_b32 s{sSEGN}, 10")
        stamp()
    g.label("L_END")
    g.e("s_endpgm")
    return g.text()

def build(opt):
    s="; @launch grid=(256,1,1) block=(256,1,1) lds=163840\n"
    s+=""";
;
;            row sums from an extra MFMA with a ones operand; K/V stream through an 8-slot LDS ring (non-temporal loads).
;  phase O : out tile 128 x 128 over half of K (split-K 2): o fragments straight to registers, wo through the LDS ring.
;  phase X : the two K halves exchange fp32 partial tiles through the workspace, add, round to bf16, store.
;  Hand-offs between workgroups use write-through stores + per-workgroup flag words in the workspace; flags carry a
;  per-launch tag agreed through d_debug (zero at launch), so stale workspace contents never match.  Counted vmcnt waits
"""
    s+='.amdgcn_target "amdgcn-amd-amdhsa--gfx950"\n'
    s+=f".text\n.globl {KN}\n.p2align 8\n.type {KN},@function\n{KN}:\n"
    s+=gen(opt)
    s+=f""".section .rodata,"a"
.p2align 6
.amdhsa_kernel {KN}
  .amdhsa_next_free_vgpr 512
  .amdhsa_next_free_sgpr 102
  .amdhsa_accum_offset 256
  .amdhsa_group_segment_fixed_size 0
  .amdhsa_kernarg_size 104
  .amdhsa_user_sgpr_count 2
  .amdhsa_user_sgpr_kernarg_segment_ptr 1
  .amdhsa_system_sgpr_workgroup_id_x 1
.end_amdhsa_kernel
"""
    return s
if __name__=="__main__":
    opt=json.loads(sys.argv[2]) if len(sys.argv)>2 else {}
    open(sys.argv[1],"w").write(build(opt))
```
